```python
import torch

def _softmax(x, axis=-1):
    return torch.softmax(x, dim=axis)
def _gelu(x):
    return torch.nn.functional.gelu(x, approximate="tanh")
def _silu(x):
    return torch.nn.functional.silu(x)
def _sigmoid(x):
    return torch.sigmoid(x)
def _layernorm(x, axis=-1, eps=1e-5):
    m = x.mean(dim=axis, keepdim=True)
    v = x.var(dim=axis, keepdim=True, unbiased=False)
    return (x - m) / torch.sqrt(v + eps)
def _scatter_add(tgt, idx, src, axis=0):
    return tgt.clone().index_add_(axis, idx, src)
def _segment_sum(src, seg, n):
    out = torch.zeros((n,) + src.shape[1:], dtype=src.dtype)
    return out.index_add_(0, seg, src)
def _pad(x, pw):
    flat = tuple(v for pair in reversed(pw) for v in pair)
    return torch.nn.functional.pad(x, flat)

kernel_name = 'standalone__batchnorm__sampling'

def setup_inputs():

    _w = (lambda a: (lambda t: t.to(torch.bfloat16) if t.is_floating_point() else t)(torch.as_tensor(a)))
    B, S, C = 1024, 16, 576
    K = 3
    return {
        "x": _w((lambda *s: torch.randn(*s, dtype=torch.bfloat16) * 0.05)(B, S, C)),
        "w": _w((lambda *s: torch.randn(*s, dtype=torch.bfloat16) * 0.05)(K, C, C) * (1.0 / (K * C) ** 0.5)),
        "mean": _w((lambda *s: torch.randn(*s, dtype=torch.bfloat16) * 0.05)(C) * 0.1),
        "var": _w(torch.abs((lambda *s: torch.randn(*s, dtype=torch.bfloat16) * 0.05)(C)) + 0.5),
        "g": _w((lambda *s: torch.randn(*s, dtype=torch.bfloat16) * 0.05)(C) + 1.0),
        "b": _w((lambda *s: torch.randn(*s, dtype=torch.bfloat16) * 0.05)(C) * 0.1),
    }

def reference(x, w, mean, var, g, b):
    K = 3
    P = K // 2
    S = x.shape[1]
    xp = _pad(x, ((0, 0), (P, P), (0, 0)))
    y = sum(torch.einsum('bsc,cd->bsd', xp[:, k:k + S, :], w[k]) for k in range(K))
    inv_std = 1.0 / torch.sqrt(var + 1e-5)
    y = (y - mean) * (g * inv_std) + b
    return _silu(y)
```

```python
import sys
import argparse

KNAME = "standalone__batchnorm__sampling_kernel"

HEADER = """; Kernarg layout for this problem (72 bytes, ptrs only, base s[0:1]):
"""

XBYTES = 1024 * 16 * 576 * 2
WBYTES = 3 * 576 * 576 * 2
ROWB = 1152
TAPB = 576 * 1152

XBUF = 0
WRING = 65536
WSLOT = 9216
NW = 10
PARAM = WRING + NW * WSLOT
LDS_BYTES = PARAM + 1152

LOG2E = 0x3FB8AA3B


class Asm:
    def __init__(self):
        self.lines = []

    def __call__(self, s):
        self.lines.append("    " + s)

    def label(self, l):
        self.lines.append(l + ":")

    def c(self, s):
        self.lines.append("    ; " + s)

    def text(self):
        return "\n".join(self.lines) + "\n"


class LdsQ:
    def __init__(self):
        self.q = []

    def issue(self, tag):
        self.q.append(tag)
        assert len(self.q) <= 15, self.q

    def wait(self, tag):
        idx = [i for i, t in enumerate(self.q) if t == tag]
        if not idx:
            return None
        last = idx[-1]
        n = len(self.q) - 1 - last
        self.q = self.q[last + 1:]
        return n


def vr(b, n=4):
    return "v[%d:%d]" % (b, b + n - 1)


def gen(opt):
    a = Asm()
    D = opt.D
    R = 6
    assert D <= R - 1
    ACC = lambda t, i: (t * 4 + i) * 4
    XA, XB = 144, 160
    WR = 176
    V_W, V_WL, V_X0, V_X1 = 200, 201, 202, 203
    V_T0, V_T1, V_T2, V_T3 = 204, 205, 206, 207
    V_LANE = 208
    V_OUT0, V_OUT8, V_PAR = 209, 210, 211

    S_WAVE, S_ROW, S_COL = 48, 49, 50
    S_T0, S_T1, S_T2 = 51, 52, 53
    S_WS, S_CNT, S_SOFF = 54, 55, 56
    S_L2E = 58

    def stamp(idx):
        if opt.stamp:
            a("s_memrealtime s[%d:%d]" % (70 + 2 * idx, 71 + 2 * idx))

    def stampc(idx):
        if opt.stamp:
            a("s_memtime s[%d:%d]" % (70 + 2 * idx, 71 + 2 * idx))

    a.label(KNAME)
    stamp(0)
    a("s_cmp_ge_u32 s2, 256")
    a("s_cbranch_scc1 L_end")
    a("s_load_dwordx8 s[4:11], s[0:1], 0")
    a("s_load_dwordx4 s[12:15], s[0:1], 32")
    a("s_load_dwordx2 s[16:17], s[0:1], 48")
    if opt.stamp:
        a("s_load_dwordx2 s[18:19], s[0:1], 64")
    a("v_lshrrev_b32 v1, 6, v0")
    a("v_and_b32 v%d, 63, v0" % V_LANE)
    a("v_readfirstlane_b32 s%d, v1" % S_WAVE)
    a("s_and_b32 s%d, s2, 7" % S_ROW)
    a("s_lshr_b32 s%d, s2, 3" % S_COL)
    a("s_lshl_b32 s%d, s%d, 3" % (S_ROW, S_ROW))
    a("s_lshr_b32 s%d, s%d, 2" % (S_T0, S_COL))
    a("s_add_u32 s%d, s%d, s%d" % (S_ROW, S_ROW, S_T0))
    a("s_and_b32 s%d, s%d, 3" % (S_COL, S_COL))
    a("s_mul_i32 s%d, s%d, %d" % (S_ROW, S_ROW, 256 * ROWB))
    a("s_mul_i32 s%d, s%d, 288" % (S_COL, S_COL))
    a("v_lshrrev_b32 v%d, 3, v%d" % (V_T0, V_LANE))
    a("v_mul_u32_u24 v%d, %d, v%d" % (V_T0, ROWB, V_T0))
    a("v_and_b32 v%d, 7, v%d" % (V_T1, V_LANE))
    a("v_lshrrev_b32 v%d, 4, v%d" % (V_T2, V_LANE))
    a("v_xor_b32 v%d, v%d, v%d" % (V_T1, V_T1, V_T2))
    a("v_lshl_add_u32 v%d, v%d, 4, v%d" % (V_T0, V_T1, V_T0))
    a("v_xor_b32 v%d, 64, v%d" % (V_T1, V_T0))
    a("s_waitcnt lgkmcnt(0)")
    a("s_mov_b32 s20, s4")
    a("s_and_b32 s21, s5, 0xffff")
    a("s_mov_b32 s22, %d" % XBYTES)
    a("s_mov_b32 s23, 0x20000")
    a("s_mov_b32 s24, s6")
    a("s_and_b32 s25, s7, 0xffff")
    a("s_mov_b32 s26, %d" % WBYTES)
    a("s_mov_b32 s27, 0x20000")
    a("s_cmp_ge_u32 s%d, 4" % S_WAVE)
    a("s_cbranch_scc1 L_loader")

    a.c("compute wave: DMA own X rows, chunk 0")
    a("s_mul_i32 s%d, s%d, %d" % (S_T0, S_WAVE, 64 * ROWB))
    a("s_add_u32 s%d, s%d, s%d" % (S_SOFF, S_ROW, S_T0))
    a("s_lshl_b32 s%d, s%d, 13" % (S_T1, S_WAVE))
    a("s_add_u32 m0, s%d, %d" % (S_T1, XBUF))
    a("s_mov_b32 s%d, s%d" % (S_T2, S_SOFF))
    for n in range(8):
        a("buffer_load_dwordx4 v%d, s[20:23], s%d offen lds" % (V_T0 if n % 2 == 0 else V_T1, S_T2))
        if n < 7:
            a("s_add_u32 m0, m0, 1024")
            a("s_add_u32 s%d, s%d, %d" % (S_T2, S_T2, 8 * ROWB))
    a("s_setprio %d" % opt.prio)
    a("s_mov_b32 s28, s16")
    a("s_and_b32 s29, s17, 0xffff")
    a("s_mov_b32 s30, %d" % XBYTES)
    a("s_mov_b32 s31, 0x20000")
    a("s_mov_b32 s%d, 0x%x" % (S_L2E, LOG2E))
    a("s_mov_b32 s%d, 0x%x" % (S_L2E + 1, LOG2E))
    a("v_and_b32 v%d, 15, v%d" % (V_T2, V_LANE))
    a("v_lshrrev_b32 v%d, 4, v%d" % (V_T3, V_LANE))
    a("v_lshrrev_b32 v%d, 1, v%d" % (V_X0, V_T2))
    a("v_xor_b32 v%d, v%d, v%d" % (V_X0, V_X0, V_T3))
    a("v_lshlrev_b32 v%d, 4, v%d" % (V_X0, V_X0))
    a("v_lshl_add_u32 v%d, v%d, 7, v%d" % (V_X0, V_T2, V_X0))
    a("v_add_u32 v%d, s%d, v%d" % (V_X0, S_T1, V_X0))
    if XBUF:
        a("v_add_u32 v%d, %d, v%d" % (V_X0, XBUF, V_X0))
    a("v_xor_b32 v%d, 64, v%d" % (V_X1, V_X0))
    a("v_mul_u32_u24 v%d, %d, v%d" % (V_OUT0, ROWB, V_T2))
    a("v_lshrrev_b32 v%d, 1, v%d" % (V_PAR, V_T3))
    a("v_lshl_add_u32 v%d, v%d, 4, v%d" % (V_OUT0, V_PAR, V_OUT0))
    a("v_and_b32 v%d, 1, v%d" % (V_PAR, V_T3))
    a("v_mul_u32_u24 v%d, %d, v%d" % (V_OUT8, 16 * ROWB, V_PAR))
    a("v_add_u32 v%d, v%d, v%d" % (V_OUT8, V_OUT8, V_OUT0))
    a("v_lshl_add_u32 v%d, v%d, 5, v%d" % (V_OUT0, V_PAR, V_OUT0))
    a("v_lshlrev_b32 v%d, 4, v%d" % (V_PAR, V_T3))
    a("v_add_u32 v%d, %d, v%d" % (V_PAR, PARAM, V_PAR))
    a("v_lshrrev_b32 v%d, 5, v%d" % (V_WL, V_LANE))
    a("v_lshlrev_b32 v%d, 4, v%d" % (V_WL, V_WL))
    a("v_bfe_u32 v%d, v%d, 4, 1" % (V_T2, V_LANE))
    a("v_lshl_add_u32 v%d, v%d, 2, v%d" % (V_WL, V_T2, V_WL))
    a("v_bfe_u32 v%d, v%d, 2, 2" % (V_T2, V_LANE))
    a("v_add_u32 v%d, v%d, v%d" % (V_WL, V_WL, V_T2))
    a("v_mul_u32_u24 v%d, 288, v%d" % (V_WL, V_WL))
    a("v_and_b32 v%d, 3, v%d" % (V_T2, V_LANE))
    a("v_lshl_add_u32 v%d, v%d, 3, v%d" % (V_WL, V_T2, V_WL))
    a("s_mov_b32 s%d, %d" % (S_WS, WRING))
    a("v_add_u32 v%d, s%d, v%d" % (V_W, S_WS, V_WL))
    for r in range(0, 144, 2):
        a("v_mov_b64 v[%d:%d], 0" % (r, r + 1))
    a("s_mov_b32 s%d, 9" % S_CNT)
    a("s_waitcnt vmcnt(0)")
    stamp(1)
    a("s_barrier")
    stamp(2)
    stampc(5)

    q = LdsQ()

    def wread(out, f):
        t = f % 9
        base = WR + (f % R) * 4
        res = []
        for h in range(2):
            res.append(("ds_read_b64_tr_b16 v[%d:%d], v%d offset:%d" % (base + 2 * h, base + 2 * h + 1, V_W, h * 2304 + t * 32), ("W", f)))
        return res

    def xread(dst, vaddr, tag):
        return [("ds_read_b128 %s, v%d offset:%d" % (vr(dst + 4 * i), vaddr, i * 2048), tag) for i in range(4)]

    if opt.stamp:
        a("s_waitcnt lgkmcnt(0)")
    for ins, tag in xread(XA, V_X0, ("X", 0)):
        a(ins)
        q.issue(tag)
    a("v_xor_b32 v%d, 0x8000, v%d" % (V_X0, V_X0))
    for f in range(D):
        for ins, tag in wread(a, f):
            a(ins)
            q.issue(tag)

    def body(it):
        out = []

        def emit(s):
            out.append("    " + s)

        def emit_lds(ins, tag):
            emit(ins)
            q.issue(tag)

        def wait(tag):
            n = q.wait(tag)
            if n is not None:
                emit("s_waitcnt lgkmcnt(%d)" % n)

        for ks in range(6):
            ph = ks % 3
            U, O = (XA, XB) if ks < 3 else (XB, XA)
            xs = [U, O, U][ph]
            chunk = it * 2 + ks // 3
            for t in range(9):
                f = (it * 6 + ks) * 9 + t
                fill = []
                if ph == 0 and t < 8:
                    for k in (2 * t, 2 * t + 1):
                        fill.append(("v", "v_mov_b32_dpp v%d, v%d row_shr:1 row_mask:0xf bank_mask:0xf bound_ctrl:0" % (O + k, U + k)))
                if ph == 1 and t < 8:
                    for k in (2 * t, 2 * t + 1):
                        fill.append(("v", "v_mov_b32_dpp v%d, v%d row_shl:1 row_mask:0xf bank_mask:0xf bound_ctrl:0" % (U + k, U + k)))
                pre = []
                if ph == 2 and t < 2:
                    va = V_X1 if ks == 2 else V_X0
                    xr = xread(O, va, ("X", chunk + 1))
                    for ins, tag in xr[2 * t:2 * t + 2]:
                        pre.append(("l", ins, tag))
                if ph == 2 and t == 2:
                    va = V_X1 if ks == 2 else V_X0
                    fill.append(("v", "v_xor_b32 v%d, 0x8000, v%d" % (va, va)))
                nf = f + D
                rd = [("l", ins, tag) for ins, tag in wread(a, nf)]
                cross = (nf % 9 == 0)
                if (nf + 1) % 9 == 0:
                    fill.append(("s", "s_add_u32 s%d, s%d, %d" % (S_WS, S_WS, WSLOT)))
                    fill.append(("s", "s_cmp_eq_u32 s%d, %d" % (S_WS, WRING + NW * WSLOT)))
                    fill.append(("s", "s_cselect_b32 s%d, %d, s%d" % (S_WS, WRING, S_WS)))
                wait(("W", f))
                if t == 0:
                    wait(("X", chunk))
                seq = []
                if cross:
                    seq.append(("v", "v_add_u32 v%d, s%d, v%d" % (V_W, S_WS, V_WL)))
                    if ph == 2:
                        seq.append(("bar", chunk + 1))
                seq += pre + rd + fill
                if ks == 5 and t == 8:
                    seq.append(("s", "s_sub_u32 s%d, s%d, 1" % (S_CNT, S_CNT)))
                    seq.append(("s", "s_cmp_lg_u32 s%d, 0" % S_CNT))
                gaps = [[], [], [], []]
                n = len(seq)
                per = [(n + 3 - g) // 4 for g in range(4)]
                k = 0
                for g in range(4):
                    gaps[g] = seq[k:k + per[g]]
                    k += per[g]
                for i in range(4):
                    wf = WR + (f % R) * 4
                    emit("v_mfma_f32_16x16x32_bf16 %s, %s, %s, %s" % (vr(ACC(t, i)), vr(wf), vr(xs + 4 * i), vr(ACC(t, i))))
                    for it_ in gaps[i]:
                        if it_[0] == "l":
                            emit_lds(it_[1], it_[2])
                        elif it_[0] == "bar":
                            wait(("X", it_[1]))
                            emit("s_barrier")
                        else:
                            emit(it_[1])
        return out

    b0 = body(0)
    b1 = body(1)
    b2 = body(2)
    assert b1 == b2
    if b0 != b1:
        for x, y in zip(b0, b1):
            if x != y:
                print("; prologue/steady diff:", x, "|", y, file=sys.stderr)
    a(".p2align 6")
    a.label("L_loop")
    a.lines += b1
    a("s_cbranch_scc1 L_loop")
    stampc(6)
    stamp(3)

    a.c("epilogue")
    P0 = 144
    E0 = 176
    SD = 184
    a("s_add_u32 s%d, s%d, s%d" % (S_SOFF, S_SOFF, S_COL))
    a("s_waitcnt lgkmcnt(0)")

    def pread(p):
        base = P0 + (p % 2) * 16
        tiles = [2 * p, 2 * p + 1] if p < 4 else [8]
        for k, t in enumerate(tiles):
            a("ds_read_b128 %s, v%d offset:%d" % (vr(base + 8 * k), V_PAR, t * 64))
            a("ds_read_b128 %s, v%d offset:%d" % (vr(base + 8 * k + 4), V_PAR, 576 + t * 64))
        return len(tiles) * 2

    pread(0)
    a("s_nop 7")
    sidx = 0

    def proc(accA, accB, parA, parB, voff, imm, soff):
        nonlocal sidx
        sd = SD + (sidx % 4) * 4
        sidx += 1
        for acc, par in ((accA, parA), (accB, parB)):
            for h in range(2):
                a("v_pk_fma_f32 v[%d:%d], v[%d:%d], v[%d:%d], v[%d:%d]" % (
                    acc + 2 * h, acc + 2 * h + 1, acc + 2 * h, acc + 2 * h + 1,
                    par + 2 * h, par + 2 * h + 1, par + 4 + 2 * h, par + 4 + 2 * h + 1))
        for k, acc in enumerate((accA, accB)):
            for r in range(4):
                a("v_exp_f32_e64 v%d, -v%d" % (E0 + 4 * k + r, acc + r))
        for k in range(4):
            a("v_pk_fma_f32 v[%d:%d], v[%d:%d], s[%d:%d], s[%d:%d]" % (
                E0 + 2 * k, E0 + 2 * k + 1, E0 + 2 * k, E0 + 2 * k + 1, S_L2E, S_L2E + 1, S_L2E, S_L2E + 1))
        for k in range(8):
            a("v_rcp_f32 v%d, v%d" % (E0 + k, E0 + k))
        for k, acc in enumerate((accA, accB)):
            for h in range(2):
                a("v_pk_mul_f32 v[%d:%d], v[%d:%d], v[%d:%d]" % (
                    E0 + 4 * k + 2 * h, E0 + 4 * k + 2 * h + 1, acc + 2 * h, acc + 2 * h + 1,
                    E0 + 4 * k + 2 * h, E0 + 4 * k + 2 * h + 1))
        a("v_cvt_pk_bf16_f32 v%d, v%d, v%d" % (sd + 0, E0 + 0, E0 + 1))
        a("v_cvt_pk_bf16_f32 v%d, v%d, v%d" % (sd + 2, E0 + 4, E0 + 5))
        a("v_cvt_pk_bf16_f32 v%d, v%d, v%d" % (sd + 1, E0 + 2, E0 + 3))
        a("v_cvt_pk_bf16_f32 v%d, v%d, v%d" % (sd + 3, E0 + 6, E0 + 7))
        a("s_nop 0")
        a("v_permlane16_swap_b32 v%d, v%d" % (sd + 0, sd + 2))
        a("v_permlane16_swap_b32 v%d, v%d" % (sd + 1, sd + 3))
        a("buffer_store_dwordx4 %s, v%d, s[28:31], s%d offen offset:%d" % (vr(sd), voff, soff, imm))

    a("s_add_u32 s60, s%d, %d" % (S_SOFF, 16 * ROWB))
    a("s_add_u32 s61, s%d, %d" % (S_SOFF, 32 * ROWB))
    a("s_add_u32 s62, s%d, %d" % (S_SOFF, 48 * ROWB))
    soffs = [S_SOFF, 60, 61, 62]
    for p in range(5):
        base = P0 + (p % 2) * 16
        if p < 4:
            n = pread(p + 1)
            a("s_waitcnt lgkmcnt(%d)" % n)
            for i in range(4):
                proc(ACC(2 * p, i), ACC(2 * p + 1, i), base, base + 8, V_OUT0, p * 64, soffs[i])
        else:
            a("s_waitcnt lgkmcnt(0)")
            for i in (0, 2):
                proc(ACC(8, i), ACC(8, i + 1), base, base, V_OUT8, 256, soffs[i])
    if opt.stamp:
        a("s_waitcnt vmcnt(0)")
        stamp(4)
        a("s_waitcnt lgkmcnt(0)")
        a("s_mov_b32 s32, s18")
        a("s_and_b32 s33, s19, 0xffff")
        a("s_mov_b32 s34, 0x100000")
        a("s_mov_b32 s35, 0x20000")
        a("s_lshl_b32 s36, s2, 3")
        a("s_add_u32 s36, s36, s%d" % S_WAVE)
        a("s_lshl_b32 s36, s36, 6")
        a("s_getreg_b32 s84, hwreg(HW_REG_HW_ID)")
        a("s_getreg_b32 s85, hwreg(HW_REG_XCC_ID)")
        for k in range(16):
            a("v_mov_b32 v%d, s%d" % (k, 70 + k))
        a("v_mov_b32 v16, 0")
        a("v_cmp_eq_u32 vcc, 0, v%d" % V_LANE)
        a("s_and_saveexec_b64 s[40:41], vcc")
        for k in range(4):
            a("buffer_store_dwordx4 v[%d:%d], v16, s[32:35], s36 offen offset:%d" % (4 * k, 4 * k + 3, 16 * k))
    a("s_endpgm")

    a.label("L_loader")
    a("s_cmp_eq_u32 s%d, 7" % S_WAVE)
    a("s_cbranch_scc1 L_xloader")
    a.c("W loader j = wave-4: k-step phase j, tap [1,0,2][j]")
    for i in range(9):
        G, POS, GR, C = 1, 2, 3, 4
        a("v_add_u32 v%d, %d, v%d" % (G, 64 * i, V_LANE))
        a("v_mul_u32_u24 v%d, 3641, v%d" % (POS, G))
        a("v_lshrrev_b32 v%d, 16, v%d" % (POS, POS))
        a("v_mul_u32_u24 v%d, 18, v%d" % (GR, POS))
        a("v_sub_u32 v%d, v%d, v%d" % (GR, G, GR))
        a("v_and_b32 v%d, 0x13, v%d" % (C, POS))
        a("v_bfe_u32 v5, v%d, 2, 1" % POS)
        a("v_lshl_add_u32 v%d, v5, 3, v%d" % (C, C))
        a("v_bfe_u32 v5, v%d, 3, 1" % POS)
        a("v_lshl_add_u32 v%d, v5, 2, v%d" % (C, C))
        a("v_mul_u32_u24 v%d, %d, v%d" % (C, ROWB, C))
        a("v_lshl_add_u32 v%d, v%d, 4, v%d" % (10 + i, GR, C))
    a("s_sub_u32 s%d, s%d, 4" % (S_T0, S_WAVE))
    a("s_xor_b32 s%d, s%d, 1" % (S_T1, S_T0))
    a("s_cmp_eq_u32 s%d, 2" % S_T0)
    a("s_cselect_b32 s%d, 2, s%d" % (S_T1, S_T1))
    a("s_mul_i32 s%d, s%d, %d" % (S_SOFF, S_T1, TAPB))
    a("s_add_u32 s%d, s%d, s%d" % (S_SOFF, S_SOFF, S_COL))
    a("s_mul_i32 s%d, s%d, %d" % (S_WS, S_T0, WSLOT))
    a("s_add_u32 s%d, s%d, %d" % (S_WS, S_WS, WRING))

    def wissue():
        a("s_mov_b32 m0, s%d" % S_WS)
        a("s_add_u32 s%d, s%d, %d" % (S_WS, S_WS, 3 * WSLOT))
        for i in range(9):
            a("buffer_load_dwordx4 v%d, s[24:27], s%d offen lds" % (10 + i, S_SOFF))
            if i < 8:
                a("s_add_u32 m0, m0, 1024")
                a("s_nop 0")
        a("s_cmp_ge_u32 s%d, %d" % (S_WS, WRING + NW * WSLOT))
        a("s_cselect_b32 s%d, %d, 0" % (S_T2, NW * WSLOT))
        a("s_sub_u32 s%d, s%d, s%d" % (S_WS, S_WS, S_T2))
        a("s_add_u32 s%d, s%d, %d" % (S_SOFF, S_SOFF, 32 * ROWB))

    wissue()
    wissue()
    wissue()
    a("s_lshl_b32 s%d, s%d, 6" % (S_T1, S_T0))
    a("v_add_u32 v20, s%d, v%d" % (S_T1, V_LANE))
    a("v_lshlrev_b32 v21, 1, v20")
    a("v_add_u32 v21, s%d, v21" % S_COL)
    for k in range(4):
        a("s_mov_b32 s%d, s%d" % (32 + 4 * k, 8 + 2 * k))
        a("s_and_b32 s%d, s%d, 0xffff" % (33 + 4 * k, 9 + 2 * k))
        a("s_mov_b32 s%d, 1152" % (34 + 4 * k))
        a("s_mov_b32 s%d, 0x20000" % (35 + 4 * k))
    for k in range(4):
        a("buffer_load_ushort v%d, v21, s[%d:%d], 0 offen" % (24 + k, 32 + 4 * k, 35 + 4 * k))
    a("s_waitcnt vmcnt(22)")
    a("s_barrier")
    a("s_waitcnt vmcnt(13)")
    a("s_barrier")
    a("s_mov_b32 s%d, 15" % S_CNT)
    a.label("L_wloop")
    wissue()
    a("s_waitcnt vmcnt(9)")
    a("s_barrier")
    a("s_sub_u32 s%d, s%d, 1" % (S_CNT, S_CNT))
    a("s_cmp_lg_u32 s%d, 0" % S_CNT)
    a("s_cbranch_scc1 L_wloop")
    a.c("BN parameters: v24=mean v25=var v26=g v27=b (bf16 bits)")
    for k in range(4):
        a("v_lshlrev_b32 v%d, 16, v%d" % (24 + k, 24 + k))
    a("v_add_f32 v25, 0x3727c5ac, v25")
    a("v_cvt_pk_bf16_f32 v25, v25, v25")
    a("v_lshlrev_b32 v25, 16, v25")
    a("v_sqrt_f32 v25, v25")
    a("s_nop 0")
    a("v_cvt_pk_bf16_f32 v25, v25, v25")
    a("v_lshlrev_b32 v25, 16, v25")
    a("v_rcp_f32 v25, v25")
    a("s_nop 0")
    a("v_cvt_pk_bf16_f32 v25, v25, v25")
    a("v_lshlrev_b32 v25, 16, v25")
    a("v_mul_f32 v25, v26, v25")
    a("v_cvt_pk_bf16_f32 v25, v25, v25")
    a("v_lshlrev_b32 v25, 16, v25")
    a("v_fma_f32 v27, -v24, v25, v27")
    a("v_mul_f32 v25, 0x%x, v25" % LOG2E)
    a("v_mul_f32 v27, 0x%x, v27" % LOG2E)
    a("v_lshlrev_b32 v21, 2, v20")
    a("v_add_u32 v21, %d, v21" % PARAM)
    a("v_cmp_gt_u32 vcc, 144, v20")
    a("s_and_saveexec_b64 s[40:41], vcc")
    a("ds_write_b32 v21, v25")
    a("ds_write_b32 v21, v27 offset:576")
    a("s_mov_b64 exec, s[40:41]")
    a("s_waitcnt vmcnt(0) lgkmcnt(0)")
    a("s_barrier")
    a("s_endpgm")

    a.label("L_xloader")
    a("s_add_u32 s%d, s%d, 128" % (S_SOFF, S_ROW))
    a("s_mov_b32 s%d, %d" % (S_WS, XBUF + 32768))

    def xissue():
        a("s_mov_b32 m0, s%d" % S_WS)
        a("s_mov_b32 s%d, s%d" % (S_T2, S_SOFF))
        for n in range(32):
            a("buffer_load_dwordx4 v%d, s[20:23], s%d offen lds" % (V_T0 if n % 2 == 0 else V_T1, S_T2))
            if n < 31:
                a("s_add_u32 m0, m0, 1024")
                a("s_add_u32 s%d, s%d, %d" % (S_T2, S_T2, 8 * ROWB))
        a("s_xor_b32 s%d, s%d, 0x8000" % (S_WS, S_WS))
        a("s_add_u32 s%d, s%d, 128" % (S_SOFF, S_SOFF))

    xissue()
    a("s_barrier")
    a("s_waitcnt vmcnt(0)")
    a("s_barrier")
    a("s_mov_b32 s%d, 7" % S_CNT)
    a.label("L_xloop")
    xissue()
    a("s_barrier")
    a("s_waitcnt vmcnt(0)")
    a("s_barrier")
    a("s_sub_u32 s%d, s%d, 1" % (S_CNT, S_CNT))
    a("s_cmp_lg_u32 s%d, 0" % S_CNT)
    a("s_cbranch_scc1 L_xloop")
    a.label("L_end")
    a("s_endpgm")

    out = HEADER
    out += "; @launch grid=(256,1,1) block=(512,1,1) lds=%d\n" % LDS_BYTES
    out += '.amdgcn_target "amdgcn-amd-amdhsa--gfx950"\n.text\n.globl %s\n.p2align 8\n.type %s,@function\n' % (KNAME, KNAME)
    out += a.text()
    out += """.section .rodata,"a"
.p2align 6
.amdhsa_kernel %s
  .amdhsa_next_free_vgpr 256
  .amdhsa_next_free_sgpr 102
  .amdhsa_accum_offset 256
  .amdhsa_group_segment_fixed_size 0
  .amdhsa_kernarg_size 72
  .amdhsa_user_sgpr_count 2
  .amdhsa_user_sgpr_kernarg_segment_ptr 1
  .amdhsa_system_sgpr_workgroup_id_x 1
  .amdhsa_float_denorm_mode_32 3
.end_amdhsa_kernel
""" % KNAME
    return out


if __name__ == "__main__":
    ap = argparse.ArgumentParser()
    ap.add_argument("-o", default="standalone__batchnorm__sampling.s")
    ap.add_argument("--D", type=int, default=5)
    ap.add_argument("--prio", type=int, default=3)
    ap.add_argument("--stamp", action="store_true")
    opt = ap.parse_args()
    open(opt.o, "w").write(gen(opt))
```

```python
import sys
import argparse

KNAME = "standalone__batchnorm__sampling_kernel"

HEADER = """; Kernarg layout for this problem (72 bytes, ptrs only, base s[0:1]):
"""

XBYTES = 1024 * 16 * 576 * 2
WBYTES = 3 * 576 * 576 * 2
ROWB = 1152
TAPB = 576 * 1152

XBUF = 0
WRING = 65536
WSLOT = 9216
NW = 10
PARAM = WRING + NW * WSLOT
LDS_BYTES = PARAM + 1152

LOG2E = 0x3FB8AA3B


class Asm:
    def __init__(self):
        self.lines = []

    def __call__(self, s):
        self.lines.append("    " + s)

    def label(self, l):
        self.lines.append(l + ":")

    def c(self, s):
        self.lines.append("    ; " + s)

    def text(self):
        return "\n".join(self.lines) + "\n"


class LdsQ:
    def __init__(self):
        self.q = []

    def issue(self, tag):
        self.q.append(tag)
        assert len(self.q) <= 15, self.q

    def wait(self, tag):
        idx = [i for i, t in enumerate(self.q) if t == tag]
        if not idx:
            return None
        last = idx[-1]
        n = len(self.q) - 1 - last
        self.q = self.q[last + 1:]
        return n


def vr(b, n=4):
    return "v[%d:%d]" % (b, b + n - 1)


def gen(opt):
    a = Asm()
    D = opt.D
    R = 6
    assert D <= R - 1
    ACC = lambda t, i: (t * 4 + i) * 4
    XA, XB = 144, 160
    WR = 176
    V_W, V_WL, V_X0, V_X1 = 200, 201, 202, 203
    V_T0, V_T1, V_T2, V_T3 = 204, 205, 206, 207
    V_LANE = 208
    V_OUT0, V_OUT8, V_PAR = 209, 210, 211

    S_WAVE, S_ROW, S_COL = 48, 49, 50
    S_T0, S_T1, S_T2 = 51, 52, 53
    S_WS, S_CNT, S_SOFF = 54, 55, 56
    S_L2E = 58

    def stamp(idx):
        if opt.stamp:
            a("s_memrealtime s[%d:%d]" % (70 + 2 * idx, 71 + 2 * idx))

    def stampc(idx):
        if opt.stamp:
            a("s_memtime s[%d:%d]" % (70 + 2 * idx, 71 + 2 * idx))

    a.label(KNAME)
    stamp(0)
    a("s_cmp_ge_u32 s2, 256")
    a("s_cbranch_scc1 L_end")
    a("s_load_dwordx8 s[4:11], s[0:1], 0")
    a("s_load_dwordx4 s[12:15], s[0:1], 32")
    a("s_load_dwordx2 s[16:17], s[0:1], 48")
    if opt.stamp:
        a("s_load_dwordx2 s[18:19], s[0:1], 64")
    a("v_lshrrev_b32 v1, 6, v0")
    a("v_and_b32 v%d, 63, v0" % V_LANE)
    a("v_readfirstlane_b32 s%d, v1" % S_WAVE)
    a("s_and_b32 s%d, s2, 7" % S_ROW)
    a("s_lshr_b32 s%d, s2, 3" % S_COL)
    a("s_lshl_b32 s%d, s%d, 3" % (S_ROW, S_ROW))
    a("s_lshr_b32 s%d, s%d, 2" % (S_T0, S_COL))
    a("s_add_u32 s%d, s%d, s%d" % (S_ROW, S_ROW, S_T0))
    a("s_and_b32 s%d, s%d, 3" % (S_COL, S_COL))
    a("s_mul_i32 s%d, s%d, %d" % (S_ROW, S_ROW, 256 * ROWB))
    a("s_mul_i32 s%d, s%d, 288" % (S_COL, S_COL))
    a("v_lshrrev_b32 v%d, 3, v%d" % (V_T0, V_LANE))
    a("v_mul_u32_u24 v%d, %d, v%d" % (V_T0, ROWB, V_T0))
    a("v_and_b32 v%d, 7, v%d" % (V_T1, V_LANE))
    a("v_lshrrev_b32 v%d, 4, v%d" % (V_T2, V_LANE))
    a("v_xor_b32 v%d, v%d, v%d" % (V_T1, V_T1, V_T2))
    a("v_lshl_add_u32 v%d, v%d, 4, v%d" % (V_T0, V_T1, V_T0))
    a("v_xor_b32 v%d, 64, v%d" % (V_T1, V_T0))
    a("s_waitcnt lgkmcnt(0)")
    a("s_mov_b32 s20, s4")
    a("s_and_b32 s21, s5, 0xffff")
    a("s_mov_b32 s22, %d" % XBYTES)
    a("s_mov_b32 s23, 0x20000")
    a("s_mov_b32 s24, s6")
    a("s_and_b32 s25, s7, 0xffff")
    a("s_mov_b32 s26, %d" % WBYTES)
    a("s_mov_b32 s27, 0x20000")
    a("s_cmp_ge_u32 s%d, 4" % S_WAVE)
    a("s_cbranch_scc1 L_loader")

    a.c("compute wave: DMA own X rows, chunk 0")
    a("s_mul_i32 s%d, s%d, %d" % (S_T0, S_WAVE, 64 * ROWB))
    a("s_add_u32 s%d, s%d, s%d" % (S_SOFF, S_ROW, S_T0))
    a("s_lshl_b32 s%d, s%d, 13" % (S_T1, S_WAVE))
    a("s_add_u32 m0, s%d, %d" % (S_T1, XBUF))
    a("s_mov_b32 s%d, s%d" % (S_T2, S_SOFF))
    for n in range(8):
        a("buffer_load_dwordx4 v%d, s[20:23], s%d offen lds" % (V_T0 if n % 2 == 0 else V_T1, S_T2))
        if n < 7:
            a("s_add_u32 m0, m0, 1024")
            a("s_add_u32 s%d, s%d, %d" % (S_T2, S_T2, 8 * ROWB))
    a("s_setprio %d" % opt.prio)
    a("s_mov_b32 s28, s16")
    a("s_and_b32 s29, s17, 0xffff")
    a("s_mov_b32 s30, %d" % XBYTES)
    a("s_mov_b32 s31, 0x20000")
    a("s_mov_b32 s%d, 0x%x" % (S_L2E, LOG2E))
    a("s_mov_b32 s%d, 0x%x" % (S_L2E + 1, LOG2E))
    a("v_and_b32 v%d, 15, v%d" % (V_T2, V_LANE))
    a("v_lshrrev_b32 v%d, 4, v%d" % (V_T3, V_LANE))
    a("v_lshrrev_b32 v%d, 1, v%d" % (V_X0, V_T2))
    a("v_xor_b32 v%d, v%d, v%d" % (V_X0, V_X0, V_T3))
    a("v_lshlrev_b32 v%d, 4, v%d" % (V_X0, V_X0))
    a("v_lshl_add_u32 v%d, v%d, 7, v%d" % (V_X0, V_T2, V_X0))
    a("v_add_u32 v%d, s%d, v%d" % (V_X0, S_T1, V_X0))
    if XBUF:
        a("v_add_u32 v%d, %d, v%d" % (V_X0, XBUF, V_X0))
    a("v_xor_b32 v%d, 64, v%d" % (V_X1, V_X0))
    a("v_mul_u32_u24 v%d, %d, v%d" % (V_OUT0, ROWB, V_T2))
    a("v_lshrrev_b32 v%d, 1, v%d" % (V_PAR, V_T3))
    a("v_lshl_add_u32 v%d, v%d, 4, v%d" % (V_OUT0, V_PAR, V_OUT0))
    a("v_and_b32 v%d, 1, v%d" % (V_PAR, V_T3))
    a("v_mul_u32_u24 v%d, %d, v%d" % (V_OUT8, 16 * ROWB, V_PAR))
    a("v_add_u32 v%d, v%d, v%d" % (V_OUT8, V_OUT8, V_OUT0))
    a("v_lshl_add_u32 v%d, v%d, 5, v%d" % (V_OUT0, V_PAR, V_OUT0))
    a("v_lshlrev_b32 v%d, 4, v%d" % (V_PAR, V_T3))
    a("v_add_u32 v%d, %d, v%d" % (V_PAR, PARAM, V_PAR))
    a("v_lshrrev_b32 v%d, 5, v%d" % (V_WL, V_LANE))
    a("v_lshlrev_b32 v%d, 4, v%d" % (V_WL, V_WL))
    a("v_bfe_u32 v%d, v%d, 4, 1" % (V_T2, V_LANE))
    a("v_lshl_add_u32 v%d, v%d, 2, v%d" % (V_WL, V_T2, V_WL))
    a("v_bfe_u32 v%d, v%d, 2, 2" % (V_T2, V_LANE))
    a("v_add_u32 v%d, v%d, v%d" % (V_WL, V_WL, V_T2))
    a("v_mul_u32_u24 v%d, 288, v%d" % (V_WL, V_WL))
    a("v_and_b32 v%d, 3, v%d" % (V_T2, V_LANE))
    a("v_lshl_add_u32 v%d, v%d, 3, v%d" % (V_WL, V_T2, V_WL))
    a("s_mov_b32 s%d, %d" % (S_WS, WRING))
    a("v_add_u32 v%d, s%d, v%d" % (V_W, S_WS, V_WL))
    for r in range(0, 144, 2):
        a("v_mov_b64 v[%d:%d], 0" % (r, r + 1))
    a("s_mov_b32 s%d, 9" % S_CNT)
    a("s_waitcnt vmcnt(0)")
    stamp(1)
    a("s_barrier")
    stamp(2)
    stampc(5)

    q = LdsQ()

    def wread(out, f):
        t = f % 9
        base = WR + (f % R) * 4
        res = []
        for h in range(2):
            res.append(("ds_read_b64_tr_b16 v[%d:%d], v%d offset:%d" % (base + 2 * h, base + 2 * h + 1, V_W, h * 2304 + t * 32), ("W", f)))
        return res

    def xread(dst, vaddr, tag):
        return [("ds_read_b128 %s, v%d offset:%d" % (vr(dst + 4 * i), vaddr, i * 2048), tag) for i in range(4)]

    if opt.stamp:
        a("s_waitcnt lgkmcnt(0)")
    for ins, tag in xread(XA, V_X0, ("X", 0)):
        a(ins)
        q.issue(tag)
    a("v_xor_b32 v%d, 0x8000, v%d" % (V_X0, V_X0))
    for f in range(D):
        for ins, tag in wread(a, f):
            a(ins)
            q.issue(tag)

    def body(it):
        out = []

        def emit(s):
            out.append("    " + s)

        def emit_lds(ins, tag):
            emit(ins)
            q.issue(tag)

        def wait(tag):
            n = q.wait(tag)
            if n is not None:
                emit("s_waitcnt lgkmcnt(%d)" % n)

        for ks in range(6):
            ph = ks % 3
            U, O = (XA, XB) if ks < 3 else (XB, XA)
            xs = [U, O, U][ph]
            chunk = it * 2 + ks // 3
            for t in range(9):
                f = (it * 6 + ks) * 9 + t
                fill = []
                if ph == 0 and t < 8:
                    for k in (2 * t, 2 * t + 1):
                        fill.append(("v", "v_mov_b32_dpp v%d, v%d row_shr:1 row_mask:0xf bank_mask:0xf bound_ctrl:0" % (O + k, U + k)))
                if ph == 1 and t < 8:
                    for k in (2 * t, 2 * t + 1):
                        fill.append(("v", "v_mov_b32_dpp v%d, v%d row_shl:1 row_mask:0xf bank_mask:0xf bound_ctrl:0" % (U + k, U + k)))
                pre = []
                if ph == 2 and t < 2:
                    va = V_X1 if ks == 2 else V_X0
                    xr = xread(O, va, ("X", chunk + 1))
                    for ins, tag in xr[2 * t:2 * t + 2]:
                        pre.append(("l", ins, tag))
                if ph == 2 and t == 2:
                    va = V_X1 if ks == 2 else V_X0
                    fill.append(("v", "v_xor_b32 v%d, 0x8000, v%d" % (va, va)))
                nf = f + D
                rd = [("l", ins, tag) for ins, tag in wread(a, nf)]
                if opt.nowread:
                    rd = []
                if opt.nodpp:
                    fill = [x for x in fill if "dpp" not in x[1]]
                cross = (nf % 9 == 0)
                if (nf + 1) % 9 == 0:
                    fill.append(("s", "s_add_u32 s%d, s%d, %d" % (S_WS, S_WS, WSLOT)))
                    fill.append(("s", "s_cmp_eq_u32 s%d, %d" % (S_WS, WRING + NW * WSLOT)))
                    fill.append(("s", "s_cselect_b32 s%d, %d, s%d" % (S_WS, WRING, S_WS)))
                wait(("W", f))
                if t == 0:
                    wait(("X", chunk))
                seq = []
                if cross:
                    seq.append(("v", "v_add_u32 v%d, s%d, v%d" % (V_W, S_WS, V_WL)))
                    if ph == 2:
                        seq.append(("bar", chunk + 1))
                seq += pre + rd + fill
                if ks == 5 and t == 8:
                    seq.append(("s", "s_sub_u32 s%d, s%d, 1" % (S_CNT, S_CNT)))
                    seq.append(("s", "s_cmp_lg_u32 s%d, 0" % S_CNT))
                gaps = [[], [], [], []]
                n = len(seq)
                per = [(n + 3 - g) // 4 for g in range(4)]
                k = 0
                for g in range(4):
                    gaps[g] = seq[k:k + per[g]]
                    k += per[g]
                for i in range(4):
                    wf = WR + (f % R) * 4
                    emit("v_mfma_f32_16x16x32_bf16 %s, %s, %s, %s" % (vr(ACC(t, i)), vr(wf), vr(xs + 4 * i), vr(ACC(t, i))))
                    for it_ in gaps[i]:
                        if it_[0] == "l":
                            emit_lds(it_[1], it_[2])
                        elif it_[0] == "bar":
                            wait(("X", it_[1]))
                            emit("s_barrier")
                        else:
                            emit(it_[1])
        return out

    b0 = body(0)
    b1 = body(1)
    b2 = body(2)
    assert b1 == b2
    if b0 != b1:
        print("; NOTE prologue/steady differ", file=sys.stderr)
    a(".p2align 6")
    a.label("L_loop")
    a.lines += b1
    a("s_cbranch_scc1 L_loop")
    stampc(6)
    stamp(3)

    a.c("epilogue")
    P0 = 144
    E0 = 176
    SD = 184
    a("s_add_u32 s%d, s%d, s%d" % (S_SOFF, S_SOFF, S_COL))
    a("s_waitcnt lgkmcnt(0)")

    def pread(p):
        base = P0 + (p % 2) * 16
        tiles = [2 * p, 2 * p + 1] if p < 4 else [8]
        for k, t in enumerate(tiles):
            a("ds_read_b128 %s, v%d offset:%d" % (vr(base + 8 * k), V_PAR, t * 64))
            a("ds_read_b128 %s, v%d offset:%d" % (vr(base + 8 * k + 4), V_PAR, 576 + t * 64))
        return len(tiles) * 2

    pread(0)
    a("s_nop 7")
    sidx = 0

    def proc(accA, accB, parA, parB, voff, imm, soff):
        nonlocal sidx
        sd = SD + (sidx % 4) * 4
        sidx += 1
        for acc, par in ((accA, parA), (accB, parB)):
            for h in range(2):
                a("v_pk_fma_f32 v[%d:%d], v[%d:%d], v[%d:%d], v[%d:%d]" % (
                    acc + 2 * h, acc + 2 * h + 1, acc + 2 * h, acc + 2 * h + 1,
                    par + 2 * h, par + 2 * h + 1, par + 4 + 2 * h, par + 4 + 2 * h + 1))
        for k, acc in enumerate((accA, accB)):
            for r in range(4):
                a("v_exp_f32_e64 v%d, -v%d" % (E0 + 4 * k + r, acc + r))
        for k in range(4):
            a("v_pk_fma_f32 v[%d:%d], v[%d:%d], s[%d:%d], s[%d:%d]" % (
                E0 + 2 * k, E0 + 2 * k + 1, E0 + 2 * k, E0 + 2 * k + 1, S_L2E, S_L2E + 1, S_L2E, S_L2E + 1))
        for k in range(8):
            a("v_rcp_f32 v%d, v%d" % (E0 + k, E0 + k))
        for k, acc in enumerate((accA, accB)):
            for h in range(2):
                a("v_pk_mul_f32 v[%d:%d], v[%d:%d], v[%d:%d]" % (
                    E0 + 4 * k + 2 * h, E0 + 4 * k + 2 * h + 1, acc + 2 * h, acc + 2 * h + 1,
                    E0 + 4 * k + 2 * h, E0 + 4 * k + 2 * h + 1))
        a("v_cvt_pk_bf16_f32 v%d, v%d, v%d" % (sd + 0, E0 + 0, E0 + 1))
        a("v_cvt_pk_bf16_f32 v%d, v%d, v%d" % (sd + 2, E0 + 4, E0 + 5))
        a("v_cvt_pk_bf16_f32 v%d, v%d, v%d" % (sd + 1, E0 + 2, E0 + 3))
        a("v_cvt_pk_bf16_f32 v%d, v%d, v%d" % (sd + 3, E0 + 6, E0 + 7))
        a("s_nop 0")
        a("v_permlane16_swap_b32 v%d, v%d" % (sd + 0, sd + 2))
        a("v_permlane16_swap_b32 v%d, v%d" % (sd + 1, sd + 3))
        a("buffer_store_dwordx4 %s, v%d, s[28:31], s%d offen offset:%d %s" % (vr(sd), voff, soff, imm, opt.stflag))

    a("s_add_u32 s60, s%d, %d" % (S_SOFF, 16 * ROWB))
    a("s_add_u32 s61, s%d, %d" % (S_SOFF, 32 * ROWB))
    a("s_add_u32 s62, s%d, %d" % (S_SOFF, 48 * ROWB))
    soffs = [S_SOFF, 60, 61, 62]
    for p in range(5):
        base = P0 + (p % 2) * 16
        if p < 4:
            n = pread(p + 1)
            a("s_waitcnt lgkmcnt(%d)" % n)
            for i in range(4):
                proc(ACC(2 * p, i), ACC(2 * p + 1, i), base, base + 8, V_OUT0, p * 64, soffs[i])
        else:
            a("s_waitcnt lgkmcnt(0)")
            for i in (0, 2):
                proc(ACC(8, i), ACC(8, i + 1), base, base, V_OUT8, 256, soffs[i])
    if opt.stamp:
        a("s_waitcnt vmcnt(0)")
        stamp(4)
        a("s_waitcnt lgkmcnt(0)")
        a("s_mov_b32 s32, s18")
        a("s_and_b32 s33, s19, 0xffff")
        a("s_mov_b32 s34, 0x100000")
        a("s_mov_b32 s35, 0x20000")
        a("s_lshl_b32 s36, s2, 3")
        a("s_add_u32 s36, s36, s%d" % S_WAVE)
        a("s_lshl_b32 s36, s36, 6")
        a("s_getreg_b32 s84, hwreg(HW_REG_HW_ID)")
        a("s_getreg_b32 s85, hwreg(HW_REG_XCC_ID)")
        for k in range(16):
            a("v_mov_b32 v%d, s%d" % (k, 70 + k))
        a("v_mov_b32 v16, 0")
        a("v_cmp_eq_u32 vcc, 0, v%d" % V_LANE)
        a("s_and_saveexec_b64 s[40:41], vcc")
        for k in range(4):
            a("buffer_store_dwordx4 v[%d:%d], v16, s[32:35], s36 offen offset:%d" % (4 * k, 4 * k + 3, 16 * k))
    a("s_endpgm")

    a.label("L_loader")
    a("s_cmp_eq_u32 s%d, 7" % S_WAVE)
    a("s_cbranch_scc1 L_xloader")
    a.c("W loader j = wave-4: k-step phase j, tap [1,0,2][j]")
    for i in range(9):
        G, POS, GR, C = 1, 2, 3, 4
        a("v_add_u32 v%d, %d, v%d" % (G, 64 * i, V_LANE))
        a("v_mul_u32_u24 v%d, 3641, v%d" % (POS, G))
        a("v_lshrrev_b32 v%d, 16, v%d" % (POS, POS))
        a("v_mul_u32_u24 v%d, 18, v%d" % (GR, POS))
        a("v_sub_u32 v%d, v%d, v%d" % (GR, G, GR))
        a("v_and_b32 v%d, 0x13, v%d" % (C, POS))
        a("v_bfe_u32 v5, v%d, 2, 1" % POS)
        a("v_lshl_add_u32 v%d, v5, 3, v%d" % (C, C))
        a("v_bfe_u32 v5, v%d, 3, 1" % POS)
        a("v_lshl_add_u32 v%d, v5, 2, v%d" % (C, C))
        a("v_mul_u32_u24 v%d, %d, v%d" % (C, ROWB, C))
        a("v_lshl_add_u32 v%d, v%d, 4, v%d" % (10 + i, GR, C))
    a("s_sub_u32 s%d, s%d, 4" % (S_T0, S_WAVE))
    a("s_xor_b32 s%d, s%d, 1" % (S_T1, S_T0))
    a("s_cmp_eq_u32 s%d, 2" % S_T0)
    a("s_cselect_b32 s%d, 2, s%d" % (S_T1, S_T1))
    a("s_mul_i32 s%d, s%d, %d" % (S_SOFF, S_T1, TAPB))
    a("s_add_u32 s%d, s%d, s%d" % (S_SOFF, S_SOFF, S_COL))
    a("s_mul_i32 s%d, s%d, %d" % (S_WS, S_T0, WSLOT))
    a("s_add_u32 s%d, s%d, %d" % (S_WS, S_WS, WRING))

    def wissue(inloop=False):
        a("s_mov_b32 m0, s%d" % S_WS)
        a("s_add_u32 s%d, s%d, %d" % (S_WS, S_WS, 3 * WSLOT))
        for i in range(9):
            if not (opt.nodma and inloop):
                a("buffer_load_dwordx4 v%d, s[24:27], s%d offen lds" % (10 + i, S_SOFF))
            if i < 8:
                a("s_add_u32 m0, m0, 1024")
                a("s_nop 0")
        a("s_cmp_ge_u32 s%d, %d" % (S_WS, WRING + NW * WSLOT))
        a("s_cselect_b32 s%d, %d, 0" % (S_T2, NW * WSLOT))
        a("s_sub_u32 s%d, s%d, s%d" % (S_WS, S_WS, S_T2))
        a("s_add_u32 s%d, s%d, %d" % (S_SOFF, S_SOFF, 32 * ROWB))

    wissue()
    wissue()
    wissue()
    a("s_lshl_b32 s%d, s%d, 6" % (S_T1, S_T0))
    a("v_add_u32 v20, s%d, v%d" % (S_T1, V_LANE))
    a("v_lshlrev_b32 v21, 1, v20")
    a("v_add_u32 v21, s%d, v21" % S_COL)
    for k in range(4):
        a("s_mov_b32 s%d, s%d" % (32 + 4 * k, 8 + 2 * k))
        a("s_and_b32 s%d, s%d, 0xffff" % (33 + 4 * k, 9 + 2 * k))
        a("s_mov_b32 s%d, 1152" % (34 + 4 * k))
        a("s_mov_b32 s%d, 0x20000" % (35 + 4 * k))
    for k in range(4):
        a("buffer_load_ushort v%d, v21, s[%d:%d], 0 offen" % (24 + k, 32 + 4 * k, 35 + 4 * k))
    def lstamp():
        if opt.stamp:
            a("s_memtime s[70:71]")
            a("s_memrealtime s[72:73]")
            a("s_waitcnt lgkmcnt(0)")
            a("s_mov_b32 m0, s69")
            a("s_nop 0")
            a("v_writelane_b32 v40, s70, m0")
            a("v_writelane_b32 v41, s72, m0")
            a("s_add_u32 s69, s69, 1")
    if opt.stamp:
        a("s_mov_b32 s69, 0")
        a("v_mov_b32 v40, 0")
        a("v_mov_b32 v41, s70")
        a("s_mov_b32 s69, 1")
    lstamp()
    a("s_waitcnt vmcnt(22)")
    lstamp()
    a("s_barrier")
    lstamp()
    a("s_waitcnt vmcnt(13)")
    a("s_barrier")
    lstamp()
    a("s_mov_b32 s%d, 15" % S_CNT)
    a.label("L_wloop")
    wissue(True)
    a("s_waitcnt vmcnt(9)")
    a("s_barrier")
    lstamp()
    a("s_sub_u32 s%d, s%d, 1" % (S_CNT, S_CNT))
    a("s_cmp_lg_u32 s%d, 0" % S_CNT)
    a("s_cbranch_scc1 L_wloop")
    a.c("BN parameters: v24=mean v25=var v26=g v27=b (bf16 bits)")
    for k in range(4):
        a("v_lshlrev_b32 v%d, 16, v%d" % (24 + k, 24 + k))
    a("v_add_f32 v25, 0x3727c5ac, v25")
    a("v_cvt_pk_bf16_f32 v25, v25, v25")
    a("v_lshlrev_b32 v25, 16, v25")
    a("v_sqrt_f32 v25, v25")
    a("s_nop 0")
    a("v_cvt_pk_bf16_f32 v25, v25, v25")
    a("v_lshlrev_b32 v25, 16, v25")
    a("v_rcp_f32 v25, v25")
    a("s_nop 0")
    a("v_cvt_pk_bf16_f32 v25, v25, v25")
    a("v_lshlrev_b32 v25, 16, v25")
    a("v_mul_f32 v25, v26, v25")
    a("v_cvt_pk_bf16_f32 v25, v25, v25")
    a("v_lshlrev_b32 v25, 16, v25")
    a("v_fma_f32 v27, -v24, v25, v27")
    a("v_mul_f32 v25, 0x%x, v25" % LOG2E)
    a("v_mul_f32 v27, 0x%x, v27" % LOG2E)
    a("v_lshlrev_b32 v21, 2, v20")
    a("v_add_u32 v21, %d, v21" % PARAM)
    a("v_cmp_gt_u32 vcc, 144, v20")
    a("s_and_saveexec_b64 s[40:41], vcc")
    a("ds_write_b32 v21, v25")
    a("ds_write_b32 v21, v27 offset:576")
    a("s_mov_b64 exec, s[40:41]")
    a("s_waitcnt vmcnt(0) lgkmcnt(0)")
    a("s_barrier")
    lstamp()
    if opt.stamp:
        a("s_mov_b32 s32, s18")
        a("s_and_b32 s33, s19, 0xffff")
        a("s_mov_b32 s34, 0x1000000")
        a("s_mov_b32 s35, 0x20000")
        a("s_lshl_b32 s36, s2, 3")
        a("s_add_u32 s36, s36, s%d" % S_WAVE)
        a("s_lshl_b32 s36, s36, 9")
        a("s_add_u32 s36, s36, 0x100000")
        a("v_lshlrev_b32 v42, 3, v%d" % V_LANE)
        a("buffer_store_dwordx2 v[40:41], v42, s[32:35], s36 offen")
    a("s_endpgm")

    a.label("L_xloader")
    a("s_add_u32 s%d, s%d, 128" % (S_SOFF, S_ROW))
    a("s_mov_b32 s%d, %d" % (S_WS, XBUF + 32768))

    def xissue(inloop=False):
        a("s_mov_b32 m0, s%d" % S_WS)
        a("s_mov_b32 s%d, s%d" % (S_T2, S_SOFF))
        for n in range(32):
            if not (opt.nodma and inloop):
                a("buffer_load_dwordx4 v%d, s[20:23], s%d offen lds" % (V_T0 if n % 2 == 0 else V_T1, S_T2))
            if n < 31:
                a("s_add_u32 m0, m0, 1024")
                a("s_add_u32 s%d, s%d, %d" % (S_T2, S_T2, 8 * ROWB))
        a("s_xor_b32 s%d, s%d, 0x8000" % (S_WS, S_WS))
        a("s_add_u32 s%d, s%d, 128" % (S_SOFF, S_SOFF))

    xissue()
    a("s_barrier")
    a("s_waitcnt vmcnt(0)")
    a("s_barrier")
    a("s_mov_b32 s%d, 7" % S_CNT)
    a.label("L_xloop")
    xissue(True)
    a("s_barrier")
    a("s_waitcnt vmcnt(0)")
    a("s_barrier")
    a("s_sub_u32 s%d, s%d, 1" % (S_CNT, S_CNT))
    a("s_cmp_lg_u32 s%d, 0" % S_CNT)
    a("s_cbranch_scc1 L_xloop")
    a.label("L_end")
    a("s_endpgm")

    out = HEADER
    out += "; @launch grid=(256,1,1) block=(512,1,1) lds=%d\n" % LDS_BYTES
    out += '.amdgcn_target "amdgcn-amd-amdhsa--gfx950"\n.text\n.globl %s\n.p2align 8\n.type %s,@function\n' % (KNAME, KNAME)
    out += a.text()
    out += """.section .rodata,"a"
.p2align 6
.amdhsa_kernel %s
  .amdhsa_next_free_vgpr 256
  .amdhsa_next_free_sgpr 102
  .amdhsa_accum_offset 256
  .amdhsa_group_segment_fixed_size 0
  .amdhsa_kernarg_size 72
  .amdhsa_user_sgpr_count 2
  .amdhsa_user_sgpr_kernarg_segment_ptr 1
  .amdhsa_system_sgpr_workgroup_id_x 1
  .amdhsa_float_denorm_mode_32 3
.end_amdhsa_kernel
""" % KNAME
    return out


if __name__ == "__main__":
    ap = argparse.ArgumentParser()
    ap.add_argument("-o", default="standalone__batchnorm__sampling.s")
    ap.add_argument("--D", type=int, default=5)
    ap.add_argument("--prio", type=int, default=3)
    ap.add_argument("--stamp", action="store_true")
    ap.add_argument("--stflag", default="")
    ap.add_argument("--nowread", action="store_true")
    ap.add_argument("--nodpp", action="store_true")
    ap.add_argument("--nodma", action="store_true")
    opt = ap.parse_args()
    open(opt.o, "w").write(gen(opt))
```

```python
import sys
import argparse

KNAME = "standalone__batchnorm__sampling_kernel"

HEADER = """; Kernarg layout for this problem (72 bytes, ptrs only, base s[0:1]):
"""

XBYTES = 1024 * 16 * 576 * 2
WBYTES = 3 * 576 * 576 * 2
ROWB = 1152
TAPB = 576 * 1152

XBUF = 0
WRING = 65536
WSLOT = 9216
NW = 10
PARAM = WRING + NW * WSLOT
LDS_BYTES = PARAM + 1152

LOG2E = 0x3FB8AA3B


class Asm:
    def __init__(self):
        self.lines = []

    def __call__(self, s):
        self.lines.append("    " + s)

    def label(self, l):
        self.lines.append(l + ":")

    def c(self, s):
        self.lines.append("    ; " + s)

    def text(self):
        return "\n".join(self.lines) + "\n"


class LdsQ:
    def __init__(self):
        self.q = []

    def issue(self, tag):
        self.q.append(tag)
        assert len(self.q) <= 15, self.q

    def wait(self, tag):
        idx = [i for i, t in enumerate(self.q) if t == tag]
        if not idx:
            return None
        last = idx[-1]
        n = len(self.q) - 1 - last
        self.q = self.q[last + 1:]
        return n


def vr(b, n=4):
    return "v[%d:%d]" % (b, b + n - 1)


def gen(opt):
    a = Asm()
    D = opt.D
    R = 6
    assert D <= R - 1
    ACC = lambda t, i: (t * 4 + i) * 4
    XA, XB = 144, 160
    WR = 176
    V_W, V_WL, V_X0, V_X1 = 200, 201, 202, 203
    V_T0, V_T1, V_T2, V_T3 = 204, 205, 206, 207
    V_LANE = 208
    V_OUT0, V_OUT8, V_PAR = 209, 210, 211

    S_WAVE, S_ROW, S_COL = 48, 49, 50
    S_T0, S_T1, S_T2 = 51, 52, 53
    S_WS, S_CNT, S_SOFF = 54, 55, 56
    S_L2E = 58

    def stamp(idx):
        if opt.stamp:
            a("s_memrealtime s[%d:%d]" % (70 + 2 * idx, 71 + 2 * idx))

    def stampc(idx):
        if opt.stamp:
            a("s_memtime s[%d:%d]" % (70 + 2 * idx, 71 + 2 * idx))

    a.label(KNAME)
    stamp(0)
    a("s_cmp_ge_u32 s2, 256")
    a("s_cbranch_scc1 L_end")
    a("s_load_dwordx8 s[4:11], s[0:1], 0")
    a("s_load_dwordx4 s[12:15], s[0:1], 32")
    a("s_load_dwordx2 s[16:17], s[0:1], 48")
    if opt.stamp:
        a("s_load_dwordx2 s[18:19], s[0:1], 64")
    a("v_lshrrev_b32 v1, 6, v0")
    a("v_and_b32 v%d, 63, v0" % V_LANE)
    a("v_readfirstlane_b32 s%d, v1" % S_WAVE)
    a("s_and_b32 s%d, s2, 7" % S_ROW)
    a("s_lshr_b32 s%d, s2, 3" % S_COL)
    a("s_lshl_b32 s%d, s%d, 3" % (S_ROW, S_ROW))
    a("s_lshr_b32 s%d, s%d, 2" % (S_T0, S_COL))
    a("s_add_u32 s%d, s%d, s%d" % (S_ROW, S_ROW, S_T0))
    a("s_and_b32 s%d, s%d, 3" % (S_COL, S_COL))
    a("s_mul_i32 s%d, s%d, %d" % (S_ROW, S_ROW, 256 * ROWB))
    a("s_mul_i32 s%d, s%d, 288" % (S_COL, S_COL))
    a("v_lshrrev_b32 v%d, 3, v%d" % (V_T0, V_LANE))
    a("v_mul_u32_u24 v%d, %d, v%d" % (V_T0, ROWB, V_T0))
    a("v_and_b32 v%d, 7, v%d" % (V_T1, V_LANE))
    a("v_lshrrev_b32 v%d, 4, v%d" % (V_T2, V_LANE))
    a("v_xor_b32 v%d, v%d, v%d" % (V_T1, V_T1, V_T2))
    a("v_lshl_add_u32 v%d, v%d, 4, v%d" % (V_T0, V_T1, V_T0))
    a("v_xor_b32 v%d, 64, v%d" % (V_T1, V_T0))
    a("s_waitcnt lgkmcnt(0)")
    a("s_mov_b32 s20, s4")
    a("s_and_b32 s21, s5, 0xffff")
    a("s_mov_b32 s22, %d" % XBYTES)
    a("s_mov_b32 s23, 0x20000")
    a("s_mov_b32 s24, s6")
    a("s_and_b32 s25, s7, 0xffff")
    a("s_mov_b32 s26, %d" % WBYTES)
    a("s_mov_b32 s27, 0x20000")
    a("s_cmp_ge_u32 s%d, 4" % S_WAVE)
    a("s_cbranch_scc1 L_loader")

    a.c("compute wave: DMA own X rows, chunk 0")
    a("s_mul_i32 s%d, s%d, %d" % (S_T0, S_WAVE, 64 * ROWB))
    a("s_add_u32 s%d, s%d, s%d" % (S_SOFF, S_ROW, S_T0))
    a("s_lshl_b32 s%d, s%d, 13" % (S_T1, S_WAVE))
    a("s_add_u32 m0, s%d, %d" % (S_T1, XBUF))
    a("s_mov_b32 s%d, s%d" % (S_T2, S_SOFF))
    for n in range(8):
        a("buffer_load_dwordx4 v%d, s[20:23], s%d offen lds" % (V_T0 if n % 2 == 0 else V_T1, S_T2))
        if n < 7:
            a("s_add_u32 m0, m0, 1024")
            a("s_add_u32 s%d, s%d, %d" % (S_T2, S_T2, 8 * ROWB))
    a("s_setprio %d" % opt.prio)
    a("s_mov_b32 s28, s16")
    a("s_and_b32 s29, s17, 0xffff")
    a("s_mov_b32 s30, %d" % XBYTES)
    a("s_mov_b32 s31, 0x20000")
    a("s_mov_b32 s%d, 0x%x" % (S_L2E, LOG2E))
    a("s_mov_b32 s%d, 0x%x" % (S_L2E + 1, LOG2E))
    a("v_and_b32 v%d, 15, v%d" % (V_T2, V_LANE))
    a("v_lshrrev_b32 v%d, 4, v%d" % (V_T3, V_LANE))
    a("v_lshrrev_b32 v%d, 1, v%d" % (V_X0, V_T2))
    a("v_xor_b32 v%d, v%d, v%d" % (V_X0, V_X0, V_T3))
    a("v_lshlrev_b32 v%d, 4, v%d" % (V_X0, V_X0))
    a("v_lshl_add_u32 v%d, v%d, 7, v%d" % (V_X0, V_T2, V_X0))
    a("v_add_u32 v%d, s%d, v%d" % (V_X0, S_T1, V_X0))
    if XBUF:
        a("v_add_u32 v%d, %d, v%d" % (V_X0, XBUF, V_X0))
    a("v_xor_b32 v%d, 64, v%d" % (V_X1, V_X0))
    a("v_mul_u32_u24 v%d, %d, v%d" % (V_OUT0, ROWB, V_T2))
    a("v_lshrrev_b32 v%d, 1, v%d" % (V_PAR, V_T3))
    a("v_lshl_add_u32 v%d, v%d, 4, v%d" % (V_OUT0, V_PAR, V_OUT0))
    a("v_and_b32 v%d, 1, v%d" % (V_PAR, V_T3))
    a("v_mul_u32_u24 v%d, %d, v%d" % (V_OUT8, 16 * ROWB, V_PAR))
    a("v_add_u32 v%d, v%d, v%d" % (V_OUT8, V_OUT8, V_OUT0))
    a("v_lshl_add_u32 v%d, v%d, 5, v%d" % (V_OUT0, V_PAR, V_OUT0))
    a("v_lshlrev_b32 v%d, 4, v%d" % (V_PAR, V_T3))
    a("v_add_u32 v%d, %d, v%d" % (V_PAR, PARAM, V_PAR))
    a("v_lshrrev_b32 v%d, 5, v%d" % (V_WL, V_LANE))
    a("v_lshlrev_b32 v%d, 4, v%d" % (V_WL, V_WL))
    a("v_bfe_u32 v%d, v%d, 4, 1" % (V_T2, V_LANE))
    a("v_lshl_add_u32 v%d, v%d, 2, v%d" % (V_WL, V_T2, V_WL))
    a("v_bfe_u32 v%d, v%d, 2, 2" % (V_T2, V_LANE))
    a("v_add_u32 v%d, v%d, v%d" % (V_WL, V_WL, V_T2))
    a("v_mul_u32_u24 v%d, 288, v%d" % (V_WL, V_WL))
    a("v_and_b32 v%d, 3, v%d" % (V_T2, V_LANE))
    a("v_lshl_add_u32 v%d, v%d, 3, v%d" % (V_WL, V_T2, V_WL))
    a("s_mov_b32 s%d, %d" % (S_WS, WRING))
    a("v_add_u32 v%d, s%d, v%d" % (V_W, S_WS, V_WL))
    for r in range(0, 144, 2):
        a("v_mov_b64 v[%d:%d], 0" % (r, r + 1))
    a("s_mov_b32 s%d, 9" % S_CNT)
    a("s_waitcnt vmcnt(0)")
    stamp(1)
    a("s_barrier")
    stamp(2)
    stampc(5)

    q = LdsQ()

    def wread(out, f):
        t = f % 9
        base = WR + (f % R) * 4
        res = []
        for h in range(2):
            res.append(("ds_read_b64_tr_b16 v[%d:%d], v%d offset:%d" % (base + 2 * h, base + 2 * h + 1, V_W, h * 2304 + t * 32), ("W", f)))
        return res

    def xread(dst, vaddr, tag):
        return [("ds_read_b128 %s, v%d offset:%d" % (vr(dst + 4 * i), vaddr, i * 2048), tag) for i in range(4)]

    if opt.stamp:
        a("s_waitcnt lgkmcnt(0)")
    for ins, tag in xread(XA, V_X0, ("X", 0)):
        a(ins)
        q.issue(tag)
    a("v_xor_b32 v%d, 0x8000, v%d" % (V_X0, V_X0))
    for f in range(D):
        for ins, tag in wread(a, f):
            a(ins)
            q.issue(tag)

    def body(it):
        out = []

        def emit(s):
            out.append("    " + s)

        def emit_lds(ins, tag):
            emit(ins)
            q.issue(tag)

        def wait(tag):
            n = q.wait(tag)
            if n is not None:
                emit("s_waitcnt lgkmcnt(%d)" % n)

        for ks in range(6):
            ph = ks % 3
            U, O = (XA, XB) if ks < 3 else (XB, XA)
            xs = [U, O, U][ph]
            chunk = it * 2 + ks // 3
            for t in range(9):
                f = (it * 6 + ks) * 9 + t
                fill = []
                if ph == 0 and t < 8:
                    for k in (2 * t, 2 * t + 1):
                        fill.append(("v", "v_mov_b32_dpp v%d, v%d row_shr:1 row_mask:0xf bank_mask:0xf bound_ctrl:0" % (O + k, U + k)))
                if ph == 1 and t < 8:
                    for k in (2 * t, 2 * t + 1):
                        fill.append(("v", "v_mov_b32_dpp v%d, v%d row_shl:1 row_mask:0xf bank_mask:0xf bound_ctrl:0" % (U + k, U + k)))
                pre = []
                if ph == 2 and t < 2:
                    va = V_X1 if ks == 2 else V_X0
                    xr = xread(O, va, ("X", chunk + 1))
                    for ins, tag in xr[2 * t:2 * t + 2]:
                        pre.append(("l", ins, tag))
                if ph == 2 and t == 2:
                    va = V_X1 if ks == 2 else V_X0
                    fill.append(("v", "v_xor_b32 v%d, 0x8000, v%d" % (va, va)))
                nf = f + D
                rd = [("l", ins, tag) for ins, tag in wread(a, nf)]
                if opt.nowread:
                    rd = []
                if opt.nodpp:
                    fill = [x for x in fill if "dpp" not in x[1]]
                cross = (nf % 9 == 0)
                if (nf + 1) % 9 == 0:
                    fill.append(("s", "s_add_u32 s%d, s%d, %d" % (S_WS, S_WS, WSLOT)))
                    fill.append(("s", "s_cmp_eq_u32 s%d, %d" % (S_WS, WRING + NW * WSLOT)))
                    fill.append(("s", "s_cselect_b32 s%d, %d, s%d" % (S_WS, WRING, S_WS)))
                wait(("W", f))
                if t == 0:
                    wait(("X", chunk))
                seq = []
                if cross:
                    seq.append(("v", "v_add_u32 v%d, s%d, v%d" % (V_W, S_WS, V_WL)))
                    if ph == 2:
                        seq.append(("bar", chunk + 1))
                seq += pre + rd + fill
                if ks == 5 and t == 8:
                    seq.append(("s", "s_sub_u32 s%d, s%d, 1" % (S_CNT, S_CNT)))
                    seq.append(("s", "s_cmp_lg_u32 s%d, 0" % S_CNT))
                gaps = [[], [], [], []]
                n = len(seq)
                per = [(n + 3 - g) // 4 for g in range(4)]
                k = 0
                for g in range(4):
                    gaps[g] = seq[k:k + per[g]]
                    k += per[g]
                for i in range(4):
                    wf = WR + (f % R) * 4
                    tt, ii = t, i
                    if opt.order == 1:
                        lin = t * 4 + i
                        ii, tt = lin // 9, lin % 9
                        wf = WR + (tt % 5) * 4
                    elif opt.order == 2:
                        wf = WR + ((t + i) % 5) * 4
                    elif opt.order == 3:
                        ii = i if t % 2 == 0 else 3 - i
                    sa, sb = vr(wf), vr(xs + 4 * ii)
                    if opt.swap:
                        sa, sb = sb, sa
                    ac = vr(ACC(tt, ii))
                    if opt.agpr:
                        ac = ac.replace("v", "a")
                    emit("v_mfma_f32_16x16x32_bf16 %s, %s, %s, %s" % (ac, sa, sb, ac))
                    for it_ in gaps[i]:
                        if it_[0] == "l":
                            emit_lds(it_[1], it_[2])
                        elif it_[0] == "bar":
                            wait(("X", it_[1]))
                            emit("s_barrier")
                        else:
                            emit(it_[1])
        return out

    b0 = body(0)
    b1 = body(1)
    b2 = body(2)
    assert b1 == b2
    if b0 != b1:
        print("; NOTE prologue/steady differ", file=sys.stderr)
    a(".p2align 6")
    a.label("L_loop")
    a.lines += b1
    a("s_cbranch_scc1 L_loop")
    stampc(6)
    stamp(3)

    a.c("epilogue")
    P0 = 144
    E0 = 176
    SD = 184
    a("s_add_u32 s%d, s%d, s%d" % (S_SOFF, S_SOFF, S_COL))
    a("s_waitcnt lgkmcnt(0)")

    def pread(p):
        base = P0 + (p % 2) * 16
        tiles = [2 * p, 2 * p + 1] if p < 4 else [8]
        for k, t in enumerate(tiles):
            a("ds_read_b128 %s, v%d offset:%d" % (vr(base + 8 * k), V_PAR, t * 64))
            a("ds_read_b128 %s, v%d offset:%d" % (vr(base + 8 * k + 4), V_PAR, 576 + t * 64))
        return len(tiles) * 2

    pread(0)
    a("s_nop 7")
    sidx = 0

    def proc(accA, accB, parA, parB, voff, imm, soff):
        nonlocal sidx
        sd = SD + (sidx % 4) * 4
        sidx += 1
        for acc, par in ((accA, parA), (accB, parB)):
            for h in range(2):
                a("v_pk_fma_f32 v[%d:%d], v[%d:%d], v[%d:%d], v[%d:%d]" % (
                    acc + 2 * h, acc + 2 * h + 1, acc + 2 * h, acc + 2 * h + 1,
                    par + 2 * h, par + 2 * h + 1, par + 4 + 2 * h, par + 4 + 2 * h + 1))
        for k, acc in enumerate((accA, accB)):
            for r in range(4):
                a("v_exp_f32_e64 v%d, -v%d" % (E0 + 4 * k + r, acc + r))
        for k in range(4):
            a("v_pk_fma_f32 v[%d:%d], v[%d:%d], s[%d:%d], s[%d:%d]" % (
                E0 + 2 * k, E0 + 2 * k + 1, E0 + 2 * k, E0 + 2 * k + 1, S_L2E, S_L2E + 1, S_L2E, S_L2E + 1))
        for k in range(8):
            a("v_rcp_f32 v%d, v%d" % (E0 + k, E0 + k))
        for k, acc in enumerate((accA, accB)):
            for h in range(2):
                a("v_pk_mul_f32 v[%d:%d], v[%d:%d], v[%d:%d]" % (
                    E0 + 4 * k + 2 * h, E0 + 4 * k + 2 * h + 1, acc + 2 * h, acc + 2 * h + 1,
                    E0 + 4 * k + 2 * h, E0 + 4 * k + 2 * h + 1))
        a("v_cvt_pk_bf16_f32 v%d, v%d, v%d" % (sd + 0, E0 + 0, E0 + 1))
        a("v_cvt_pk_bf16_f32 v%d, v%d, v%d" % (sd + 2, E0 + 4, E0 + 5))
        a("v_cvt_pk_bf16_f32 v%d, v%d, v%d" % (sd + 1, E0 + 2, E0 + 3))
        a("v_cvt_pk_bf16_f32 v%d, v%d, v%d" % (sd + 3, E0 + 6, E0 + 7))
        a("s_nop 0")
        a("v_permlane16_swap_b32 v%d, v%d" % (sd + 0, sd + 2))
        a("v_permlane16_swap_b32 v%d, v%d" % (sd + 1, sd + 3))
        a("buffer_store_dwordx4 %s, v%d, s[28:31], s%d offen offset:%d %s" % (vr(sd), voff, soff, imm, opt.stflag))

    a("s_add_u32 s60, s%d, %d" % (S_SOFF, 16 * ROWB))
    a("s_add_u32 s61, s%d, %d" % (S_SOFF, 32 * ROWB))
    a("s_add_u32 s62, s%d, %d" % (S_SOFF, 48 * ROWB))
    soffs = [S_SOFF, 60, 61, 62]
    for p in range(5):
        base = P0 + (p % 2) * 16
        if p < 4:
            n = pread(p + 1)
            a("s_waitcnt lgkmcnt(%d)" % n)
            for i in range(4):
                proc(ACC(2 * p, i), ACC(2 * p + 1, i), base, base + 8, V_OUT0, p * 64, soffs[i])
        else:
            a("s_waitcnt lgkmcnt(0)")
            for i in (0, 2):
                proc(ACC(8, i), ACC(8, i + 1), base, base, V_OUT8, 256, soffs[i])
    if opt.stamp:
        a("s_waitcnt vmcnt(0)")
        stamp(4)
        a("s_waitcnt lgkmcnt(0)")
        a("s_mov_b32 s32, s18")
        a("s_and_b32 s33, s19, 0xffff")
        a("s_mov_b32 s34, 0x100000")
        a("s_mov_b32 s35, 0x20000")
        a("s_lshl_b32 s36, s2, 3")
        a("s_add_u32 s36, s36, s%d" % S_WAVE)
        a("s_lshl_b32 s36, s36, 6")
        a("s_getreg_b32 s84, hwreg(HW_REG_HW_ID)")
        a("s_getreg_b32 s85, hwreg(HW_REG_XCC_ID)")
        for k in range(16):
            a("v_mov_b32 v%d, s%d" % (k, 70 + k))
        a("v_mov_b32 v16, 0")
        a("v_cmp_eq_u32 vcc, 0, v%d" % V_LANE)
        a("s_and_saveexec_b64 s[40:41], vcc")
        for k in range(4):
            a("buffer_store_dwordx4 v[%d:%d], v16, s[32:35], s36 offen offset:%d" % (4 * k, 4 * k + 3, 16 * k))
        if opt.dbg:
            a("s_load_dwordx2 s[18:19], s[0:1], 56")
            a("s_waitcnt lgkmcnt(0)")
            a("s_mov_b32 s32, s18")
            a("s_and_b32 s33, s19, 0xffff")
            a("s_mov_b32 s34, 256")
            for k in range(5):
                a("v_mov_b32 v20, s%d" % (70 + 2 * k))
                a("v_not_b32 v21, v20")
                a("buffer_atomic_umax v20, v16, s[32:35], 0 offen offset:%d" % (8 * k))
                a("buffer_atomic_umax v21, v16, s[32:35], 0 offen offset:%d" % (8 * k + 4))
                a("s_waitcnt vmcnt(0)")
            a("s_sub_u32 s60, s82, s80")
            a("v_mov_b32 v20, s60")
            a("buffer_atomic_umax v20, v16, s[32:35], 0 offen offset:40")
    a("s_endpgm")

    a.label("L_loader")
    a("s_cmp_eq_u32 s%d, 7" % S_WAVE)
    a("s_cbranch_scc1 L_xloader")
    a.c("W loader j = wave-4: k-step phase j, tap [1,0,2][j]")
    for i in range(9):
        G, POS, GR, C = 1, 2, 3, 4
        a("v_add_u32 v%d, %d, v%d" % (G, 64 * i, V_LANE))
        a("v_mul_u32_u24 v%d, 3641, v%d" % (POS, G))
        a("v_lshrrev_b32 v%d, 16, v%d" % (POS, POS))
        a("v_mul_u32_u24 v%d, 18, v%d" % (GR, POS))
        a("v_sub_u32 v%d, v%d, v%d" % (GR, G, GR))
        a("v_and_b32 v%d, 0x13, v%d" % (C, POS))
        a("v_bfe_u32 v5, v%d, 2, 1" % POS)
        a("v_lshl_add_u32 v%d, v5, 3, v%d" % (C, C))
        a("v_bfe_u32 v5, v%d, 3, 1" % POS)
        a("v_lshl_add_u32 v%d, v5, 2, v%d" % (C, C))
        a("v_mul_u32_u24 v%d, %d, v%d" % (C, ROWB, C))
        a("v_lshl_add_u32 v%d, v%d, 4, v%d" % (10 + i, GR, C))
    a("s_sub_u32 s%d, s%d, 4" % (S_T0, S_WAVE))
    a("s_xor_b32 s%d, s%d, 1" % (S_T1, S_T0))
    a("s_cmp_eq_u32 s%d, 2" % S_T0)
    a("s_cselect_b32 s%d, 2, s%d" % (S_T1, S_T1))
    a("s_mul_i32 s%d, s%d, %d" % (S_SOFF, S_T1, TAPB))
    a("s_add_u32 s%d, s%d, s%d" % (S_SOFF, S_SOFF, S_COL))
    a("s_mul_i32 s%d, s%d, %d" % (S_WS, S_T0, WSLOT))
    a("s_add_u32 s%d, s%d, %d" % (S_WS, S_WS, WRING))

    def wissue(inloop=False):
        a("s_mov_b32 m0, s%d" % S_WS)
        a("s_add_u32 s%d, s%d, %d" % (S_WS, S_WS, 3 * WSLOT))
        for i in range(9):
            if not (opt.nodma and inloop):
                a("buffer_load_dwordx4 v%d, s[24:27], s%d offen lds" % (10 + i, S_SOFF))
            if i < 8:
                a("s_add_u32 m0, m0, 1024")
                a("s_nop 0")
        a("s_cmp_ge_u32 s%d, %d" % (S_WS, WRING + NW * WSLOT))
        a("s_cselect_b32 s%d, %d, 0" % (S_T2, NW * WSLOT))
        a("s_sub_u32 s%d, s%d, s%d" % (S_WS, S_WS, S_T2))
        a("s_add_u32 s%d, s%d, %d" % (S_SOFF, S_SOFF, 32 * ROWB))

    wissue()
    wissue()
    wissue()
    a("s_lshl_b32 s%d, s%d, 6" % (S_T1, S_T0))
    a("v_add_u32 v20, s%d, v%d" % (S_T1, V_LANE))
    a("v_lshlrev_b32 v21, 1, v20")
    a("v_add_u32 v21, s%d, v21" % S_COL)
    for k in range(4):
        a("s_mov_b32 s%d, s%d" % (32 + 4 * k, 8 + 2 * k))
        a("s_and_b32 s%d, s%d, 0xffff" % (33 + 4 * k, 9 + 2 * k))
        a("s_mov_b32 s%d, 1152" % (34 + 4 * k))
        a("s_mov_b32 s%d, 0x20000" % (35 + 4 * k))
    for k in range(4):
        a("buffer_load_ushort v%d, v21, s[%d:%d], 0 offen" % (24 + k, 32 + 4 * k, 35 + 4 * k))
    def lstamp():
        if opt.stamp:
            a("s_memtime s[70:71]")
            a("s_memrealtime s[72:73]")
            a("s_waitcnt lgkmcnt(0)")
            a("s_mov_b32 m0, s69")
            a("s_nop 0")
            a("v_writelane_b32 v40, s70, m0")
            a("v_writelane_b32 v41, s72, m0")
            a("s_add_u32 s69, s69, 1")
    if opt.stamp:
        a("s_mov_b32 s69, 0")
        a("v_mov_b32 v40, 0")
        a("v_mov_b32 v41, s70")
        a("s_mov_b32 s69, 1")
    lstamp()
    a("s_waitcnt vmcnt(22)")
    lstamp()
    a("s_barrier")
    lstamp()
    a("s_waitcnt vmcnt(13)")
    a("s_barrier")
    lstamp()
    a("s_mov_b32 s%d, 15" % S_CNT)
    a.label("L_wloop")
    wissue(True)
    a("s_waitcnt vmcnt(9)")
    a("s_barrier")
    lstamp()
    a("s_sub_u32 s%d, s%d, 1" % (S_CNT, S_CNT))
    a("s_cmp_lg_u32 s%d, 0" % S_CNT)
    a("s_cbranch_scc1 L_wloop")
    a.c("BN parameters: v24=mean v25=var v26=g v27=b (bf16 bits)")
    for k in range(4):
        a("v_lshlrev_b32 v%d, 16, v%d" % (24 + k, 24 + k))
    a("v_add_f32 v25, 0x3727c5ac, v25")
    a("v_cvt_pk_bf16_f32 v25, v25, v25")
    a("v_lshlrev_b32 v25, 16, v25")
    a("v_sqrt_f32 v25, v25")
    a("s_nop 0")
    a("v_cvt_pk_bf16_f32 v25, v25, v25")
    a("v_lshlrev_b32 v25, 16, v25")
    a("v_rcp_f32 v25, v25")
    a("s_nop 0")
    a("v_cvt_pk_bf16_f32 v25, v25, v25")
    a("v_lshlrev_b32 v25, 16, v25")
    a("v_mul_f32 v25, v26, v25")
    a("v_cvt_pk_bf16_f32 v25, v25, v25")
    a("v_lshlrev_b32 v25, 16, v25")
    a("v_fma_f32 v27, -v24, v25, v27")
    a("v_mul_f32 v25, 0x%x, v25" % LOG2E)
    a("v_mul_f32 v27, 0x%x, v27" % LOG2E)
    a("v_lshlrev_b32 v21, 2, v20")
    a("v_add_u32 v21, %d, v21" % PARAM)
    a("v_cmp_gt_u32 vcc, 144, v20")
    a("s_and_saveexec_b64 s[40:41], vcc")
    a("ds_write_b32 v21, v25")
    a("ds_write_b32 v21, v27 offset:576")
    a("s_mov_b64 exec, s[40:41]")
    a("s_waitcnt vmcnt(0) lgkmcnt(0)")
    a("s_barrier")
    lstamp()
    if opt.stamp:
        a("s_mov_b32 s32, s18")
        a("s_and_b32 s33, s19, 0xffff")
        a("s_mov_b32 s34, 0x1000000")
        a("s_mov_b32 s35, 0x20000")
        a("s_lshl_b32 s36, s2, 3")
        a("s_add_u32 s36, s36, s%d" % S_WAVE)
        a("s_lshl_b32 s36, s36, 9")
        a("s_add_u32 s36, s36, 0x100000")
        a("v_lshlrev_b32 v42, 3, v%d" % V_LANE)
        a("buffer_store_dwordx2 v[40:41], v42, s[32:35], s36 offen")
    a("s_endpgm")

    a.label("L_xloader")
    a("s_add_u32 s%d, s%d, 128" % (S_SOFF, S_ROW))
    a("s_mov_b32 s%d, %d" % (S_WS, XBUF + 32768))

    def xissue(inloop=False):
        a("s_mov_b32 m0, s%d" % S_WS)
        a("s_mov_b32 s%d, s%d" % (S_T2, S_SOFF))
        for n in range(32):
            if not (opt.nodma and inloop):
                a("buffer_load_dwordx4 v%d, s[20:23], s%d offen lds" % (V_T0 if n % 2 == 0 else V_T1, S_T2))
            if n < 31:
                a("s_add_u32 m0, m0, 1024")
                a("s_add_u32 s%d, s%d, %d" % (S_T2, S_T2, 8 * ROWB))
        a("s_xor_b32 s%d, s%d, 0x8000" % (S_WS, S_WS))
        a("s_add_u32 s%d, s%d, 128" % (S_SOFF, S_SOFF))

    xissue()
    a("s_barrier")
    a("s_waitcnt vmcnt(0)")
    a("s_barrier")
    a("s_mov_b32 s%d, 7" % S_CNT)
    a.label("L_xloop")
    xissue(True)
    a("s_barrier")
    a("s_waitcnt vmcnt(0)")
    a("s_barrier")
    a("s_sub_u32 s%d, s%d, 1" % (S_CNT, S_CNT))
    a("s_cmp_lg_u32 s%d, 0" % S_CNT)
    a("s_cbranch_scc1 L_xloop")
    a.label("L_end")
    a("s_endpgm")

    out = HEADER
    out += "; @launch grid=(256,1,1) block=(512,1,1) lds=%d\n" % LDS_BYTES
    out += '.amdgcn_target "amdgcn-amd-amdhsa--gfx950"\n.text\n.globl %s\n.p2align 8\n.type %s,@function\n' % (KNAME, KNAME)
    out += a.text()
    out += """.section .rodata,"a"
.p2align 6
.amdhsa_kernel %s
  .amdhsa_next_free_vgpr 256
  .amdhsa_next_free_sgpr 102
  .amdhsa_accum_offset 256
  .amdhsa_group_segment_fixed_size 0
  .amdhsa_kernarg_size 72
  .amdhsa_user_sgpr_count 2
  .amdhsa_user_sgpr_kernarg_segment_ptr 1
  .amdhsa_system_sgpr_workgroup_id_x 1
  .amdhsa_float_denorm_mode_32 3
.end_amdhsa_kernel
""" % KNAME
    return out


if __name__ == "__main__":
    ap = argparse.ArgumentParser()
    ap.add_argument("-o", default="standalone__batchnorm__sampling.s")
    ap.add_argument("--D", type=int, default=5)
    ap.add_argument("--prio", type=int, default=3)
    ap.add_argument("--stamp", action="store_true")
    ap.add_argument("--stflag", default="")
    ap.add_argument("--order", type=int, default=0)
    ap.add_argument("--swap", action="store_true")
    ap.add_argument("--agpr", action="store_true")
    ap.add_argument("--dbg", action="store_true")
    ap.add_argument("--nowread", action="store_true")
    ap.add_argument("--nodpp", action="store_true")
    ap.add_argument("--nodma", action="store_true")
    opt = ap.parse_args()
    open(opt.o, "w").write(gen(opt))
```

```python
import sys
import argparse

KNAME = "standalone__batchnorm__sampling_kernel"

HEADER = """; Kernarg layout for this problem (72 bytes, ptrs only, base s[0:1]):
"""

XBYTES = 1024 * 16 * 576 * 2
WBYTES = 3 * 576 * 576 * 2
ROWB = 1152
TAPB = 576 * 1152

XBLK = 17 * 128
XBUFB = 16 * XBLK
WRING = 2 * XBUFB + 128
WSLOT = 9216
NW = 10
PARAM = WRING + NW * WSLOT
LDS_BYTES = PARAM + 1152

LOG2E = 0x3FB8AA3B


class Asm:
    def __init__(self):
        self.lines = []

    def __call__(self, s):
        self.lines.append("    " + s)

    def label(self, l):
        self.lines.append(l + ":")

    def c(self, s):
        self.lines.append("    ; " + s)

    def text(self):
        return "\n".join(self.lines) + "\n"


class LdsQ:
    def __init__(self):
        self.q = []

    def issue(self, tag):
        self.q.append(tag)
        assert len(self.q) <= 15, self.q

    def wait(self, tag):
        idx = [i for i, t in enumerate(self.q) if t == tag]
        if not idx:
            return None
        last = idx[-1]
        n = len(self.q) - 1 - last
        self.q = self.q[last + 1:]
        return n


def vr(b, n=4):
    return "v[%d:%d]" % (b, b + n - 1)


def gen(opt):
    a = Asm()
    D = opt.D
    R = 6
    assert D <= R - 1
    ACC = lambda t, i: (t * 4 + i) * 4
    XSET = [144, 160]
    WR = 176
    V_W, V_WL = 200, 201
    V_XA = 202
    V_T0, V_T1, V_T2, V_T3 = 208, 209, 210, 211
    V_LANE = 212
    V_OUT0, V_OUT8, V_PAR = 213, 214, 215
    V_XD = 216

    S_WAVE, S_ROW, S_COL, S_ODD = 48, 49, 50, 57
    S_T0, S_T1, S_T2 = 51, 52, 53
    S_WS, S_CNT, S_SOFF = 54, 55, 56
    S_L2E = 58
    S_XT = 63
    S_CB = 64

    def stamp(idx):
        if opt.stamp:
            a("s_memrealtime s[%d:%d]" % (70 + 2 * idx, 71 + 2 * idx))

    def stampc(idx):
        if opt.stamp:
            a("s_memtime s[%d:%d]" % (70 + 2 * idx, 71 + 2 * idx))

    a.label(KNAME)
    stamp(0)
    a("s_load_dwordx8 s[4:11], s[0:1], 0")
    a("s_load_dwordx4 s[12:15], s[0:1], 32")
    a("s_load_dwordx2 s[16:17], s[0:1], 48")
    if opt.stamp:
        a("s_load_dwordx2 s[18:19], s[0:1], 64")
    a("s_cmp_ge_u32 s2, 256")
    a("s_cbranch_scc1 L_end")
    a("v_lshrrev_b32 v1, 6, v0")
    a("v_and_b32 v%d, 63, v0" % V_LANE)
    a("v_readfirstlane_b32 s%d, v1" % S_WAVE)
    a("s_and_b32 s%d, s2, 7" % S_ROW)
    a("s_lshr_b32 s%d, s2, 5" % S_T0)
    a("s_lshl_b32 s%d, s%d, 3" % (S_ROW, S_ROW))
    a("s_add_u32 s%d, s%d, s%d" % (S_ROW, S_ROW, S_T0))
    a("s_bfe_u32 s%d, s2, 0x20003" % S_CB)
    a("s_mul_i32 s%d, s%d, %d" % (S_ROW, S_ROW, 256 * ROWB))
    a("s_mul_i32 s%d, s%d, 288" % (S_COL, S_CB))
    a("s_and_b32 s%d, s%d, 1" % (S_ODD, S_CB))
    a("s_mov_b32 s22, %d" % XBYTES)
    a("s_mov_b32 s23, 0x20000")
    a("s_cmp_ge_u32 s%d, 4" % S_WAVE)
    a("s_cbranch_scc0 L_xaddr")
    a("s_cmp_lg_u32 s%d, 7" % S_WAVE)
    a("s_cbranch_scc1 L_wloader")
    a.label("L_xaddr")
    a("v_lshrrev_b32 v%d, 3, v%d" % (V_T0, V_LANE))
    a("v_mul_u32_u24 v%d, %d, v%d" % (V_T0, ROWB, V_T0))
    a("v_and_b32 v%d, 7, v%d" % (V_T1, V_LANE))
    a("v_lshrrev_b32 v%d, 4, v%d" % (V_T3, V_LANE))
    a("v_lshlrev_b32 v%d, 1, v%d" % (V_T2, V_T3))
    a("v_xor_b32 v%d, v%d, v%d" % (V_T1, V_T1, V_T2))
    a("v_lshl_add_u32 v%d, v%d, 4, v%d" % (V_XD, V_T1, V_T0))
    a("s_cmp_eq_u32 s%d, 7" % S_WAVE)
    a("s_cbranch_scc1 L_xloader")

    a.c("compute wave: DMA own X rows, chunk 0")
    a("s_mul_i32 s%d, s%d, %d" % (S_T0, S_WAVE, 64 * ROWB))
    a("s_add_u32 s%d, s%d, s%d" % (S_SOFF, S_ROW, S_T0))
    a("s_mul_i32 s%d, s%d, %d" % (S_T1, S_WAVE, 4 * XBLK))
    a("s_add_u32 m0, s%d, 128" % S_T1)
    a("s_mov_b32 s%d, s%d" % (S_T2, S_SOFF))
    a("s_waitcnt lgkmcnt(0)")
    a("s_mov_b32 s20, s4")
    a("s_and_b32 s21, s5, 0xffff")
    for n in range(8):
        a("buffer_load_dwordx4 v%d, s[20:23], s%d offen lds" % (V_XD, S_T2))
        if n < 7:
            a("s_add_u32 m0, m0, %d" % (1024 if n % 2 == 0 else XBLK - 1024))
            a("s_add_u32 s%d, s%d, %d" % (S_T2, S_T2, 8 * ROWB))
    a("s_mov_b32 s28, s16")
    a("s_and_b32 s29, s17, 0xffff")
    a("s_mov_b32 s30, %d" % XBYTES)
    a("s_mov_b32 s31, 0x20000")
    a("s_mov_b32 s%d, 0x%x" % (S_L2E, LOG2E))
    a("s_mov_b32 s%d, 0x%x" % (S_L2E + 1, LOG2E))
    a("s_mov_b32 s%d, %d" % (S_XT, XBUFB))
    a("v_and_b32 v%d, 15, v%d" % (V_T2, V_LANE))
    for tap in range(3):
        va = V_XA + tap
        a("v_add_u32 v%d, %d, v%d" % (V_T0, tap + 15, V_T2))
        a("v_and_b32 v%d, 6, v%d" % (V_T0, V_T0))
        a("v_xor_b32 v%d, v%d, v%d" % (V_T0, V_T0, V_T3))
        a("v_lshlrev_b32 v%d, 4, v%d" % (V_T0, V_T0))
        a("v_lshl_add_u32 v%d, v%d, 7, v%d" % (V_T0, V_T2, V_T0))
        a("s_add_u32 s%d, s%d, %d" % (S_T0, S_T1, tap * 128))
        a("v_add_u32 v%d, s%d, v%d" % (va, S_T0, V_T0))
        a("v_xor_b32 v%d, 64, v%d" % (va + 3, va))
    a("v_mul_u32_u24 v%d, %d, v%d" % (V_OUT0, ROWB, V_T2))
    a("v_lshrrev_b32 v%d, 1, v%d" % (V_PAR, V_T3))
    a("v_lshl_add_u32 v%d, v%d, 4, v%d" % (V_OUT0, V_PAR, V_OUT0))
    a("v_and_b32 v%d, 1, v%d" % (V_PAR, V_T3))
    a("v_mul_u32_u24 v%d, %d, v%d" % (V_OUT8, 16 * ROWB, V_PAR))
    a("v_add_u32 v%d, v%d, v%d" % (V_OUT8, V_OUT8, V_OUT0))
    a("v_lshl_add_u32 v%d, v%d, 5, v%d" % (V_OUT0, V_PAR, V_OUT0))
    a("s_lshl_b32 s%d, s%d, 5" % (S_T0, S_ODD))
    a("v_add_u32 v%d, s%d, v%d" % (V_OUT0, S_T0, V_OUT0))
    a("s_lshl_b32 s%d, s%d, 8" % (S_T0, S_ODD))
    a("s_sub_u32 s%d, 256, s%d" % (S_T0, S_T0))
    a("v_add_u32 v%d, s%d, v%d" % (V_OUT8, S_T0, V_OUT8))
    a("v_lshlrev_b32 v%d, 4, v%d" % (V_PAR, V_T3))
    a("v_add_u32 v%d, %d, v%d" % (V_PAR, PARAM, V_PAR))
    a("v_lshrrev_b32 v%d, 5, v%d" % (V_WL, V_LANE))
    a("v_lshlrev_b32 v%d, 4, v%d" % (V_WL, V_WL))
    a("v_bfe_u32 v%d, v%d, 4, 1" % (V_T2, V_LANE))
    a("v_lshl_add_u32 v%d, v%d, 2, v%d" % (V_WL, V_T2, V_WL))
    a("v_bfe_u32 v%d, v%d, 2, 2" % (V_T2, V_LANE))
    a("v_add_u32 v%d, v%d, v%d" % (V_WL, V_WL, V_T2))
    a("v_mul_u32_u24 v%d, 288, v%d" % (V_WL, V_WL))
    a("v_and_b32 v%d, 3, v%d" % (V_T2, V_LANE))
    a("v_lshl_add_u32 v%d, v%d, 3, v%d" % (V_WL, V_T2, V_WL))
    a("s_mov_b32 s%d, %d" % (S_WS, WRING))
    a("v_add_u32 v%d, s%d, v%d" % (V_W, S_WS, V_WL))
    for r in range(0, 144, 2):
        a("v_mov_b64 v[%d:%d], 0" % (r, r + 1))
    a("s_mov_b32 s%d, 9" % S_CNT)
    a("s_waitcnt vmcnt(0)")
    stamp(1)
    a("s_setprio %d" % opt.prio)
    a("s_barrier")
    stamp(2)
    stampc(5)

    q = LdsQ()

    def wread(f):
        t = f % 9
        base = WR + (f % R) * 4
        res = []
        for h in range(2):
            res.append(("ds_read_b64_tr_b16 v[%d:%d], v%d offset:%d" % (base + 2 * h, base + 2 * h + 1, V_W, h * 2304 + t * 32), ("W", f)))
        return res

    def xread(gks):
        ks = gks % 6
        va = V_XA + ks
        dst = XSET[gks % 2]
        return [("ds_read_b128 %s, v%d offset:%d" % (vr(dst + 4 * i), va, i * XBLK), ("X", gks)) for i in range(4)]

    if opt.stamp:
        a("s_waitcnt lgkmcnt(0)")
    for ins, tag in wread(0) + xread(0):
        a(ins)
        q.issue(tag)
    a("v_add_u32 v%d, s%d, v%d" % (V_XA, S_XT, V_XA))
    for f in range(1, D):
        for ins, tag in wread(f):
            a(ins)
            q.issue(tag)
    n = q.wait(("X", 0))
    a("s_waitcnt lgkmcnt(%d)" % n)

    XT0 = opt.xt0

    def body(it):
        out = []

        def emit(s):
            out.append("    " + s)

        def emit_lds(ins, tag):
            emit(ins)
            q.issue(tag)

        def wait(tag):
            n = q.wait(tag)
            if n is not None:
                emit("s_waitcnt lgkmcnt(%d)" % n)

        for ks in range(6):
            ph = ks % 3
            gks = it * 6 + ks
            xs = XSET[gks % 2]
            for t in range(9):
                f = gks * 9 + t
                fill = []
                xr = xread(gks + 1)
                x0 = XT0 if ph != 2 else max(XT0, 9 - D)
                xl = []
                per_g = 1 if ph != 2 else 2
                ng = 4 // per_g
                if x0 <= t < x0 + ng:
                    for ins, tag in xr[(t - x0) * per_g:(t - x0 + 1) * per_g]:
                        xl.append(("l", ins, tag))
                if t == x0 + ng:
                    va = V_XA + (ks + 1) % 6
                    if ks == 5:
                        fill.append(("s", "s_sub_u32 s%d, 0, s%d" % (S_XT, S_XT)))
                    fill.append(("v", "v_add_u32 v%d, s%d, v%d" % (va, S_XT, va)))
                nf = f + D
                rd = [("l", ins, tag) for ins, tag in wread(nf)]
                cross = (nf % 9 == 0)
                if (nf + 1) % 9 == 0:
                    fill.append(("s", "s_add_u32 s%d, s%d, %d" % (S_WS, S_WS, WSLOT)))
                    fill.append(("s", "s_cmp_eq_u32 s%d, %d" % (S_WS, WRING + NW * WSLOT)))
                    fill.append(("s", "s_cselect_b32 s%d, %d, s%d" % (S_WS, WRING, S_WS)))
                    fill.append(("v", "v_add_u32 v%d, s%d, v%d" % (V_W, S_WS, V_WL)))
                wait(("W", f))
                if t == 0:
                    wait(("X", gks))
                seq = []
                if cross and ph == 2:
                    seq.append(("bar", 0))
                seq += rd + xl + fill
                if ks == 5 and t == 8:
                    seq.append(("s", "s_sub_u32 s%d, s%d, 1" % (S_CNT, S_CNT)))
                    seq.append(("s", "s_cmp_lg_u32 s%d, 0" % S_CNT))
                gaps = [[], [], [], []]
                n = len(seq)
                per = [(n + 3 - g) // 4 for g in range(4)]
                k = 0
                for g in range(4):
                    gaps[g] = seq[k:k + per[g]]
                    k += per[g]
                for i in range(4):
                    wf = WR + (f % R) * 4
                    emit("v_mfma_f32_16x16x32_bf16 %s, %s, %s, %s" % (vr(ACC(t, i)), vr(wf), vr(xs + 4 * i), vr(ACC(t, i))))
                    for it_ in gaps[i]:
                        if it_[0] == "l":
                            emit_lds(it_[1], it_[2])
                        elif it_[0] == "bar":
                            emit("s_barrier")
                        else:
                            emit(it_[1])
        return out

    b0 = body(0)
    b1 = body(1)
    b2 = body(2)
    assert b1 == b2
    a(".p2align 6")
    a.label("L_loop")
    a.lines += b1
    a("s_cbranch_scc1 L_loop")
    stampc(6)
    stamp(3)

    a.c("epilogue")
    P0 = 144
    E0 = 176
    SD = 184
    a("s_add_u32 s%d, s%d, s%d" % (S_SOFF, S_SOFF, S_COL))
    a("s_waitcnt lgkmcnt(0)")

    def pread(p):
        base = P0 + (p % 2) * 16
        tiles = [2 * p, 2 * p + 1] if p < 4 else [8]
        for k, t in enumerate(tiles):
            a("ds_read_b128 %s, v%d offset:%d" % (vr(base + 8 * k), V_PAR, t * 64))
            a("ds_read_b128 %s, v%d offset:%d" % (vr(base + 8 * k + 4), V_PAR, 576 + t * 64))
        return len(tiles) * 2

    pread(0)
    a("s_nop 7")
    sidx = 0

    def proc(accA, accB, parA, parB, voff, imm, soff, flag):
        nonlocal sidx
        sd = SD + (sidx % 4) * 4
        sidx += 1
        for acc, par in ((accA, parA), (accB, parB)):
            for h in range(2):
                a("v_pk_fma_f32 v[%d:%d], v[%d:%d], v[%d:%d], v[%d:%d]" % (
                    acc + 2 * h, acc + 2 * h + 1, acc + 2 * h, acc + 2 * h + 1,
                    par + 2 * h, par + 2 * h + 1, par + 4 + 2 * h, par + 4 + 2 * h + 1))
        for k, acc in enumerate((accA, accB)):
            for r in range(4):
                a("v_exp_f32_e64 v%d, -v%d" % (E0 + 4 * k + r, acc + r))
        for k in range(4):
            a("v_pk_fma_f32 v[%d:%d], v[%d:%d], s[%d:%d], s[%d:%d]" % (
                E0 + 2 * k, E0 + 2 * k + 1, E0 + 2 * k, E0 + 2 * k + 1, S_L2E, S_L2E + 1, S_L2E, S_L2E + 1))
        for k in range(8):
            a("v_rcp_f32 v%d, v%d" % (E0 + k, E0 + k))
        for k, acc in enumerate((accA, accB)):
            for h in range(2):
                a("v_pk_mul_f32 v[%d:%d], v[%d:%d], v[%d:%d]" % (
                    E0 + 4 * k + 2 * h, E0 + 4 * k + 2 * h + 1, acc + 2 * h, acc + 2 * h + 1,
                    E0 + 4 * k + 2 * h, E0 + 4 * k + 2 * h + 1))
        a("v_cvt_pk_bf16_f32 v%d, v%d, v%d" % (sd + 0, E0 + 0, E0 + 1))
        a("v_cvt_pk_bf16_f32 v%d, v%d, v%d" % (sd + 2, E0 + 4, E0 + 5))
        a("v_cvt_pk_bf16_f32 v%d, v%d, v%d" % (sd + 1, E0 + 2, E0 + 3))
        a("v_cvt_pk_bf16_f32 v%d, v%d, v%d" % (sd + 3, E0 + 6, E0 + 7))
        a("s_nop 0")
        a("v_permlane16_swap_b32 v%d, v%d" % (sd + 0, sd + 2))
        a("v_permlane16_swap_b32 v%d, v%d" % (sd + 1, sd + 3))
        a("buffer_store_dwordx4 %s, v%d, s[28:31], s%d offen offset:%d %s" % (vr(sd), voff, soff, imm, flag))

    a("s_add_u32 s60, s%d, %d" % (S_SOFF, 16 * ROWB))
    a("s_add_u32 s61, s%d, %d" % (S_SOFF, 32 * ROWB))
    a("s_add_u32 s62, s%d, %d" % (S_SOFF, 48 * ROWB))
    soffs = [S_SOFF, 60, 61, 62]
    for p in range(5):
        base = P0 + (p % 2) * 16
        if p < 4:
            n = pread(p + 1)
            a("s_waitcnt lgkmcnt(%d)" % n)
            for i in range(4):
                proc(ACC(2 * p, i), ACC(2 * p + 1, i), base, base + 8, V_OUT0, p * 64, soffs[i], opt.stflag)
        else:
            a("s_waitcnt lgkmcnt(0)")
            for i in (0, 2):
                proc(ACC(8, i), ACC(8, i + 1), base, base, V_OUT8, 0, soffs[i], opt.stflag8)
    if opt.stamp:
        a("s_waitcnt vmcnt(0)")
        stamp(4)
        a("s_waitcnt lgkmcnt(0)")
        a("s_mov_b32 s32, s18")
        a("s_and_b32 s33, s19, 0xffff")
        a("s_mov_b32 s34, 0x100000")
        a("s_mov_b32 s35, 0x20000")
        a("s_lshl_b32 s36, s2, 3")
        a("s_add_u32 s36, s36, s%d" % S_WAVE)
        a("s_lshl_b32 s36, s36, 6")
        a("s_getreg_b32 s84, hwreg(HW_REG_HW_ID)")
        a("s_getreg_b32 s85, hwreg(HW_REG_XCC_ID)")
        for k in range(16):
            a("v_mov_b32 v%d, s%d" % (k, 70 + k))
        a("v_mov_b32 v16, 0")
        a("v_cmp_eq_u32 vcc, 0, v%d" % V_LANE)
        a("s_and_saveexec_b64 s[40:41], vcc")
        for k in range(4):
            a("buffer_store_dwordx4 v[%d:%d], v16, s[32:35], s36 offen offset:%d" % (4 * k, 4 * k + 3, 16 * k))
    a("s_endpgm")

    def lstamp():
        if opt.stamp:
            a("s_memtime s[90:91]")
            a("s_memrealtime s[92:93]")
            a("s_waitcnt lgkmcnt(0)")
            a("s_mov_b32 m0, s69")
            a("s_nop 0")
            a("v_writelane_b32 v40, s90, m0")
            a("v_writelane_b32 v41, s92, m0")
            a("s_add_u32 s69, s69, 1")

    def lstamp_init():
        if opt.stamp:
            a("v_mov_b32 v40, 0")
            a("v_mov_b32 v41, s70")
            a("s_mov_b32 s69, 1")

    def lstamp_store():
        if opt.stamp:
            a("s_mov_b32 s32, s18")
            a("s_and_b32 s33, s19, 0xffff")
            a("s_mov_b32 s34, 0x1000000")
            a("s_mov_b32 s35, 0x20000")
            a("s_lshl_b32 s36, s2, 3")
            a("s_add_u32 s36, s36, s%d" % S_WAVE)
            a("s_lshl_b32 s36, s36, 9")
            a("s_add_u32 s36, s36, 0x100000")
            a("v_lshlrev_b32 v42, 3, v%d" % V_LANE)
            a("buffer_store_dwordx2 v[40:41], v42, s[32:35], s36 offen")

    a(".p2align 6")
    a.label("L_wloader")
    a.c("W loader j = wave-4: pieces 3j..3j+2 of every k-step slot")
    a("s_sub_u32 s%d, s%d, 4" % (S_T0, S_WAVE))
    a("s_mul_i32 s%d, s%d, 192" % (S_T1, S_T0))
    a("s_lshl_b32 s%d, s%d, 1" % (S_T2, S_ODD))
    a("v_add_u32 v1, s%d, v%d" % (S_T1, V_LANE))
    a("s_mov_b32 s26, %d" % WBYTES)
    a("s_mov_b32 s27, 0x20000")
    a("s_movk_i32 s36, 288")
    a("s_movk_i32 s37, 0x34")
    a("s_movk_i32 s38, %d" % ROWB)
    for k in range(3):
        if k:
            a("v_add_u32 v1, 64, v1")
        a("v_add_u32 v2, s%d, v1" % S_T2)
        a("v_mul_u32_u24 v3, 3641, v1")
        a("v_mul_u32_u24 v4, 3641, v2")
        a("v_lshrrev_b32 v3, 16, v3")
        a("v_lshrrev_b32 v4, 16, v4")
        a("v_bfe_u32 v5, v3, 2, 2")
        a("v_lshlrev_b32 v5, 1, v5")
        a("v_bfe_i32 v5, s37, v5, 2")
        a("v_lshl_add_u32 v3, v5, 2, v3")
        a("v_lshlrev_b32 v2, 4, v2")
        a("v_mad_u32_u24 v2, v3, s38, v2")
        a("v_mul_u32_u24 v4, s36, v4")
        a("v_sub_u32 v%d, v2, v4" % (10 + k))
        if k:
            a("v_subrev_u32 v%d, %d, v%d" % (10 + k, 1024 * k, 10 + k))
    a("s_mov_b32 s%d, s%d" % (S_SOFF, S_COL))
    a("s_mul_i32 s39, s%d, 3072" % S_T0)
    a("s_add_u32 s39, s39, %d" % WRING)
    a("s_add_u32 s40, s39, %d" % (NW * WSLOT))
    a("s_mov_b32 s%d, s39" % S_WS)
    a("s_waitcnt lgkmcnt(0)")
    a("s_mov_b32 s24, s6")
    a("s_and_b32 s25, s7, 0xffff")
    lstamp_init()
    lstamp()

    def wissue():
        for tap in range(3):
            a("s_mov_b32 m0, s%d" % S_WS)
            if tap:
                a("s_add_u32 s%d, s%d, %d" % (S_T2, S_SOFF, tap * TAPB))
            else:
                a("s_mov_b32 s%d, s%d" % (S_T2, S_SOFF))
            for k in range(3):
                a("buffer_load_dwordx4 v%d, s[24:27], s%d offen offset:%d lds" % (10 + k, S_T2, 1024 * k))
            a("s_add_u32 s%d, s%d, %d" % (S_WS, S_WS, WSLOT))
            a("s_cmp_eq_u32 s%d, s40" % S_WS)
            a("s_cselect_b32 s%d, s39, s%d" % (S_WS, S_WS))
        a("s_add_u32 s%d, s%d, %d" % (S_SOFF, S_SOFF, 32 * ROWB))

    wissue()
    lstamp()
    a("s_waitcnt vmcnt(%d)" % opt.w1wait)
    wissue()
    lstamp()
    a("s_waitcnt vmcnt(9)")
    lstamp()
    a("s_barrier")
    lstamp()
    wissue()
    a("s_lshl_b32 s%d, s%d, 6" % (S_T1, S_T0))
    a("v_add_u32 v20, s%d, v%d" % (S_T1, V_LANE))
    a("s_lshl_b32 s%d, s%d, 4" % (S_T1, S_ODD))
    a("v_add_u32 v21, s%d, v20" % S_T1)
    a("v_subrev_u32 v22, 144, v21")
    a("v_min_u32 v21, v21, v22")
    a("v_lshlrev_b32 v21, 1, v21")
    a("v_add_u32 v21, s%d, v21" % S_COL)
    PS = [28, 32, 60, 96]
    for k in range(4):
        a("s_mov_b32 s%d, s%d" % (PS[k], 8 + 2 * k))
        a("s_and_b32 s%d, s%d, 0xffff" % (PS[k] + 1, 9 + 2 * k))
        a("s_mov_b32 s%d, 1152" % (PS[k] + 2))
        a("s_mov_b32 s%d, 0x20000" % (PS[k] + 3))
    for k in range(4):
        a("buffer_load_ushort v%d, v21, s[%d:%d], 0 offen" % (24 + k, PS[k], PS[k] + 3))
    a("s_waitcnt vmcnt(13)")
    a("s_barrier")
    lstamp()
    a("s_mov_b32 s%d, 15" % S_CNT)
    a.label("L_wloop")
    wissue()
    a("s_waitcnt vmcnt(9)")
    a("s_barrier")
    lstamp()
    a("s_sub_u32 s%d, s%d, 1" % (S_CNT, S_CNT))
    a("s_cmp_lg_u32 s%d, 0" % S_CNT)
    a("s_cbranch_scc1 L_wloop")
    a.c("BN parameters: v24=mean v25=var v26=g v27=b (bf16 bits)")
    for k in range(4):
        a("v_lshlrev_b32 v%d, 16, v%d" % (24 + k, 24 + k))
    a("v_add_f32 v25, 0x3727c5ac, v25")
    a("v_cvt_pk_bf16_f32 v25, v25, v25")
    a("v_lshlrev_b32 v25, 16, v25")
    a("v_sqrt_f32 v25, v25")
    a("s_nop 0")
    a("v_cvt_pk_bf16_f32 v25, v25, v25")
    a("v_lshlrev_b32 v25, 16, v25")
    a("v_rcp_f32 v25, v25")
    a("s_nop 0")
    a("v_cvt_pk_bf16_f32 v25, v25, v25")
    a("v_lshlrev_b32 v25, 16, v25")
    a("v_mul_f32 v25, v26, v25")
    a("v_cvt_pk_bf16_f32 v25, v25, v25")
    a("v_lshlrev_b32 v25, 16, v25")
    a("v_fma_f32 v27, -v24, v25, v27")
    a("v_mul_f32 v25, 0x%x, v25" % LOG2E)
    a("v_mul_f32 v27, 0x%x, v27" % LOG2E)
    a("v_lshlrev_b32 v21, 2, v20")
    a("v_add_u32 v21, %d, v21" % PARAM)
    a("v_cmp_gt_u32 vcc, 144, v20")
    a("s_and_saveexec_b64 s[46:47], vcc")
    a("ds_write_b32 v21, v25")
    a("ds_write_b32 v21, v27 offset:576")
    a("s_mov_b64 exec, s[46:47]")
    a("s_waitcnt vmcnt(0) lgkmcnt(0)")
    a("s_barrier")
    lstamp()
    lstamp_store()
    a("s_endpgm")

    a(".p2align 6")
    a.label("L_xloader")
    a.c("L2 prefetch addresses: W pair m: lane<54: tap*TAPB + (64m+2i)*1152 + rem*128 ; X line n: row (64cb+l)")
    a("v_mul_u32_u24 v8, 3641, v%d" % V_LANE)
    a("v_lshrrev_b32 v8, 16, v8")
    a("v_mul_u32_u24 v9, 18, v8")
    a("v_sub_u32 v9, v%d, v9" % V_LANE)
    a("s_mov_b32 s36, %d" % TAPB)
    a("v_mul_lo_u32 v8, v8, s36")
    a("v_lshl_add_u32 v8, v9, 7, v8")
    a("s_lshr_b32 s37, s2, 3")
    a("s_mul_i32 s37, s37, %d" % (2 * ROWB))
    a("v_mul_u32_u24 v9, %d, v%d" % (ROWB, V_LANE))
    a("s_mul_i32 s38, s%d, %d" % (S_CB, 64 * ROWB))
    a("s_add_u32 s38, s38, s%d" % S_ROW)
    a("s_add_u32 s38, s38, 128")
    a("s_mov_b32 s26, %d" % WBYTES)
    a("s_mov_b32 s27, 0x20000")
    a("s_waitcnt lgkmcnt(0)")
    a("s_mov_b32 s20, s4")
    a("s_and_b32 s21, s5, 0xffff")
    a("s_mov_b32 s24, s6")
    a("s_and_b32 s25, s7, 0xffff")

    def pf_w():
        a("buffer_load_dword v10, v8, s[24:27], s37 offen")
        a("s_add_u32 s37, s37, %d" % (64 * ROWB))

    def pf_x():
        a("buffer_load_dword v11, v9, s[20:23], s38 offen")
        a("s_add_u32 s38, s38, 128")

    if opt.pfw0:
        pf_w()
    else:
        a("s_add_u32 s37, s37, %d" % (64 * ROWB))
    a.c("zero rows: r = (l>>3) + 8k < 33 at r*XBLK + (l&7)*16")
    a("v_lshrrev_b32 v1, 3, v%d" % V_LANE)
    a("v_mul_u32_u24 v1, %d, v1" % XBLK)
    a("v_and_b32 v2, 7, v%d" % V_LANE)
    a("v_lshl_add_u32 v1, v2, 4, v1")
    a("v_mov_b64 v[4:5], 0")
    a("v_mov_b64 v[6:7], 0")
    for k in range(4):
        a("ds_write_b128 v1, v[4:7] offset:%d" % (k * 8 * XBLK))
    a("v_add_u32 v1, %d, v1" % (32 * XBLK))
    a("v_cmp_gt_u32 vcc, 8, v%d" % V_LANE)
    a("s_and_saveexec_b64 s[46:47], vcc")
    a("ds_write_b128 v1, v[4:7]")
    a("s_mov_b64 exec, s[46:47]")
    a("s_add_u32 s%d, s%d, 128" % (S_SOFF, S_ROW))
    a("s_mov_b32 s%d, %d" % (S_WS, XBUFB + 128))
    a("s_mov_b32 s%d, %d" % (S_XT, (-XBUFB) & 0xffffffff))
    a("s_waitcnt lgkmcnt(0)")
    lstamp_init()
    lstamp()

    xl = [0]

    def xissue(ngroups, first, last):
        lab = "L_xi%d" % xl[0]
        xl[0] += 1
        if first:
            if opt.rotx:
                a("s_mov_b32 s%d, s%d" % (S_T0, S_CB))
            else:
                a("s_mov_b32 s%d, 0" % S_T0)
        a("s_mov_b32 s%d, %d" % (S_T1, ngroups))
        a.label(lab)
        a("s_mul_i32 s%d, s%d, %d" % (S_T2, S_T0, 4 * XBLK))
        a("s_add_u32 m0, s%d, s%d" % (S_T2, S_WS))
        a("s_mul_i32 s%d, s%d, %d" % (S_T2, S_T0, 64 * ROWB))
        a("s_add_u32 s%d, s%d, s%d" % (S_T2, S_T2, S_SOFF))
        for n in range(8):
            a("buffer_load_dwordx4 v%d, s[20:23], s%d offen lds" % (V_XD, S_T2))
            if n < 7:
                a("s_add_u32 m0, m0, %d" % (1024 if n % 2 == 0 else XBLK - 1024))
                a("s_add_u32 s%d, s%d, %d" % (S_T2, S_T2, 8 * ROWB))
        a("s_add_u32 s%d, s%d, 1" % (S_T0, S_T0))
        a("s_and_b32 s%d, s%d, 3" % (S_T0, S_T0))
        a("s_sub_u32 s%d, s%d, 1" % (S_T1, S_T1))
        a("s_cmp_lg_u32 s%d, 0" % S_T1)
        a("s_cbranch_scc1 %s" % lab)
        if last:
            a("s_add_u32 s%d, s%d, s%d" % (S_WS, S_WS, S_XT))
            a("s_sub_u32 s%d, 0, s%d" % (S_XT, S_XT))
            a("s_add_u32 s%d, s%d, 128" % (S_SOFF, S_SOFF))

    a("s_waitcnt vmcnt(0)")
    lstamp()
    pf_w()
    a("s_barrier")
    pf_x()
    pf_w()
    if opt.pfx2 == 0:
        pf_x()
    if opt.x1a:
        a("s_waitcnt vmcnt(%d)" % (2 if opt.pfx2 == 0 else 1))
        xissue(opt.x1a, True, False)
    lstamp()
    a("s_barrier")
    xissue(4 - opt.x1a, opt.x1a == 0, True)
    lstamp()
    if opt.pfx2 == 1:
        pf_x()
        a("s_waitcnt vmcnt(1)")
    else:
        a("s_waitcnt vmcnt(0)")
    lstamp()
    a("s_barrier")
    a("s_mov_b32 s%d, 7" % S_CNT)
    a.label("L_xloop")
    xissue(opt.xg1, True, opt.xg1 == 4)
    lstamp()
    a("s_barrier")
    if opt.xg1 < 4:
        xissue(4 - opt.xg1, False, True)
    if opt.pf:
        a("s_cmp_le_u32 s%d, %d" % (S_CNT, opt.pf))
        a("s_cbranch_scc1 L_nopf")
        pf_x()
        pf_w()
        a("s_waitcnt vmcnt(2)")
        a("s_branch L_pfdone")
        a.label("L_nopf")
    a("s_waitcnt vmcnt(0)")
    a.label("L_pfdone")
    lstamp()
    a("s_barrier")
    a("s_sub_u32 s%d, s%d, 1" % (S_CNT, S_CNT))
    a("s_cmp_lg_u32 s%d, 0" % S_CNT)
    a("s_cbranch_scc1 L_xloop")
    lstamp_store()
    a.label("L_end")
    a("s_endpgm")

    out = HEADER
    out += "; @launch grid=(256,1,1) block=(512,1,1) lds=%d\n" % LDS_BYTES
    out += '.amdgcn_target "amdgcn-amd-amdhsa--gfx950"\n.text\n.globl %s\n.p2align 8\n.type %s,@function\n' % (KNAME, KNAME)
    out += a.text()
    out += """.section .rodata,"a"
.p2align 6
.amdhsa_kernel %s
  .amdhsa_next_free_vgpr 256
  .amdhsa_next_free_sgpr 102
  .amdhsa_accum_offset 256
  .amdhsa_group_segment_fixed_size 0
  .amdhsa_kernarg_size 72
  .amdhsa_user_sgpr_count 2
  .amdhsa_user_sgpr_kernarg_segment_ptr 1
  .amdhsa_system_sgpr_workgroup_id_x 1
  .amdhsa_float_denorm_mode_32 3
.end_amdhsa_kernel
""" % KNAME
    return out


if __name__ == "__main__":
    ap = argparse.ArgumentParser()
    ap.add_argument("-o", default="standalone__batchnorm__sampling.s")
    ap.add_argument("--D", type=int, default=5)
    ap.add_argument("--xt0", type=int, default=1)
    ap.add_argument("--prio", type=int, default=3)
    ap.add_argument("--stamp", action="store_true")
    ap.add_argument("--stflag", default="")
    ap.add_argument("--stflag8", default="")
    ap.add_argument("--xg1", type=int, default=2)
    ap.add_argument("--pf", type=int, default=1)
    ap.add_argument("--w1wait", type=int, default=9)
    ap.add_argument("--pfw0", type=int, default=1)
    ap.add_argument("--pfx2", type=int, default=1)
    ap.add_argument("--x1a", type=int, default=0)
    ap.add_argument("--rotx", type=int, default=1)
    opt = ap.parse_args()
    open(opt.o, "w").write(gen(opt))
```

```python
import sys
import argparse

KNAME = "standalone__batchnorm__sampling_kernel"

HEADER = """; Kernarg layout for this problem (72 bytes, ptrs only, base s[0:1]):
"""

XBYTES = 1024 * 16 * 576 * 2
WBYTES = 3 * 576 * 576 * 2
ROWB = 1152
TAPB = 576 * 1152

XBLK = 17 * 128
XBUFB = 16 * XBLK
WRING = 2 * XBUFB + 128
WSLOT = 9216
NW = 10
PARAM = WRING + NW * WSLOT
LDS_BYTES = PARAM + 1152

LOG2E = 0x3FB8AA3B


class Asm:
    def __init__(self):
        self.lines = []

    def __call__(self, s):
        self.lines.append("    " + s)

    def label(self, l):
        self.lines.append(l + ":")

    def c(self, s):
        self.lines.append("    ; " + s)

    def text(self):
        return "\n".join(self.lines) + "\n"


class LdsQ:
    def __init__(self):
        self.q = []

    def issue(self, tag):
        self.q.append(tag)
        assert len(self.q) <= 15, self.q

    def wait(self, tag):
        idx = [i for i, t in enumerate(self.q) if t == tag]
        if not idx:
            return None
        last = idx[-1]
        n = len(self.q) - 1 - last
        self.q = self.q[last + 1:]
        return n


def vr(b, n=4):
    return "v[%d:%d]" % (b, b + n - 1)


def gen(opt):
    a = Asm()
    D = opt.D
    R = 6
    assert D <= R - 1
    ACC = lambda t, i: (t * 4 + i) * 4
    XSET = [144, 160]
    WR = 176
    V_W, V_WL = 200, 201
    V_XA = 202
    V_T0, V_T1, V_T2, V_T3 = 208, 209, 210, 211
    V_LANE = 212
    V_OUT0, V_OUT8, V_PAR = 213, 214, 215
    V_XD = 216
    V_OUT3 = 217

    S_WAVE, S_ROW, S_COL, S_ODD = 48, 49, 50, 57
    S_T0, S_T1, S_T2 = 51, 52, 53
    S_WS, S_CNT, S_SOFF = 54, 55, 56
    S_L2E = 58
    S_XT = 63
    S_CB = 64

    def stamp(idx):
        if opt.stamp:
            a("s_memrealtime s[%d:%d]" % (70 + 2 * idx, 71 + 2 * idx))

    def stampc(idx):
        if opt.stamp:
            a("s_memtime s[%d:%d]" % (70 + 2 * idx, 71 + 2 * idx))

    a.label(KNAME)
    stamp(0)
    a("s_load_dwordx8 s[4:11], s[0:1], 0")
    a("s_load_dwordx4 s[12:15], s[0:1], 32")
    a("s_load_dwordx2 s[16:17], s[0:1], 48")
    if opt.stamp:
        a("s_load_dwordx2 s[18:19], s[0:1], 64")
    a("s_cmp_ge_u32 s2, 256")
    a("s_cbranch_scc1 L_end")
    a("v_lshrrev_b32 v1, 6, v0")
    a("v_and_b32 v%d, 63, v0" % V_LANE)
    a("v_readfirstlane_b32 s%d, v1" % S_WAVE)
    a("s_and_b32 s%d, s2, 7" % S_ROW)
    a("s_lshr_b32 s%d, s2, 5" % S_T0)
    a("s_lshl_b32 s%d, s%d, 3" % (S_ROW, S_ROW))
    a("s_add_u32 s%d, s%d, s%d" % (S_ROW, S_ROW, S_T0))
    a("s_bfe_u32 s%d, s2, 0x20003" % S_CB)
    a("s_mul_i32 s%d, s%d, %d" % (S_ROW, S_ROW, 256 * ROWB))
    a("s_mul_i32 s%d, s%d, 288" % (S_COL, S_CB))
    a("s_sub_u32 s%d, 0, s%d" % (S_ODD, S_CB))
    a("s_and_b32 s%d, s%d, 3" % (S_ODD, S_ODD))
    a("s_mov_b32 s22, %d" % XBYTES)
    a("s_mov_b32 s23, 0x20000")
    a("s_cmp_ge_u32 s%d, 4" % S_WAVE)
    a("s_cbranch_scc0 L_xaddr")
    a("s_cmp_lg_u32 s%d, 7" % S_WAVE)
    a("s_cbranch_scc1 L_wloader")
    a.label("L_xaddr")
    a("v_lshrrev_b32 v%d, 3, v%d" % (V_T0, V_LANE))
    a("v_mul_u32_u24 v%d, %d, v%d" % (V_T0, ROWB, V_T0))
    a("v_and_b32 v%d, 7, v%d" % (V_T1, V_LANE))
    a("v_lshrrev_b32 v%d, 4, v%d" % (V_T3, V_LANE))
    a("v_lshlrev_b32 v%d, 1, v%d" % (V_T2, V_T3))
    a("v_xor_b32 v%d, v%d, v%d" % (V_T1, V_T1, V_T2))
    a("v_lshl_add_u32 v%d, v%d, 4, v%d" % (V_XD, V_T1, V_T0))
    a("s_cmp_eq_u32 s%d, 7" % S_WAVE)
    a("s_cbranch_scc1 L_xloader")

    a.c("compute wave: DMA own X rows, chunk 0")
    a("s_mul_i32 s%d, s%d, %d" % (S_T0, S_WAVE, 64 * ROWB))
    a("s_add_u32 s%d, s%d, s%d" % (S_SOFF, S_ROW, S_T0))
    a("s_mul_i32 s%d, s%d, %d" % (S_T1, S_WAVE, 4 * XBLK))
    a("s_add_u32 m0, s%d, 128" % S_T1)
    a("s_mov_b32 s%d, s%d" % (S_T2, S_SOFF))
    a("s_waitcnt lgkmcnt(0)")
    a("s_mov_b32 s20, s4")
    a("s_and_b32 s21, s5, 0xffff")
    for n in range(8):
        a("buffer_load_dwordx4 v%d, s[20:23], s%d offen lds" % (V_XD, S_T2))
        if n < 7:
            a("s_add_u32 m0, m0, %d" % (1024 if n % 2 == 0 else XBLK - 1024))
            a("s_add_u32 s%d, s%d, %d" % (S_T2, S_T2, 8 * ROWB))
    a("s_mov_b32 s28, s16")
    a("s_and_b32 s29, s17, 0xffff")
    a("s_mov_b32 s30, %d" % XBYTES)
    a("s_mov_b32 s31, 0x20000")
    a("s_mov_b32 s%d, 0x%x" % (S_L2E, LOG2E))
    a("s_mov_b32 s%d, 0x%x" % (S_L2E + 1, LOG2E))
    a("s_mov_b32 s%d, %d" % (S_XT, XBUFB))
    a("v_and_b32 v%d, 15, v%d" % (V_T2, V_LANE))
    for tap in range(3):
        va = V_XA + tap
        a("v_add_u32 v%d, %d, v%d" % (V_T0, tap + 15, V_T2))
        a("v_and_b32 v%d, 6, v%d" % (V_T0, V_T0))
        a("v_xor_b32 v%d, v%d, v%d" % (V_T0, V_T0, V_T3))
        a("v_lshlrev_b32 v%d, 4, v%d" % (V_T0, V_T0))
        a("v_lshl_add_u32 v%d, v%d, 7, v%d" % (V_T0, V_T2, V_T0))
        a("s_add_u32 s%d, s%d, %d" % (S_T0, S_T1, tap * 128))
        a("v_add_u32 v%d, s%d, v%d" % (va, S_T0, V_T0))
        a("v_xor_b32 v%d, 64, v%d" % (va + 3, va))
    a("v_mul_u32_u24 v%d, %d, v%d" % (V_T0, ROWB, V_T2))
    a("v_lshrrev_b32 v%d, 1, v%d" % (V_PAR, V_T3))
    a("v_lshl_add_u32 v%d, v%d, 4, v%d" % (V_T0, V_PAR, V_T0))
    a("v_and_b32 v%d, 1, v%d" % (V_PAR, V_T3))
    a("v_add_u32 v%d, s%d, v%d" % (V_T1, S_ODD, V_PAR))
    a("v_lshl_add_u32 v%d, v%d, 5, v%d" % (V_OUT0, V_T1, V_T0))
    a("v_add_u32 v%d, 6, v%d" % (V_T1, V_T1))
    a("v_subrev_u32 v%d, 9, v%d" % (V_OUT3, V_T1))
    a("v_min_u32 v%d, v%d, v%d" % (V_T1, V_T1, V_OUT3))
    a("v_lshl_add_u32 v%d, v%d, 5, v%d" % (V_OUT3, V_T1, V_T0))
    a("v_mul_u32_u24 v%d, %d, v%d" % (V_OUT8, 16 * ROWB, V_PAR))
    a("v_add_u32 v%d, v%d, v%d" % (V_OUT8, V_OUT8, V_T0))
    a("s_add_u32 s%d, s%d, 8" % (S_T0, S_ODD))
    a("s_sub_u32 s%d, s%d, 9" % (S_T2, S_T0))
    a("s_min_u32 s%d, s%d, s%d" % (S_T0, S_T0, S_T2))
    a("s_lshl_b32 s%d, s%d, 5" % (S_T0, S_T0))
    a("v_add_u32 v%d, s%d, v%d" % (V_OUT8, S_T0, V_OUT8))
    a("v_lshlrev_b32 v%d, 4, v%d" % (V_PAR, V_T3))
    a("v_add_u32 v%d, %d, v%d" % (V_PAR, PARAM, V_PAR))
    a("v_lshrrev_b32 v%d, 5, v%d" % (V_WL, V_LANE))
    a("v_lshlrev_b32 v%d, 4, v%d" % (V_WL, V_WL))
    a("v_bfe_u32 v%d, v%d, 4, 1" % (V_T2, V_LANE))
    a("v_lshl_add_u32 v%d, v%d, 2, v%d" % (V_WL, V_T2, V_WL))
    a("v_bfe_u32 v%d, v%d, 2, 2" % (V_T2, V_LANE))
    a("v_add_u32 v%d, v%d, v%d" % (V_WL, V_WL, V_T2))
    a("v_mul_u32_u24 v%d, 288, v%d" % (V_WL, V_WL))
    a("v_and_b32 v%d, 3, v%d" % (V_T2, V_LANE))
    a("v_lshl_add_u32 v%d, v%d, 3, v%d" % (V_WL, V_T2, V_WL))
    a("s_mov_b32 s%d, %d" % (S_WS, WRING))
    a("v_add_u32 v%d, s%d, v%d" % (V_W, S_WS, V_WL))
    for r in range(0, 144, 2):
        a("v_mov_b64 v[%d:%d], 0" % (r, r + 1))
    a("s_mov_b32 s%d, 9" % S_CNT)
    a("s_waitcnt vmcnt(0)")
    stamp(1)
    a("s_setprio %d" % opt.prio)
    a("s_barrier")
    stamp(2)
    stampc(5)

    q = LdsQ()

    def wread(f):
        t = f % 9
        base = WR + (f % R) * 4
        res = []
        for h in range(2):
            res.append(("ds_read_b64_tr_b16 v[%d:%d], v%d offset:%d" % (base + 2 * h, base + 2 * h + 1, V_W, h * 2304 + t * 32), ("W", f)))
        return res

    def xread(gks):
        ks = gks % 6
        va = V_XA + ks
        dst = XSET[gks % 2]
        return [("ds_read_b128 %s, v%d offset:%d" % (vr(dst + 4 * i), va, i * XBLK), ("X", gks)) for i in range(4)]

    if opt.stamp:
        a("s_waitcnt lgkmcnt(0)")
    for ins, tag in wread(0) + xread(0):
        a(ins)
        q.issue(tag)
    a("v_add_u32 v%d, s%d, v%d" % (V_XA, S_XT, V_XA))
    for f in range(1, D):
        for ins, tag in wread(f):
            a(ins)
            q.issue(tag)
    n = q.wait(("X", 0))
    a("s_waitcnt lgkmcnt(%d)" % n)

    XT0 = opt.xt0

    def body(it):
        out = []

        def emit(s):
            out.append("    " + s)

        def emit_lds(ins, tag):
            emit(ins)
            q.issue(tag)

        def wait(tag):
            n = q.wait(tag)
            if n is not None:
                emit("s_waitcnt lgkmcnt(%d)" % n)

        for ks in range(6):
            ph = ks % 3
            gks = it * 6 + ks
            xs = XSET[gks % 2]
            for t in range(9):
                f = gks * 9 + t
                fill = []
                xr = xread(gks + 1)
                x0 = XT0 if ph != 2 else max(XT0, 9 - D)
                xl = []
                per_g = 1 if ph != 2 else 2
                ng = 4 // per_g
                if x0 <= t < x0 + ng:
                    for ins, tag in xr[(t - x0) * per_g:(t - x0 + 1) * per_g]:
                        xl.append(("l", ins, tag))
                if t == x0 + ng:
                    va = V_XA + (ks + 1) % 6
                    if ks == 5:
                        fill.append(("s", "s_sub_u32 s%d, 0, s%d" % (S_XT, S_XT)))
                    fill.append(("v", "v_add_u32 v%d, s%d, v%d" % (va, S_XT, va)))
                nf = f + D
                rd = [("l", ins, tag) for ins, tag in wread(nf)]
                cross = (nf % 9 == 0)
                if (nf + 1) % 9 == 0:
                    fill.append(("s", "s_add_u32 s%d, s%d, %d" % (S_WS, S_WS, WSLOT)))
                    fill.append(("s", "s_cmp_eq_u32 s%d, %d" % (S_WS, WRING + NW * WSLOT)))
                    fill.append(("s", "s_cselect_b32 s%d, %d, s%d" % (S_WS, WRING, S_WS)))
                    fill.append(("v", "v_add_u32 v%d, s%d, v%d" % (V_W, S_WS, V_WL)))
                wait(("W", f))
                if t == 0:
                    wait(("X", gks))
                seq = []
                if cross and ph == 2:
                    seq.append(("bar", 0))
                seq += rd + xl + fill
                if ks == 5 and t == 8:
                    seq.append(("s", "s_sub_u32 s%d, s%d, 1" % (S_CNT, S_CNT)))
                    seq.append(("s", "s_cmp_lg_u32 s%d, 0" % S_CNT))
                gaps = [[], [], [], []]
                n = len(seq)
                per = [(n + 3 - g) // 4 for g in range(4)]
                k = 0
                for g in range(4):
                    gaps[g] = seq[k:k + per[g]]
                    k += per[g]
                for i in range(4):
                    wf = WR + (f % R) * 4
                    emit("v_mfma_f32_16x16x32_bf16 %s, %s, %s, %s" % (vr(ACC(t, i)), vr(wf), vr(xs + 4 * i), vr(ACC(t, i))))
                    for it_ in gaps[i]:
                        if it_[0] == "l":
                            emit_lds(it_[1], it_[2])
                        elif it_[0] == "bar":
                            emit("s_barrier")
                        else:
                            emit(it_[1])
        return out

    b0 = body(0)
    b1 = body(1)
    b2 = body(2)
    assert b1 == b2
    a(".p2align 6")
    a.label("L_loop")
    a.lines += b1
    a("s_cbranch_scc1 L_loop")
    stampc(6)
    stamp(3)

    a.c("epilogue")
    P0 = 144
    E0 = 176
    SD = 184
    a("s_add_u32 s%d, s%d, s%d" % (S_SOFF, S_SOFF, S_COL))
    a("s_waitcnt lgkmcnt(0)")

    PB = [144, 160, 220, 236, 0]

    def pread(p):
        base = PB[p]
        tiles = [2 * p, 2 * p + 1] if p < 4 else [8]
        for k, t in enumerate(tiles):
            a("ds_read_b128 %s, v%d offset:%d" % (vr(base + 8 * k), V_PAR, t * 64))
            a("ds_read_b128 %s, v%d offset:%d" % (vr(base + 8 * k + 4), V_PAR, 576 + t * 64))
        return len(tiles) * 2

    pread(0)
    pread(1)
    pread(2)
    sidx = 0

    def proc(accA, accB, parA, parB, voff, imm, soff, flag):
        nonlocal sidx
        sd = SD + (sidx % 4) * 4
        sidx += 1
        for acc, par in ((accA, parA), (accB, parB)):
            for h in range(2):
                a("v_pk_fma_f32 v[%d:%d], v[%d:%d], v[%d:%d], v[%d:%d]" % (
                    acc + 2 * h, acc + 2 * h + 1, acc + 2 * h, acc + 2 * h + 1,
                    par + 2 * h, par + 2 * h + 1, par + 4 + 2 * h, par + 4 + 2 * h + 1))
        for k, acc in enumerate((accA, accB)):
            for r in range(4):
                a("v_exp_f32_e64 v%d, -v%d" % (E0 + 4 * k + r, acc + r))
        for k in range(4):
            a("v_pk_fma_f32 v[%d:%d], v[%d:%d], s[%d:%d], s[%d:%d]" % (
                E0 + 2 * k, E0 + 2 * k + 1, E0 + 2 * k, E0 + 2 * k + 1, S_L2E, S_L2E + 1, S_L2E, S_L2E + 1))
        for k in range(8):
            a("v_rcp_f32 v%d, v%d" % (E0 + k, E0 + k))
        for k, acc in enumerate((accA, accB)):
            for h in range(2):
                a("v_pk_mul_f32 v[%d:%d], v[%d:%d], v[%d:%d]" % (
                    E0 + 4 * k + 2 * h, E0 + 4 * k + 2 * h + 1, acc + 2 * h, acc + 2 * h + 1,
                    E0 + 4 * k + 2 * h, E0 + 4 * k + 2 * h + 1))
        a("v_cvt_pk_bf16_f32 v%d, v%d, v%d" % (sd + 0, E0 + 0, E0 + 1))
        a("v_cvt_pk_bf16_f32 v%d, v%d, v%d" % (sd + 2, E0 + 4, E0 + 5))
        a("v_cvt_pk_bf16_f32 v%d, v%d, v%d" % (sd + 1, E0 + 2, E0 + 3))
        a("v_cvt_pk_bf16_f32 v%d, v%d, v%d" % (sd + 3, E0 + 6, E0 + 7))
        a("s_nop 0")
        a("v_permlane16_swap_b32 v%d, v%d" % (sd + 0, sd + 2))
        a("v_permlane16_swap_b32 v%d, v%d" % (sd + 1, sd + 3))
        a("buffer_store_dwordx4 %s, v%d, s[28:31], s%d offen offset:%d %s" % (vr(sd), voff, soff, imm, flag))

    a("s_add_u32 s60, s%d, %d" % (S_SOFF, 16 * ROWB))
    a("s_add_u32 s61, s%d, %d" % (S_SOFF, 32 * ROWB))
    a("s_add_u32 s62, s%d, %d" % (S_SOFF, 48 * ROWB))
    soffs = [S_SOFF, 60, 61, 62]
    def pair(p, i):
        fl = opt.stflag if p < opt.stn else ""
        proc(ACC(2 * p, i), ACC(2 * p + 1, i), PB[p], PB[p] + 8, V_OUT0 if p < 3 else V_OUT3, p * 64 if p < 3 else 0, soffs[i], fl)

    a("s_waitcnt lgkmcnt(8)")
    pair(0, 0)
    a("s_waitcnt lgkmcnt(4)")
    pread(3)
    pair(1, 0)
    for i in range(1, 4):
        pair(0, i)
        if i == 1:
            pread(4)
        pair(1, i)
    a("s_waitcnt lgkmcnt(0)")
    for i in range(4):
        pair(2, i)
        pair(3, i)
    for i in (0, 2):
        proc(ACC(8, i), ACC(8, i + 1), PB[4], PB[4], V_OUT8, 0, soffs[i], opt.stflag8)
    if opt.stamp:
        a("s_waitcnt vmcnt(0)")
        stamp(4)
        a("s_waitcnt lgkmcnt(0)")
        a("s_mov_b32 s32, s18")
        a("s_and_b32 s33, s19, 0xffff")
        a("s_mov_b32 s34, 0x100000")
        a("s_mov_b32 s35, 0x20000")
        a("s_lshl_b32 s36, s2, 3")
        a("s_add_u32 s36, s36, s%d" % S_WAVE)
        a("s_lshl_b32 s36, s36, 6")
        a("s_getreg_b32 s84, hwreg(HW_REG_HW_ID)")
        a("s_getreg_b32 s85, hwreg(HW_REG_XCC_ID)")
        for k in range(16):
            a("v_mov_b32 v%d, s%d" % (k, 70 + k))
        a("v_mov_b32 v16, 0")
        a("v_cmp_eq_u32 vcc, 0, v%d" % V_LANE)
        a("s_and_saveexec_b64 s[40:41], vcc")
        for k in range(4):
            a("buffer_store_dwordx4 v[%d:%d], v16, s[32:35], s36 offen offset:%d" % (4 * k, 4 * k + 3, 16 * k))
    a("s_endpgm")

    def lstamp():
        if opt.stamp:
            a("s_memtime s[90:91]")
            a("s_memrealtime s[92:93]")
            a("s_waitcnt lgkmcnt(0)")
            a("s_mov_b32 m0, s69")
            a("s_nop 0")
            a("v_writelane_b32 v40, s90, m0")
            a("v_writelane_b32 v41, s92, m0")
            a("s_add_u32 s69, s69, 1")

    def lstamp_init():
        if opt.stamp:
            a("v_mov_b32 v40, 0")
            a("v_mov_b32 v41, s70")
            a("s_mov_b32 s69, 1")

    def lstamp_store():
        if opt.stamp:
            a("s_mov_b32 s32, s18")
            a("s_and_b32 s33, s19, 0xffff")
            a("s_mov_b32 s34, 0x1000000")
            a("s_mov_b32 s35, 0x20000")
            a("s_lshl_b32 s36, s2, 3")
            a("s_add_u32 s36, s36, s%d" % S_WAVE)
            a("s_lshl_b32 s36, s36, 9")
            a("s_add_u32 s36, s36, 0x100000")
            a("v_lshlrev_b32 v42, 3, v%d" % V_LANE)
            a("buffer_store_dwordx2 v[40:41], v42, s[32:35], s36 offen")

    a(".p2align 6")
    a.label("L_wloader")
    a.c("W loader j = wave-4: pieces 3j..3j+2 of every k-step slot")
    a("s_sub_u32 s%d, s%d, 4" % (S_T0, S_WAVE))
    a("s_mul_i32 s%d, s%d, 192" % (S_T1, S_T0))
    a("s_lshl_b32 s%d, s%d, 1" % (S_T2, S_ODD))
    a("v_add_u32 v1, s%d, v%d" % (S_T1, V_LANE))
    a("s_mov_b32 s26, %d" % WBYTES)
    a("s_mov_b32 s27, 0x20000")
    a("s_movk_i32 s36, 288")
    a("s_movk_i32 s37, 0x34")
    a("s_movk_i32 s38, %d" % ROWB)
    for k in range(3):
        if k:
            a("v_add_u32 v1, 64, v1")
        a("v_add_u32 v2, s%d, v1" % S_T2)
        a("v_mul_u32_u24 v3, 3641, v1")
        a("v_mul_u32_u24 v4, 3641, v2")
        a("v_lshrrev_b32 v3, 16, v3")
        a("v_lshrrev_b32 v4, 16, v4")
        a("v_bfe_u32 v5, v3, 2, 2")
        a("v_lshlrev_b32 v5, 1, v5")
        a("v_bfe_i32 v5, s37, v5, 2")
        a("v_lshl_add_u32 v3, v5, 2, v3")
        a("v_lshlrev_b32 v2, 4, v2")
        a("v_mad_u32_u24 v2, v3, s38, v2")
        a("v_mul_u32_u24 v4, s36, v4")
        a("v_sub_u32 v%d, v2, v4" % (10 + k))
        if k:
            a("v_subrev_u32 v%d, %d, v%d" % (10 + k, 1024 * k, 10 + k))
    a("s_mov_b32 s%d, s%d" % (S_SOFF, S_COL))
    a("s_mul_i32 s39, s%d, 3072" % S_T0)
    a("s_add_u32 s39, s39, %d" % WRING)
    a("s_add_u32 s40, s39, %d" % (NW * WSLOT))
    a("s_mov_b32 s%d, s39" % S_WS)
    a("s_waitcnt lgkmcnt(0)")
    a("s_mov_b32 s24, s6")
    a("s_and_b32 s25, s7, 0xffff")
    lstamp_init()
    lstamp()

    def wissue():
        for tap in range(3):
            a("s_mov_b32 m0, s%d" % S_WS)
            if tap:
                a("s_add_u32 s%d, s%d, %d" % (S_T2, S_SOFF, tap * TAPB))
            else:
                a("s_mov_b32 s%d, s%d" % (S_T2, S_SOFF))
            for k in range(3):
                a("buffer_load_dwordx4 v%d, s[24:27], s%d offen offset:%d lds" % (10 + k, S_T2, 1024 * k))
            a("s_add_u32 s%d, s%d, %d" % (S_WS, S_WS, WSLOT))
            a("s_cmp_eq_u32 s%d, s40" % S_WS)
            a("s_cselect_b32 s%d, s39, s%d" % (S_WS, S_WS))
        a("s_add_u32 s%d, s%d, %d" % (S_SOFF, S_SOFF, 32 * ROWB))

    wissue()
    lstamp()
    a("s_waitcnt vmcnt(%d)" % opt.w1wait)
    wissue()
    lstamp()
    a("s_waitcnt vmcnt(9)")
    lstamp()
    a("s_barrier")
    lstamp()
    wissue()
    a("s_lshl_b32 s%d, s%d, 6" % (S_T1, S_T0))
    a("v_add_u32 v20, s%d, v%d" % (S_T1, V_LANE))
    a("s_lshl_b32 s%d, s%d, 4" % (S_T1, S_ODD))
    a("v_add_u32 v21, s%d, v20" % S_T1)
    a("v_subrev_u32 v22, 144, v21")
    a("v_min_u32 v21, v21, v22")
    a("v_lshlrev_b32 v21, 1, v21")
    a("v_add_u32 v21, s%d, v21" % S_COL)
    PS = [28, 32, 60, 96]
    for k in range(4):
        a("s_mov_b32 s%d, s%d" % (PS[k], 8 + 2 * k))
        a("s_and_b32 s%d, s%d, 0xffff" % (PS[k] + 1, 9 + 2 * k))
        a("s_mov_b32 s%d, 1152" % (PS[k] + 2))
        a("s_mov_b32 s%d, 0x20000" % (PS[k] + 3))
    for k in range(4):
        a("buffer_load_ushort v%d, v21, s[%d:%d], 0 offen" % (24 + k, PS[k], PS[k] + 3))
    a("s_waitcnt vmcnt(13)")
    a("s_barrier")
    lstamp()
    a("s_mov_b32 s%d, 15" % S_CNT)
    a.label("L_wloop")
    wissue()
    a("s_waitcnt vmcnt(9)")
    a("s_barrier")
    lstamp()
    a("s_sub_u32 s%d, s%d, 1" % (S_CNT, S_CNT))
    a("s_cmp_lg_u32 s%d, 0" % S_CNT)
    a("s_cbranch_scc1 L_wloop")
    a.c("BN parameters: v24=mean v25=var v26=g v27=b (bf16 bits)")
    for k in range(4):
        a("v_lshlrev_b32 v%d, 16, v%d" % (24 + k, 24 + k))
    a("v_add_f32 v25, 0x3727c5ac, v25")
    a("v_cvt_pk_bf16_f32 v25, v25, v25")
    a("v_lshlrev_b32 v25, 16, v25")
    a("v_sqrt_f32 v25, v25")
    a("s_nop 0")
    a("v_cvt_pk_bf16_f32 v25, v25, v25")
    a("v_lshlrev_b32 v25, 16, v25")
    a("v_rcp_f32 v25, v25")
    a("s_nop 0")
    a("v_cvt_pk_bf16_f32 v25, v25, v25")
    a("v_lshlrev_b32 v25, 16, v25")
    a("v_mul_f32 v25, v26, v25")
    a("v_cvt_pk_bf16_f32 v25, v25, v25")
    a("v_lshlrev_b32 v25, 16, v25")
    a("v_fma_f32 v27, -v24, v25, v27")
    a("v_mul_f32 v25, 0x%x, v25" % LOG2E)
    a("v_mul_f32 v27, 0x%x, v27" % LOG2E)
    a("v_lshlrev_b32 v21, 2, v20")
    a("v_add_u32 v21, %d, v21" % PARAM)
    a("v_cmp_gt_u32 vcc, 144, v20")
    a("s_and_saveexec_b64 s[46:47], vcc")
    a("ds_write_b32 v21, v25")
    a("ds_write_b32 v21, v27 offset:576")
    a("s_mov_b64 exec, s[46:47]")
    a("s_waitcnt vmcnt(0) lgkmcnt(0)")
    a("s_barrier")
    lstamp()
    lstamp_store()
    a("s_endpgm")

    a(".p2align 6")
    a.label("L_xloader")
    a.c("L2 prefetch addresses: W pair m: lane<54: tap*TAPB + (64m+2i)*1152 + rem*128 ; X line n: row (64cb+l)")
    a("v_mul_u32_u24 v8, 3641, v%d" % V_LANE)
    a("v_lshrrev_b32 v8, 16, v8")
    a("v_mul_u32_u24 v9, 18, v8")
    a("v_sub_u32 v9, v%d, v9" % V_LANE)
    a("s_mov_b32 s36, %d" % TAPB)
    a("v_mul_lo_u32 v8, v8, s36")
    a("v_lshl_add_u32 v8, v9, 7, v8")
    a("s_lshr_b32 s37, s2, 3")
    a("s_mul_i32 s37, s37, %d" % (2 * ROWB))
    a("v_mul_u32_u24 v9, %d, v%d" % (ROWB, V_LANE))
    a("s_mul_i32 s38, s%d, %d" % (S_CB, 64 * ROWB))
    a("s_add_u32 s38, s38, s%d" % S_ROW)
    a("s_add_u32 s38, s38, 128")
    a("s_mov_b32 s26, %d" % WBYTES)
    a("s_mov_b32 s27, 0x20000")
    a("s_waitcnt lgkmcnt(0)")
    a("s_mov_b32 s20, s4")
    a("s_and_b32 s21, s5, 0xffff")
    a("s_mov_b32 s24, s6")
    a("s_and_b32 s25, s7, 0xffff")

    def pf_w():
        a("buffer_load_dword v10, v8, s[24:27], s37 offen")
        a("s_add_u32 s37, s37, %d" % (64 * ROWB))

    def pf_x():
        a("buffer_load_dword v11, v9, s[20:23], s38 offen")
        a("s_add_u32 s38, s38, 128")

    if opt.pfw0:
        pf_w()
    else:
        a("s_add_u32 s37, s37, %d" % (64 * ROWB))
    a.c("zero rows: r = (l>>3) + 8k < 33 at r*XBLK + (l&7)*16")
    a("v_lshrrev_b32 v1, 3, v%d" % V_LANE)
    a("v_mul_u32_u24 v1, %d, v1" % XBLK)
    a("v_and_b32 v2, 7, v%d" % V_LANE)
    a("v_lshl_add_u32 v1, v2, 4, v1")
    a("v_mov_b64 v[4:5], 0")
    a("v_mov_b64 v[6:7], 0")
    for k in range(4):
        a("ds_write_b128 v1, v[4:7] offset:%d" % (k * 8 * XBLK))
    a("v_add_u32 v1, %d, v1" % (32 * XBLK))
    a("v_cmp_gt_u32 vcc, 8, v%d" % V_LANE)
    a("s_and_saveexec_b64 s[46:47], vcc")
    a("ds_write_b128 v1, v[4:7]")
    a("s_mov_b64 exec, s[46:47]")
    a("s_add_u32 s%d, s%d, 128" % (S_SOFF, S_ROW))
    a("s_mov_b32 s%d, %d" % (S_WS, XBUFB + 128))
    a("s_mov_b32 s%d, %d" % (S_XT, (-XBUFB) & 0xffffffff))
    a("s_waitcnt lgkmcnt(0)")
    lstamp_init()
    lstamp()

    xl = [0]

    def xissue(ngroups, first, last):
        lab = "L_xi%d" % xl[0]
        xl[0] += 1
        if first:
            if opt.rotx:
                a("s_mov_b32 s%d, s%d" % (S_T0, S_CB))
            else:
                a("s_mov_b32 s%d, 0" % S_T0)
        a("s_mov_b32 s%d, %d" % (S_T1, ngroups))
        a.label(lab)
        a("s_mul_i32 s%d, s%d, %d" % (S_T2, S_T0, 4 * XBLK))
        a("s_add_u32 m0, s%d, s%d" % (S_T2, S_WS))
        a("s_mul_i32 s%d, s%d, %d" % (S_T2, S_T0, 64 * ROWB))
        a("s_add_u32 s%d, s%d, s%d" % (S_T2, S_T2, S_SOFF))
        for n in range(8):
            a("buffer_load_dwordx4 v%d, s[20:23], s%d offen lds" % (V_XD, S_T2))
            if n < 7:
                a("s_add_u32 m0, m0, %d" % (1024 if n % 2 == 0 else XBLK - 1024))
                a("s_add_u32 s%d, s%d, %d" % (S_T2, S_T2, 8 * ROWB))
        a("s_add_u32 s%d, s%d, 1" % (S_T0, S_T0))
        a("s_and_b32 s%d, s%d, 3" % (S_T0, S_T0))
        a("s_sub_u32 s%d, s%d, 1" % (S_T1, S_T1))
        a("s_cmp_lg_u32 s%d, 0" % S_T1)
        a("s_cbranch_scc1 %s" % lab)
        if last:
            a("s_add_u32 s%d, s%d, s%d" % (S_WS, S_WS, S_XT))
            a("s_sub_u32 s%d, 0, s%d" % (S_XT, S_XT))
            a("s_add_u32 s%d, s%d, 128" % (S_SOFF, S_SOFF))

    a("s_waitcnt vmcnt(0)")
    lstamp()
    pf_w()
    a("s_barrier")
    pf_x()
    pf_w()
    if opt.pfx2 == 0:
        pf_x()
    if opt.x1a:
        a("s_waitcnt vmcnt(%d)" % (2 if opt.pfx2 == 0 else 1))
        xissue(opt.x1a, True, False)
    lstamp()
    a("s_barrier")
    xissue(4 - opt.x1a, opt.x1a == 0, True)
    lstamp()
    if opt.pfx2 == 1:
        pf_x()
        a("s_waitcnt vmcnt(1)")
    else:
        a("s_waitcnt vmcnt(0)")
    lstamp()
    a("s_barrier")
    a("s_mov_b32 s%d, 7" % S_CNT)
    a.label("L_xloop")
    xissue(opt.xg1, True, opt.xg1 == 4)
    lstamp()
    a("s_barrier")
    if opt.xg1 < 4:
        xissue(4 - opt.xg1, False, True)
    if opt.pf:
        a("s_cmp_le_u32 s%d, %d" % (S_CNT, opt.pf))
        a("s_cbranch_scc1 L_nopf")
        pf_x()
        pf_w()
        a("s_waitcnt vmcnt(2)")
        a("s_branch L_pfdone")
        a.label("L_nopf")
    a("s_waitcnt vmcnt(0)")
    a.label("L_pfdone")
    lstamp()
    a("s_barrier")
    a("s_sub_u32 s%d, s%d, 1" % (S_CNT, S_CNT))
    a("s_cmp_lg_u32 s%d, 0" % S_CNT)
    a("s_cbranch_scc1 L_xloop")
    lstamp_store()
    a.label("L_end")
    a("s_endpgm")

    out = HEADER
    out += "; @launch grid=(256,1,1) block=(512,1,1) lds=%d\n" % LDS_BYTES
    out += '.amdgcn_target "amdgcn-amd-amdhsa--gfx950"\n.text\n.globl %s\n.p2align 8\n.type %s,@function\n' % (KNAME, KNAME)
    out += a.text()
    out += """.section .rodata,"a"
.p2align 6
.amdhsa_kernel %s
  .amdhsa_next_free_vgpr 256
  .amdhsa_next_free_sgpr 102
  .amdhsa_accum_offset 256
  .amdhsa_group_segment_fixed_size 0
  .amdhsa_kernarg_size 72
  .amdhsa_user_sgpr_count 2
  .amdhsa_user_sgpr_kernarg_segment_ptr 1
  .amdhsa_system_sgpr_workgroup_id_x 1
  .amdhsa_float_denorm_mode_32 3
.end_amdhsa_kernel
""" % KNAME
    return out


if __name__ == "__main__":
    ap = argparse.ArgumentParser()
    ap.add_argument("-o", default="standalone__batchnorm__sampling.s")
    ap.add_argument("--D", type=int, default=5)
    ap.add_argument("--xt0", type=int, default=1)
    ap.add_argument("--prio", type=int, default=3)
    ap.add_argument("--stamp", action="store_true")
    ap.add_argument("--stflag", default="")
    ap.add_argument("--stflag8", default="")
    ap.add_argument("--xg1", type=int, default=2)
    ap.add_argument("--pf", type=int, default=1)
    ap.add_argument("--w1wait", type=int, default=9)
    ap.add_argument("--wb", default="")
    ap.add_argument("--wbmask", type=int, default=31)
    ap.add_argument("--stn", type=int, default=4)
    ap.add_argument("--pfw0", type=int, default=1)
    ap.add_argument("--pfx2", type=int, default=1)
    ap.add_argument("--x1a", type=int, default=0)
    ap.add_argument("--rotx", type=int, default=1)
    opt = ap.parse_args()
    open(opt.o, "w").write(gen(opt))
```

```python
import sys
import argparse

KNAME = "standalone__batchnorm__sampling_kernel"

HEADER = """; Kernarg layout for this problem (72 bytes, ptrs only, base s[0:1]):
"""

XBYTES = 1024 * 16 * 576 * 2
WBYTES = 3 * 576 * 576 * 2
ROWB = 1152
TAPB = 576 * 1152

XBLK = 17 * 128
XBUFB = 16 * XBLK
WRING = 2 * XBUFB + 128
WSLOT = 9216
NW = 10
PARAM = WRING + NW * WSLOT
LDS_BYTES = PARAM + 1152

LOG2E = 0x3FB8AA3B


class Asm:
    def __init__(self):
        self.lines = []

    def __call__(self, s):
        self.lines.append("    " + s)

    def label(self, l):
        self.lines.append(l + ":")

    def c(self, s):
        self.lines.append("    ; " + s)

    def text(self):
        return "\n".join(self.lines) + "\n"


class LdsQ:
    def __init__(self):
        self.q = []

    def issue(self, tag):
        self.q.append(tag)
        assert len(self.q) <= 15, self.q

    def wait(self, tag):
        idx = [i for i, t in enumerate(self.q) if t == tag]
        if not idx:
            return None
        last = idx[-1]
        n = len(self.q) - 1 - last
        self.q = self.q[last + 1:]
        return n


def vr(b, n=4):
    return "v[%d:%d]" % (b, b + n - 1)


def gen(opt):
    a = Asm()
    D = opt.D
    R = 6
    assert D <= R - 1
    ACC = lambda t, i: (t * 4 + i) * 4
    XSET = [144, 160]
    WR = 176
    V_W, V_WL = 200, 201
    V_XA = 202
    V_T0, V_T1, V_T2, V_T3 = 208, 209, 210, 211
    V_LANE = 212
    V_OUT0, V_OUT8, V_PAR = 213, 214, 215
    V_XD = 216
    V_OUT3 = 217

    S_WAVE, S_ROW, S_COL, S_ODD = 48, 49, 50, 57
    S_T0, S_T1, S_T2 = 51, 52, 53
    S_WS, S_CNT, S_SOFF = 54, 55, 56
    S_L2E = 58
    S_XT = 63
    S_CB = 64

    def stamp(idx):
        if opt.stamp:
            a("s_memrealtime s[%d:%d]" % (70 + 2 * idx, 71 + 2 * idx))

    def stampc(idx):
        if opt.stamp:
            a("s_memtime s[%d:%d]" % (70 + 2 * idx, 71 + 2 * idx))

    a.label(KNAME)
    stamp(0)
    a("s_load_dwordx8 s[4:11], s[0:1], 0")
    a("s_load_dwordx4 s[12:15], s[0:1], 32")
    a("s_load_dwordx2 s[16:17], s[0:1], 48")
    if opt.stamp:
        a("s_load_dwordx2 s[18:19], s[0:1], 64")
    a("s_cmp_ge_u32 s2, 256")
    a("s_cbranch_scc1 L_end")
    a("v_lshrrev_b32 v1, 6, v0")
    a("v_and_b32 v%d, 63, v0" % V_LANE)
    a("v_readfirstlane_b32 s%d, v1" % S_WAVE)
    a("s_and_b32 s%d, s2, 7" % S_ROW)
    a("s_lshr_b32 s%d, s2, 5" % S_T0)
    a("s_lshl_b32 s%d, s%d, 3" % (S_ROW, S_ROW))
    a("s_add_u32 s%d, s%d, s%d" % (S_ROW, S_ROW, S_T0))
    a("s_bfe_u32 s%d, s2, 0x20003" % S_CB)
    a("s_mul_i32 s%d, s%d, %d" % (S_ROW, S_ROW, 256 * ROWB))
    a("s_mul_i32 s%d, s%d, 288" % (S_COL, S_CB))
    a("s_sub_u32 s%d, 0, s%d" % (S_ODD, S_CB))
    a("s_and_b32 s%d, s%d, 3" % (S_ODD, S_ODD))
    a("s_mov_b32 s22, %d" % XBYTES)
    a("s_mov_b32 s23, 0x20000")
    a("s_cmp_ge_u32 s%d, 4" % S_WAVE)
    a("s_cbranch_scc0 L_xaddr")
    a("s_cmp_lg_u32 s%d, 7" % S_WAVE)
    a("s_cbranch_scc1 L_wloader")
    a.label("L_xaddr")
    a("v_lshrrev_b32 v%d, 3, v%d" % (V_T0, V_LANE))
    a("v_mul_u32_u24 v%d, %d, v%d" % (V_T0, ROWB, V_T0))
    a("v_and_b32 v%d, 7, v%d" % (V_T1, V_LANE))
    a("v_lshrrev_b32 v%d, 4, v%d" % (V_T3, V_LANE))
    a("v_lshlrev_b32 v%d, 1, v%d" % (V_T2, V_T3))
    a("v_xor_b32 v%d, v%d, v%d" % (V_T1, V_T1, V_T2))
    a("v_lshl_add_u32 v%d, v%d, 4, v%d" % (V_XD, V_T1, V_T0))
    a("s_cmp_eq_u32 s%d, 7" % S_WAVE)
    a("s_cbranch_scc1 L_xloader")

    a.c("compute wave: DMA own X rows, chunk 0")
    a("s_mul_i32 s%d, s%d, %d" % (S_T0, S_WAVE, 64 * ROWB))
    a("s_add_u32 s%d, s%d, s%d" % (S_SOFF, S_ROW, S_T0))
    a("s_mul_i32 s%d, s%d, %d" % (S_T1, S_WAVE, 4 * XBLK))
    a("s_add_u32 m0, s%d, 128" % S_T1)
    a("s_mov_b32 s%d, s%d" % (S_T2, S_SOFF))
    a("s_waitcnt lgkmcnt(0)")
    a("s_mov_b32 s20, s4")
    a("s_and_b32 s21, s5, 0xffff")
    for n in range(8):
        a("buffer_load_dwordx4 v%d, s[20:23], s%d offen lds" % (V_XD, S_T2))
        if n < 7:
            a("s_add_u32 m0, m0, %d" % (1024 if n % 2 == 0 else XBLK - 1024))
            a("s_add_u32 s%d, s%d, %d" % (S_T2, S_T2, 8 * ROWB))
    a("s_mov_b32 s28, s16")
    a("s_and_b32 s29, s17, 0xffff")
    a("s_mov_b32 s30, %d" % XBYTES)
    a("s_mov_b32 s31, 0x20000")
    a("s_mov_b32 s%d, 0x%x" % (S_L2E, LOG2E))
    a("s_mov_b32 s%d, 0x%x" % (S_L2E + 1, LOG2E))
    a("s_mov_b32 s%d, %d" % (S_XT, XBUFB))
    a("v_and_b32 v%d, 15, v%d" % (V_T2, V_LANE))
    for tap in range(3):
        va = V_XA + tap
        a("v_add_u32 v%d, %d, v%d" % (V_T0, tap + 15, V_T2))
        a("v_and_b32 v%d, 6, v%d" % (V_T0, V_T0))
        a("v_xor_b32 v%d, v%d, v%d" % (V_T0, V_T0, V_T3))
        a("v_lshlrev_b32 v%d, 4, v%d" % (V_T0, V_T0))
        a("v_lshl_add_u32 v%d, v%d, 7, v%d" % (V_T0, V_T2, V_T0))
        a("s_add_u32 s%d, s%d, %d" % (S_T0, S_T1, tap * 128))
        a("v_add_u32 v%d, s%d, v%d" % (va, S_T0, V_T0))
        a("v_xor_b32 v%d, 64, v%d" % (va + 3, va))
    a("v_mul_u32_u24 v%d, %d, v%d" % (V_T0, ROWB, V_T2))
    a("v_lshrrev_b32 v%d, 1, v%d" % (V_PAR, V_T3))
    a("v_lshl_add_u32 v%d, v%d, 4, v%d" % (V_T0, V_PAR, V_T0))
    a("v_and_b32 v%d, 1, v%d" % (V_PAR, V_T3))
    a("v_add_u32 v%d, s%d, v%d" % (V_T1, S_ODD, V_PAR))
    a("v_lshl_add_u32 v%d, v%d, 5, v%d" % (V_OUT0, V_T1, V_T0))
    a("v_add_u32 v%d, 6, v%d" % (V_T1, V_T1))
    a("v_subrev_u32 v%d, 9, v%d" % (V_OUT3, V_T1))
    a("v_min_u32 v%d, v%d, v%d" % (V_T1, V_T1, V_OUT3))
    a("v_lshl_add_u32 v%d, v%d, 5, v%d" % (V_OUT3, V_T1, V_T0))
    a("v_mul_u32_u24 v%d, %d, v%d" % (V_OUT8, 16 * ROWB, V_PAR))
    a("v_add_u32 v%d, v%d, v%d" % (V_OUT8, V_OUT8, V_T0))
    a("s_add_u32 s%d, s%d, 8" % (S_T0, S_ODD))
    a("s_sub_u32 s%d, s%d, 9" % (S_T2, S_T0))
    a("s_min_u32 s%d, s%d, s%d" % (S_T0, S_T0, S_T2))
    a("s_lshl_b32 s%d, s%d, 5" % (S_T0, S_T0))
    a("v_add_u32 v%d, s%d, v%d" % (V_OUT8, S_T0, V_OUT8))
    if opt.fl:
        a("v_lshrrev_b32 v%d, 3, v%d" % (V_T1, V_T2))
        a("v_mul_u32_u24 v%d, %d, v%d" % (V_T1, 8 * ROWB - 64, V_T1))
        a("v_sub_u32 v%d, v%d, v%d" % (218, V_OUT0, V_T1))
        a("v_add_u32 v%d, %d, v%d" % (219, 8 * ROWB, 218))
    a("v_lshlrev_b32 v%d, 4, v%d" % (V_PAR, V_T3))
    a("v_add_u32 v%d, %d, v%d" % (V_PAR, PARAM, V_PAR))
    a("v_lshrrev_b32 v%d, 5, v%d" % (V_WL, V_LANE))
    a("v_lshlrev_b32 v%d, 4, v%d" % (V_WL, V_WL))
    a("v_bfe_u32 v%d, v%d, 4, 1" % (V_T2, V_LANE))
    a("v_lshl_add_u32 v%d, v%d, 2, v%d" % (V_WL, V_T2, V_WL))
    a("v_bfe_u32 v%d, v%d, 2, 2" % (V_T2, V_LANE))
    a("v_add_u32 v%d, v%d, v%d" % (V_WL, V_WL, V_T2))
    a("v_mul_u32_u24 v%d, 288, v%d" % (V_WL, V_WL))
    a("v_and_b32 v%d, 3, v%d" % (V_T2, V_LANE))
    a("v_lshl_add_u32 v%d, v%d, 3, v%d" % (V_WL, V_T2, V_WL))
    a("s_mov_b32 s%d, %d" % (S_WS, WRING))
    a("v_add_u32 v%d, s%d, v%d" % (V_W, S_WS, V_WL))
    for r in range(0, 144, 2):
        a("v_mov_b64 v[%d:%d], 0" % (r, r + 1))
    a("s_mov_b32 s%d, 9" % S_CNT)
    if opt.cdma:
        a("s_lshl_b32 s66, s%d, 7" % S_WAVE)
        a("s_add_u32 m0, s%d, 128" % S_T1)
    a("s_waitcnt vmcnt(0)")
    stamp(1)
    a("s_setprio %d" % opt.prio)
    a("s_barrier")
    stamp(2)
    stampc(5)

    q = LdsQ()

    def wread(f):
        t = f % 9
        base = WR + (f % R) * 4
        res = []
        for h in range(2):
            res.append(("ds_read_b64_tr_b16 v[%d:%d], v%d offset:%d" % (base + 2 * h, base + 2 * h + 1, V_W, h * 2304 + t * 32), ("W", f)))
        return res

    def xread(gks):
        ks = gks % 6
        va = V_XA + ks
        dst = XSET[gks % 2]
        return [("ds_read_b128 %s, v%d offset:%d" % (vr(dst + 4 * i), va, i * XBLK), ("X", gks)) for i in range(4)]

    if opt.stamp:
        a("s_waitcnt lgkmcnt(0)")
    for ins, tag in wread(0) + xread(0):
        a(ins)
        q.issue(tag)
    a("v_add_u32 v%d, s%d, v%d" % (V_XA, S_XT, V_XA))
    for f in range(1, D):
        for ins, tag in wread(f):
            a(ins)
            q.issue(tag)
    n = q.wait(("X", 0))
    a("s_waitcnt lgkmcnt(%d)" % n)

    XT0 = opt.xt0

    def body(it):
        out = []

        def emit(s):
            out.append("    " + s)

        def emit_lds(ins, tag):
            emit(ins)
            q.issue(tag)

        def wait(tag):
            n = q.wait(tag)
            if n is not None:
                emit("s_waitcnt lgkmcnt(%d)" % n)

        for ks in range(6):
            ph = ks % 3
            gks = it * 6 + ks
            xs = XSET[gks % 2]
            for t in range(9):
                f = gks * 9 + t
                fill = []
                xr = xread(gks + 1)
                x0 = XT0 if ph != 2 else max(XT0, 9 - D)
                xl = []
                per_g = 1 if ph != 2 else 2
                ng = 4 // per_g
                if x0 <= t < x0 + ng:
                    for ins, tag in xr[(t - x0) * per_g:(t - x0 + 1) * per_g]:
                        xl.append(("l", ins, tag))
                if t == x0 + ng:
                    va = V_XA + (ks + 1) % 6
                    if ks == 5:
                        fill.append(("s", "s_sub_u32 s%d, 0, s%d" % (S_XT, S_XT)))
                    fill.append(("v", "v_add_u32 v%d, s%d, v%d" % (va, S_XT, va)))
                nf = f + D
                rd = [("l", ins, tag) for ins, tag in wread(nf)]
                cross = (nf % 9 == 0)
                if (nf + 1) % 9 == 0:
                    fill.append(("s", "s_add_u32 s%d, s%d, %d" % (S_WS, S_WS, WSLOT)))
                    fill.append(("s", "s_cmp_eq_u32 s%d, %d" % (S_WS, WRING + NW * WSLOT)))
                    fill.append(("s", "s_cselect_b32 s%d, %d, s%d" % (S_WS, WRING, S_WS)))
                    fill.append(("v", "v_add_u32 v%d, s%d, v%d" % (V_W, S_WS, V_WL)))
                wait(("W", f))
                if t == 0:
                    wait(("X", gks))
                seq = []
                if cross and ph == 2:
                    seq.append(("bar", 0))
                seq += rd + xl + fill
                if opt.xtra and t in (0, 6, 7, 8):
                    k_ = (0, 6, 7, 8).index(t)
                    seq.append(("l", "ds_read_b128 v[%d:%d], v%d offset:%d" % (220 + 4 * k_, 223 + 4 * k_, V_XA + (ks + 3) % 6, k_ * XBLK), ("Z", 0)))
                if opt.cdma and t in opt.cdma:
                    seq.append(("s", "s_add_u32 s66, s66, 9216"))
                    seq.append(("s", "s_and_b32 s66, s66, 0xfffff"))
                    seq.append(("s", "buffer_load_dwordx4 v%d, s[20:23], s66 offen lds" % V_XD))
                if ks == 5 and t == 8:
                    seq.append(("s", "s_sub_u32 s%d, s%d, 1" % (S_CNT, S_CNT)))
                    seq.append(("s", "s_cmp_lg_u32 s%d, 0" % S_CNT))
                gaps = [[], [], [], []]
                n = len(seq)
                per = [(n + 3 - g) // 4 for g in range(4)]
                k = 0
                for g in range(4):
                    gaps[g] = seq[k:k + per[g]]
                    k += per[g]
                for i in range(4):
                    wf = WR + (f % R) * 4
                    emit("v_mfma_f32_16x16x32_bf16 %s, %s, %s, %s" % (vr(ACC(t, i)), vr(wf), vr(xs + 4 * i), vr(ACC(t, i))))
                    for it_ in gaps[i]:
                        if it_[0] == "l":
                            emit_lds(it_[1], it_[2])
                        elif it_[0] == "bar":
                            emit("s_barrier")
                        else:
                            emit(it_[1])
        return out

    b0 = body(0)
    b1 = body(1)
    b2 = body(2)
    assert b1 == b2
    a(".p2align 6")
    a.label("L_loop")
    a.lines += b1
    a("s_cbranch_scc1 L_loop")
    stampc(6)
    stamp(3)

    a.c("epilogue")
    P0 = 144
    E0 = 176
    SD = 184
    a("s_add_u32 s%d, s%d, s%d" % (S_SOFF, S_SOFF, S_COL))
    a("s_waitcnt lgkmcnt(0)")

    PB = [144, 160, 220, 236, 0]

    def pread(p):
        base = PB[p]
        tiles = [2 * p, 2 * p + 1] if p < 4 else [8]
        for k, t in enumerate(tiles):
            a("ds_read_b128 %s, v%d offset:%d" % (vr(base + 8 * k), V_PAR, t * 64))
            a("ds_read_b128 %s, v%d offset:%d" % (vr(base + 8 * k + 4), V_PAR, 576 + t * 64))
        return len(tiles) * 2

    pread(0)
    pread(1)
    pread(2)
    sidx = 0

    def proc(accA, accB, parA, parB, voff, imm, soff, flag):
        nonlocal sidx
        sd = SD + (sidx % 4) * 4
        sidx += 1
        for acc, par in ((accA, parA), (accB, parB)):
            for h in range(2):
                a("v_pk_fma_f32 v[%d:%d], v[%d:%d], v[%d:%d], v[%d:%d]" % (
                    acc + 2 * h, acc + 2 * h + 1, acc + 2 * h, acc + 2 * h + 1,
                    par + 2 * h, par + 2 * h + 1, par + 4 + 2 * h, par + 4 + 2 * h + 1))
        for k, acc in enumerate((accA, accB)):
            for r in range(4):
                a("v_exp_f32_e64 v%d, -v%d" % (E0 + 4 * k + r, acc + r))
        for k in range(4):
            a("v_pk_fma_f32 v[%d:%d], v[%d:%d], s[%d:%d], s[%d:%d]" % (
                E0 + 2 * k, E0 + 2 * k + 1, E0 + 2 * k, E0 + 2 * k + 1, S_L2E, S_L2E + 1, S_L2E, S_L2E + 1))
        for k in range(8):
            a("v_rcp_f32 v%d, v%d" % (E0 + k, E0 + k))
        for k, acc in enumerate((accA, accB)):
            for h in range(2):
                a("v_pk_mul_f32 v[%d:%d], v[%d:%d], v[%d:%d]" % (
                    E0 + 4 * k + 2 * h, E0 + 4 * k + 2 * h + 1, acc + 2 * h, acc + 2 * h + 1,
                    E0 + 4 * k + 2 * h, E0 + 4 * k + 2 * h + 1))
        a("v_cvt_pk_bf16_f32 v%d, v%d, v%d" % (sd + 0, E0 + 0, E0 + 1))
        a("v_cvt_pk_bf16_f32 v%d, v%d, v%d" % (sd + 2, E0 + 4, E0 + 5))
        a("v_cvt_pk_bf16_f32 v%d, v%d, v%d" % (sd + 1, E0 + 2, E0 + 3))
        a("v_cvt_pk_bf16_f32 v%d, v%d, v%d" % (sd + 3, E0 + 6, E0 + 7))
        a("s_nop 0")
        a("v_permlane16_swap_b32 v%d, v%d" % (sd + 0, sd + 2))
        a("v_permlane16_swap_b32 v%d, v%d" % (sd + 1, sd + 3))
        a("buffer_store_dwordx4 %s, v%d, s[28:31], s%d offen offset:%d %s" % (vr(sd), voff, soff, imm, flag))

    a("s_add_u32 s60, s%d, %d" % (S_SOFF, 16 * ROWB))
    a("s_add_u32 s61, s%d, %d" % (S_SOFF, 32 * ROWB))
    a("s_add_u32 s62, s%d, %d" % (S_SOFF, 48 * ROWB))
    soffs = [S_SOFF, 60, 61, 62]
    def pair(p, i):
        fl = opt.stflag if p < opt.stn else ""
        if opt.fl and p < 2:
            proc(ACC(2 * p, i), ACC(2 * p + 1, i), PB[p], PB[p] + 8, 218 + p, 0, soffs[i], fl)
            return
        proc(ACC(2 * p, i), ACC(2 * p + 1, i), PB[p], PB[p] + 8, V_OUT0 if p < 3 else V_OUT3, p * 64 if p < 3 else 0, soffs[i], fl)

    a("s_waitcnt lgkmcnt(8)")
    pair(0, 0)
    a("s_waitcnt lgkmcnt(4)")
    pread(3)
    pair(1, 0)
    for i in range(1, 4):
        pair(0, i)
        if i == 1:
            pread(4)
        pair(1, i)
    a("s_waitcnt lgkmcnt(0)")
    for i in range(4):
        pair(2, i)
        pair(3, i)
    for i in (0, 2):
        proc(ACC(8, i), ACC(8, i + 1), PB[4], PB[4], V_OUT8, 0, soffs[i], opt.stflag8)
    if opt.stamp:
        a("s_waitcnt vmcnt(0)")
        stamp(4)
        a("s_waitcnt lgkmcnt(0)")
        a("s_mov_b32 s32, s18")
        a("s_and_b32 s33, s19, 0xffff")
        a("s_mov_b32 s34, 0x100000")
        a("s_mov_b32 s35, 0x20000")
        a("s_lshl_b32 s36, s2, 3")
        a("s_add_u32 s36, s36, s%d" % S_WAVE)
        a("s_lshl_b32 s36, s36, 6")
        a("s_getreg_b32 s84, hwreg(HW_REG_HW_ID)")
        a("s_getreg_b32 s85, hwreg(HW_REG_XCC_ID)")
        for k in range(16):
            a("v_mov_b32 v%d, s%d" % (k, 70 + k))
        a("v_mov_b32 v16, 0")
        a("v_cmp_eq_u32 vcc, 0, v%d" % V_LANE)
        a("s_and_saveexec_b64 s[40:41], vcc")
        for k in range(4):
            a("buffer_store_dwordx4 v[%d:%d], v16, s[32:35], s36 offen offset:%d" % (4 * k, 4 * k + 3, 16 * k))
    a("s_endpgm")

    def lstamp():
        if opt.stamp:
            a("s_memtime s[90:91]")
            a("s_memrealtime s[92:93]")
            a("s_waitcnt lgkmcnt(0)")
            a("s_mov_b32 m0, s69")
            a("s_nop 0")
            a("v_writelane_b32 v40, s90, m0")
            a("v_writelane_b32 v41, s92, m0")
            a("s_add_u32 s69, s69, 1")

    def lstamp_init():
        if opt.stamp:
            a("v_mov_b32 v40, 0")
            a("v_mov_b32 v41, s70")
            a("s_mov_b32 s69, 1")

    def lstamp_store():
        if opt.stamp:
            a("s_mov_b32 s32, s18")
            a("s_and_b32 s33, s19, 0xffff")
            a("s_mov_b32 s34, 0x1000000")
            a("s_mov_b32 s35, 0x20000")
            a("s_lshl_b32 s36, s2, 3")
            a("s_add_u32 s36, s36, s%d" % S_WAVE)
            a("s_lshl_b32 s36, s36, 9")
            a("s_add_u32 s36, s36, 0x100000")
            a("v_lshlrev_b32 v42, 3, v%d" % V_LANE)
            a("buffer_store_dwordx2 v[40:41], v42, s[32:35], s36 offen")

    a(".p2align 6")
    a.label("L_wloader")
    a.c("W loader j = wave-4: pieces 3j..3j+2 of every k-step slot")
    a("s_sub_u32 s%d, s%d, 4" % (S_T0, S_WAVE))
    a("s_mul_i32 s%d, s%d, 192" % (S_T1, S_T0))
    a("s_lshl_b32 s%d, s%d, 1" % (S_T2, S_ODD))
    a("v_add_u32 v1, s%d, v%d" % (S_T1, V_LANE))
    a("s_mov_b32 s26, %d" % WBYTES)
    a("s_mov_b32 s27, 0x20000")
    a("s_movk_i32 s36, 288")
    a("s_movk_i32 s37, 0x34")
    a("s_movk_i32 s38, %d" % ROWB)
    for k in range(3):
        if k:
            a("v_add_u32 v1, 64, v1")
        a("v_add_u32 v2, s%d, v1" % S_T2)
        a("v_mul_u32_u24 v3, 3641, v1")
        a("v_mul_u32_u24 v4, 3641, v2")
        a("v_lshrrev_b32 v3, 16, v3")
        a("v_lshrrev_b32 v4, 16, v4")
        a("v_bfe_u32 v5, v3, 2, 2")
        a("v_lshlrev_b32 v5, 1, v5")
        a("v_bfe_i32 v5, s37, v5, 2")
        a("v_lshl_add_u32 v3, v5, 2, v3")
        a("v_lshlrev_b32 v2, 4, v2")
        a("v_mad_u32_u24 v2, v3, s38, v2")
        a("v_mul_u32_u24 v4, s36, v4")
        a("v_sub_u32 v%d, v2, v4" % (10 + k))
        if k:
            a("v_subrev_u32 v%d, %d, v%d" % (10 + k, 1024 * k, 10 + k))
    a("s_mov_b32 s%d, s%d" % (S_SOFF, S_COL))
    a("s_mul_i32 s39, s%d, 3072" % S_T0)
    a("s_add_u32 s39, s39, %d" % WRING)
    a("s_add_u32 s40, s39, %d" % (NW * WSLOT))
    a("s_mov_b32 s%d, s39" % S_WS)
    a("s_waitcnt lgkmcnt(0)")
    a("s_mov_b32 s24, s6")
    a("s_and_b32 s25, s7, 0xffff")
    lstamp_init()
    lstamp()

    def wissue(inloop=False):
        for tap in range(3):
            a("s_mov_b32 m0, s%d" % S_WS)
            if tap:
                a("s_add_u32 s%d, s%d, %d" % (S_T2, S_SOFF, tap * TAPB))
            else:
                a("s_mov_b32 s%d, s%d" % (S_T2, S_SOFF))
            for k in range(3):
                if not (opt.nodma and inloop):
                    a("buffer_load_dwordx4 v%d, s[24:27], s%d offen offset:%d lds" % (10 + k, S_T2, 1024 * k))
            a("s_add_u32 s%d, s%d, %d" % (S_WS, S_WS, WSLOT))
            a("s_cmp_eq_u32 s%d, s40" % S_WS)
            a("s_cselect_b32 s%d, s39, s%d" % (S_WS, S_WS))
        a("s_add_u32 s%d, s%d, %d" % (S_SOFF, S_SOFF, 32 * ROWB))

    wissue()
    lstamp()
    a("s_waitcnt vmcnt(%d)" % opt.w1wait)
    wissue()
    lstamp()
    a("s_waitcnt vmcnt(9)")
    lstamp()
    a("s_barrier")
    lstamp()
    wissue()
    a("s_lshl_b32 s%d, s%d, 6" % (S_T1, S_T0))
    a("v_add_u32 v20, s%d, v%d" % (S_T1, V_LANE))
    a("s_lshl_b32 s%d, s%d, 4" % (S_T1, S_ODD))
    a("v_add_u32 v21, s%d, v20" % S_T1)
    a("v_subrev_u32 v22, 144, v21")
    a("v_min_u32 v21, v21, v22")
    a("v_lshlrev_b32 v21, 1, v21")
    a("v_add_u32 v21, s%d, v21" % S_COL)
    PS = [28, 32, 60, 96]
    for k in range(4):
        a("s_mov_b32 s%d, s%d" % (PS[k], 8 + 2 * k))
        a("s_and_b32 s%d, s%d, 0xffff" % (PS[k] + 1, 9 + 2 * k))
        a("s_mov_b32 s%d, 1152" % (PS[k] + 2))
        a("s_mov_b32 s%d, 0x20000" % (PS[k] + 3))
    for k in range(4):
        a("buffer_load_ushort v%d, v21, s[%d:%d], 0 offen" % (24 + k, PS[k], PS[k] + 3))
    a("s_waitcnt vmcnt(13)")
    a("s_barrier")
    lstamp()
    a("s_mov_b32 s%d, 15" % S_CNT)
    a.label("L_wloop")
    wissue(True)
    a("s_waitcnt vmcnt(9)")
    a("s_barrier")
    lstamp()
    a("s_sub_u32 s%d, s%d, 1" % (S_CNT, S_CNT))
    a("s_cmp_lg_u32 s%d, 0" % S_CNT)
    a("s_cbranch_scc1 L_wloop")
    a.c("BN parameters: v24=mean v25=var v26=g v27=b (bf16 bits)")
    for k in range(4):
        a("v_lshlrev_b32 v%d, 16, v%d" % (24 + k, 24 + k))
    a("v_add_f32 v25, 0x3727c5ac, v25")
    a("v_cvt_pk_bf16_f32 v25, v25, v25")
    a("v_lshlrev_b32 v25, 16, v25")
    a("v_sqrt_f32 v25, v25")
    a("s_nop 0")
    a("v_cvt_pk_bf16_f32 v25, v25, v25")
    a("v_lshlrev_b32 v25, 16, v25")
    a("v_rcp_f32 v25, v25")
    a("s_nop 0")
    a("v_cvt_pk_bf16_f32 v25, v25, v25")
    a("v_lshlrev_b32 v25, 16, v25")
    a("v_mul_f32 v25, v26, v25")
    a("v_cvt_pk_bf16_f32 v25, v25, v25")
    a("v_lshlrev_b32 v25, 16, v25")
    a("v_fma_f32 v27, -v24, v25, v27")
    a("v_mul_f32 v25, 0x%x, v25" % LOG2E)
    a("v_mul_f32 v27, 0x%x, v27" % LOG2E)
    a("v_lshlrev_b32 v21, 2, v20")
    a("v_add_u32 v21, %d, v21" % PARAM)
    a("v_cmp_gt_u32 vcc, 144, v20")
    a("s_and_saveexec_b64 s[46:47], vcc")
    a("ds_write_b32 v21, v25")
    a("ds_write_b32 v21, v27 offset:576")
    a("s_mov_b64 exec, s[46:47]")
    a("s_waitcnt vmcnt(0) lgkmcnt(0)")
    a("s_barrier")
    lstamp()
    lstamp_store()
    a("s_endpgm")

    a(".p2align 6")
    a.label("L_xloader")
    if opt.cpf:
        a.c("pull this kernel's own code into L2 (one dword per 128-B line)")
        a("s_getpc_b64 s[40:41]")
        a.label("L_pc")
        a("s_sub_u32 s40, s40, L_pc-L_loop")
        a("s_subb_u32 s41, s41, 0")
        a("v_lshlrev_b32 v12, 7, v%d" % V_LANE)
        a("global_load_dword v13, v12, s[40:41]")
        if opt.cpf > 1:
            a("v_add_u32 v12, 8192, v12")
            a("v_min_u32 v12, L_end-L_loop, v12")
            a("global_load_dword v13, v12, s[40:41]")
    a.c("L2 prefetch addresses: W pair m: lane<54: tap*TAPB + (64m+2i)*1152 + rem*128 ; X line n: row (64cb+l)")
    a("v_mul_u32_u24 v8, 3641, v%d" % V_LANE)
    a("v_lshrrev_b32 v8, 16, v8")
    a("v_mul_u32_u24 v9, 18, v8")
    a("v_sub_u32 v9, v%d, v9" % V_LANE)
    a("s_mov_b32 s36, %d" % TAPB)
    a("v_mul_lo_u32 v8, v8, s36")
    a("v_lshl_add_u32 v8, v9, 7, v8")
    a("s_lshr_b32 s37, s2, 3")
    a("s_mul_i32 s37, s37, %d" % (2 * ROWB))
    a("v_mul_u32_u24 v9, %d, v%d" % (ROWB, V_LANE))
    a("s_mul_i32 s38, s%d, %d" % (S_CB, 64 * ROWB))
    a("s_add_u32 s38, s38, s%d" % S_ROW)
    a("s_add_u32 s38, s38, 128")
    a("s_mov_b32 s26, %d" % WBYTES)
    a("s_mov_b32 s27, 0x20000")
    a("s_waitcnt lgkmcnt(0)")
    a("s_mov_b32 s20, s4")
    a("s_and_b32 s21, s5, 0xffff")
    a("s_mov_b32 s24, s6")
    a("s_and_b32 s25, s7, 0xffff")

    if opt.nopfw:
        a("v_mov_b32 v8, 0x7ffffff0")
    if opt.nopfx:
        a("v_mov_b32 v9, 0x7ffffff0")

    def pf_w():
        a("buffer_load_dword v10, v8, s[24:27], s37 offen")
        a("s_add_u32 s37, s37, %d" % (64 * ROWB))

    def pf_x():
        a("buffer_load_dword v11, v9, s[20:23], s38 offen")
        a("s_add_u32 s38, s38, 128")

    if opt.pfw0:
        pf_w()
    else:
        a("s_add_u32 s37, s37, %d" % (64 * ROWB))
    a.c("zero rows: r = (l>>3) + 8k < 33 at r*XBLK + (l&7)*16")
    a("v_lshrrev_b32 v1, 3, v%d" % V_LANE)
    a("v_mul_u32_u24 v1, %d, v1" % XBLK)
    a("v_and_b32 v2, 7, v%d" % V_LANE)
    a("v_lshl_add_u32 v1, v2, 4, v1")
    a("v_mov_b64 v[4:5], 0")
    a("v_mov_b64 v[6:7], 0")
    for k in range(4):
        a("ds_write_b128 v1, v[4:7] offset:%d" % (k * 8 * XBLK))
    a("v_add_u32 v1, %d, v1" % (32 * XBLK))
    a("v_cmp_gt_u32 vcc, 8, v%d" % V_LANE)
    a("s_and_saveexec_b64 s[46:47], vcc")
    a("ds_write_b128 v1, v[4:7]")
    a("s_mov_b64 exec, s[46:47]")
    a("s_add_u32 s%d, s%d, 128" % (S_SOFF, S_ROW))
    a("s_mov_b32 s%d, %d" % (S_WS, XBUFB + 128))
    a("s_mov_b32 s%d, %d" % (S_XT, (-XBUFB) & 0xffffffff))
    a("s_waitcnt lgkmcnt(0)")
    lstamp_init()
    lstamp()

    xl = [0]

    def xissue(ngroups, first, last):
        lab = "L_xi%d" % xl[0]
        xl[0] += 1
        if first:
            if opt.rotx:
                a("s_mov_b32 s%d, s%d" % (S_T0, S_CB))
            else:
                a("s_mov_b32 s%d, 0" % S_T0)
        a("s_mov_b32 s%d, %d" % (S_T1, ngroups))
        a.label(lab)
        a("s_mul_i32 s%d, s%d, %d" % (S_T2, S_T0, 4 * XBLK))
        a("s_add_u32 m0, s%d, s%d" % (S_T2, S_WS))
        a("s_mul_i32 s%d, s%d, %d" % (S_T2, S_T0, 64 * ROWB))
        a("s_add_u32 s%d, s%d, s%d" % (S_T2, S_T2, S_SOFF))
        for n in range(8):
            if not (opt.nodma and xl[0] > 1):
                a("buffer_load_dwordx4 v%d, s[20:23], s%d offen lds" % (V_XD, S_T2))
            if n < 7:
                a("s_add_u32 m0, m0, %d" % (1024 if n % 2 == 0 else XBLK - 1024))
                a("s_add_u32 s%d, s%d, %d" % (S_T2, S_T2, 8 * ROWB))
        a("s_add_u32 s%d, s%d, 1" % (S_T0, S_T0))
        a("s_and_b32 s%d, s%d, 3" % (S_T0, S_T0))
        a("s_sub_u32 s%d, s%d, 1" % (S_T1, S_T1))
        a("s_cmp_lg_u32 s%d, 0" % S_T1)
        a("s_cbranch_scc1 %s" % lab)
        if last:
            a("s_add_u32 s%d, s%d, s%d" % (S_WS, S_WS, S_XT))
            a("s_sub_u32 s%d, 0, s%d" % (S_XT, S_XT))
            a("s_add_u32 s%d, s%d, 128" % (S_SOFF, S_SOFF))

    a("s_waitcnt vmcnt(0)")
    lstamp()
    pf_w()
    a("s_barrier")
    pf_x()
    pf_w()
    if opt.pfx2 == 0:
        pf_x()
    if opt.x1a:
        a("s_waitcnt vmcnt(%d)" % (2 if opt.pfx2 == 0 else 1))
        xissue(opt.x1a, True, False)
    lstamp()
    a("s_barrier")
    xissue(4 - opt.x1a, opt.x1a == 0, True)
    lstamp()
    if opt.pfx2 == 1:
        pf_x()
        a("s_waitcnt vmcnt(1)")
    else:
        a("s_waitcnt vmcnt(0)")
    lstamp()
    a("s_barrier")
    a("s_mov_b32 s%d, 7" % S_CNT)
    a.label("L_xloop")
    xissue(opt.xg1, True, opt.xg1 == 4)
    lstamp()
    a("s_barrier")
    if opt.xg1 < 4:
        xissue(4 - opt.xg1, False, True)
    if opt.pf:
        a("s_cmp_le_u32 s%d, %d" % (S_CNT, opt.pf))
        a("s_cbranch_scc1 L_nopf")
        pf_x()
        pf_w()
        a("s_waitcnt vmcnt(2)")
        a("s_branch L_pfdone")
        a.label("L_nopf")
    a("s_waitcnt vmcnt(0)")
    a.label("L_pfdone")
    lstamp()
    a("s_barrier")
    a("s_sub_u32 s%d, s%d, 1" % (S_CNT, S_CNT))
    a("s_cmp_lg_u32 s%d, 0" % S_CNT)
    a("s_cbranch_scc1 L_xloop")
    lstamp_store()
    a.label("L_end")
    a("s_endpgm")

    out = HEADER
    out += "; @launch grid=(256,1,1) block=(512,1,1) lds=%d\n" % LDS_BYTES
    out += '.amdgcn_target "amdgcn-amd-amdhsa--gfx950"\n.text\n.globl %s\n.p2align 8\n.type %s,@function\n' % (KNAME, KNAME)
    out += a.text()
    out += """.section .rodata,"a"
.p2align 6
.amdhsa_kernel %s
  .amdhsa_next_free_vgpr 256
  .amdhsa_next_free_sgpr 102
  .amdhsa_accum_offset 256
  .amdhsa_group_segment_fixed_size 0
  .amdhsa_kernarg_size 72
  .amdhsa_user_sgpr_count 2
  .amdhsa_user_sgpr_kernarg_segment_ptr 1
  .amdhsa_system_sgpr_workgroup_id_x 1
  .amdhsa_float_denorm_mode_32 3
.end_amdhsa_kernel
""" % KNAME
    return out


if __name__ == "__main__":
    ap = argparse.ArgumentParser()
    ap.add_argument("-o", default="standalone__batchnorm__sampling.s")
    ap.add_argument("--D", type=int, default=5)
    ap.add_argument("--xt0", type=int, default=1)
    ap.add_argument("--prio", type=int, default=3)
    ap.add_argument("--stamp", action="store_true")
    ap.add_argument("--stflag", default="")
    ap.add_argument("--stflag8", default="")
    ap.add_argument("--xg1", type=int, default=2)
    ap.add_argument("--pf", type=int, default=1)
    ap.add_argument("--w1wait", type=int, default=9)
    ap.add_argument("--wb", default="")
    ap.add_argument("--wbmask", type=int, default=31)
    ap.add_argument("--stn", type=int, default=4)
    ap.add_argument("--cdma", type=lambda x: [int(c) for c in x], default=[])
    ap.add_argument("--nodma", action="store_true")
    ap.add_argument("--fl", action="store_true")
    ap.add_argument("--cpf", type=int, default=0)
    ap.add_argument("--xtra", action="store_true")
    ap.add_argument("--nopfw", action="store_true")
    ap.add_argument("--nopfx", action="store_true")
    ap.add_argument("--pfw0", type=int, default=1)
    ap.add_argument("--pfx2", type=int, default=1)
    ap.add_argument("--x1a", type=int, default=0)
    ap.add_argument("--rotx", type=int, default=1)
    opt = ap.parse_args()
    open(opt.o, "w").write(gen(opt))
```

```python
import sys
import argparse

KNAME = "standalone__batchnorm__sampling_kernel"

HEADER = """; Kernarg layout for this problem (72 bytes, ptrs only, base s[0:1]):
"""

XBYTES = 1024 * 16 * 576 * 2
WBYTES = 3 * 576 * 576 * 2
ROWB = 1152
TAPB = 576 * 1152

XBLK = 17 * 128
XBUFB = 16 * XBLK
WRING = 2 * XBUFB + 128
WSTAGE = 30720
PARAM = WRING + 3 * WSTAGE
LDS_BYTES = PARAM + 1280

LOG2E = 0x3FB8AA3B


class Asm:
    def __init__(self):
        self.lines = []

    def __call__(self, s):
        self.lines.append("    " + s)

    def label(self, l):
        self.lines.append(l + ":")

    def c(self, s):
        self.lines.append("    ; " + s)

    def text(self):
        return "\n".join(self.lines) + "\n"


class LdsQ:
    def __init__(self):
        self.q = []

    def issue(self, tag):
        self.q.append(tag)

    def wait(self, tag):
        idx = [i for i, t in enumerate(self.q) if t == tag]
        if not idx:
            return None
        last = idx[-1]
        n = len(self.q) - 1 - last
        n = min(n, 15)
        self.q = self.q[len(self.q) - n:] if n else []
        return n

    def drain(self):
        had = bool(self.q)
        self.q = []
        return had


def vr(b, n=4):
    return "v[%d:%d]" % (b, b + n - 1)


def gen(opt):
    a = Asm()
    D, R = 5, 6

    def ACC(tau, i):
        if tau < 4:
            return 80 + (tau * 4 + i) * 4
        if tau < 8:
            return ((tau - 4) // 2) * 32 + 8 * i + 4 * (tau % 2)
        return 64 + 4 * i

    XSET = [144, 160]
    WR = 176
    V_W = 200
    V_WLA, V_WLB = 204, 205
    V_XA = 206
    V_PAR, V_O, V_O2, V_O3, V_OB, V_LANE = 212, 213, 214, 215, 216, 217
    Z, E, SD, PR = 218, 226, 236, 240
    V_XD = 234
    V_T0, V_T1, V_T2, V_T3 = 218, 219, 220, 221

    S_WAVE, S_ROW, S_COL, S_R = 48, 49, 50, 57
    S_T0, S_T1, S_T2 = 51, 52, 53
    S_WS, S_CNT, S_SOFF = 54, 55, 56
    S_L2E = 58
    S_XT, S_CB = 63, 64
    S_IDX, S_SO, S_STEP, S_STEPN = 65, 66, 67, 68

    def stamp(idx):
        if opt.stamp:
            a("s_memrealtime s[%d:%d]" % (70 + 2 * idx, 71 + 2 * idx))

    def stampc(idx):
        if opt.stamp:
            a("s_memtime s[%d:%d]" % (70 + 2 * idx, 71 + 2 * idx))

    a.label(KNAME)
    stamp(0)
    a("s_load_dwordx8 s[4:11], s[0:1], 0")
    a("s_load_dwordx4 s[12:15], s[0:1], 32")
    a("s_load_dwordx2 s[16:17], s[0:1], 48")
    if opt.stamp:
        a("s_load_dwordx2 s[18:19], s[0:1], 64")
    a("s_cmp_ge_u32 s2, 256")
    a("s_cbranch_scc1 L_end")
    a("v_lshrrev_b32 v1, 6, v0")
    a("v_and_b32 v%d, 63, v0" % V_LANE)
    a("v_readfirstlane_b32 s%d, v1" % S_WAVE)
    a("s_and_b32 s%d, s2, 7" % S_ROW)
    a("s_lshr_b32 s%d, s2, 5" % S_T0)
    a("s_lshl_b32 s%d, s%d, 3" % (S_ROW, S_ROW))
    a("s_add_u32 s%d, s%d, s%d" % (S_ROW, S_ROW, S_T0))
    a("s_bfe_u32 s%d, s2, 0x20003" % S_CB)
    a("s_mul_i32 s%d, s%d, %d" % (S_ROW, S_ROW, 256 * ROWB))
    a("s_mul_i32 s%d, s%d, 288" % (S_COL, S_CB))
    a("s_sub_u32 s%d, 0, s%d" % (S_R, S_CB))
    a("s_and_b32 s%d, s%d, 3" % (S_R, S_R))
    a("s_mov_b32 s22, %d" % XBYTES)
    a("s_mov_b32 s23, 0x20000")
    a("v_lshrrev_b32 v%d, 3, v%d" % (V_T0, V_LANE))
    a("v_and_b32 v%d, 7, v%d" % (V_T1, V_LANE))
    a("v_lshrrev_b32 v%d, 4, v%d" % (V_T3, V_LANE))
    a("v_lshlrev_b32 v%d, 1, v%d" % (V_T2, V_T3))
    a("v_xor_b32 v%d, v%d, v%d" % (V_T1, V_T1, V_T2))
    a("v_mul_u32_u24 v%d, %d, v%d" % (V_XD, ROWB, V_T0))
    a("v_lshl_add_u32 v%d, v%d, 4, v%d" % (V_XD, V_T1, V_XD))
    a("s_and_b32 s%d, s%d, 3" % (S_T0, S_WAVE))
    a("s_mul_i32 s%d, s%d, %d" % (S_SOFF, S_T0, 64 * ROWB))
    a("s_add_u32 s%d, s%d, s%d" % (S_SOFF, S_ROW, S_SOFF))
    a("s_mul_i32 s%d, s%d, %d" % (S_T1, S_T0, 4 * XBLK))
    a("s_cmp_ge_u32 s%d, 4" % S_WAVE)
    a("s_cbranch_scc1 L_loader")

    def xdma(sg):
        for n in range(8):
            a("buffer_load_dwordx4 v%d, s[20:23], s%d offen lds" % (V_XD, sg))
            if n < 7:
                a("s_add_u32 m0, m0, %d" % (1024 if n % 2 == 0 else XBLK - 1024))
                a("s_add_u32 s%d, s%d, %d" % (sg, sg, 8 * ROWB))

    a.c("compute wave: DMA own X rows, chunk 0")
    a("s_add_u32 m0, s%d, 128" % S_T1)
    a("s_mov_b32 s%d, s%d" % (S_T2, S_SOFF))
    a("s_waitcnt lgkmcnt(0)")
    a("s_mov_b32 s20, s4")
    a("s_and_b32 s21, s5, 0xffff")
    xdma(S_T2)
    a("s_mov_b32 s28, s16")
    a("s_and_b32 s29, s17, 0xffff")
    a("s_mov_b32 s30, %d" % XBYTES)
    a("s_mov_b32 s31, 0x20000")
    a("s_mov_b32 s%d, 0x%x" % (S_L2E, LOG2E))
    a("s_mov_b32 s%d, 0x%x" % (S_L2E + 1, LOG2E))
    a("s_mov_b32 s%d, %d" % (S_XT, XBUFB))
    a("v_and_b32 v%d, 15, v%d" % (V_T2, V_LANE))
    for tap in range(3):
        va = V_XA + tap
        a("v_add_u32 v%d, %d, v%d" % (V_T0, tap + 15, V_T2))
        a("v_and_b32 v%d, 6, v%d" % (V_T0, V_T0))
        a("v_xor_b32 v%d, v%d, v%d" % (V_T0, V_T0, V_T3))
        a("v_lshlrev_b32 v%d, 4, v%d" % (V_T0, V_T0))
        a("v_lshl_add_u32 v%d, v%d, 7, v%d" % (V_T0, V_T2, V_T0))
        a("s_add_u32 s%d, s%d, %d" % (S_T0, S_T1, tap * 128))
        a("v_add_u32 v%d, s%d, v%d" % (va, S_T0, V_T0))
        a("v_xor_b32 v%d, 64, v%d" % (va + 3, va))
    a("v_mul_u32_u24 v%d, %d, v%d" % (V_T0, ROWB, V_T2))
    a("v_lshrrev_b32 v%d, 1, v%d" % (V_PAR, V_T3))
    a("v_lshl_add_u32 v%d, v%d, 4, v%d" % (V_T0, V_PAR, V_T0))
    a("v_and_b32 v%d, 1, v%d" % (V_PAR, V_T3))
    a("v_add_u32 v%d, s%d, v%d" % (V_T1, S_R, V_PAR))
    a("v_lshl_add_u32 v%d, v%d, 5, v%d" % (V_OB, V_T1, V_T0))
    a("v_add_u32 v%d, 128, v%d" % (V_O, V_OB))
    a("v_add_u32 v%d, 6, v%d" % (V_T1, V_T1))
    a("v_subrev_u32 v%d, 9, v%d" % (V_O2, V_T1))
    a("v_min_u32 v%d, v%d, v%d" % (V_T1, V_T1, V_O2))
    a("v_lshl_add_u32 v%d, v%d, 5, v%d" % (V_O2, V_T1, V_T0))
    a("v_mul_u32_u24 v%d, %d, v%d" % (V_O3, 16 * ROWB, V_PAR))
    a("v_add_u32 v%d, v%d, v%d" % (V_O3, V_O3, V_T0))
    a("s_add_u32 s%d, s%d, 8" % (S_T0, S_R))
    a("s_sub_u32 s%d, s%d, 9" % (S_T2, S_T0))
    a("s_min_u32 s%d, s%d, s%d" % (S_T0, S_T0, S_T2))
    a("s_lshl_b32 s%d, s%d, 5" % (S_T0, S_T0))
    a("v_add_u32 v%d, s%d, v%d" % (V_O3, S_T0, V_O3))
    a("v_lshlrev_b32 v%d, 4, v%d" % (V_PAR, V_T3))
    a("v_add_u32 v%d, %d, v%d" % (V_PAR, PARAM + 4 * 128, V_PAR))
    a("v_lshrrev_b32 v%d, 5, v%d" % (V_T0, V_LANE))
    a("v_lshlrev_b32 v%d, 4, v%d" % (V_T0, V_T0))
    a("v_bfe_u32 v%d, v%d, 4, 1" % (V_T2, V_LANE))
    a("v_lshl_add_u32 v%d, v%d, 2, v%d" % (V_T0, V_T2, V_T0))
    a("v_bfe_u32 v%d, v%d, 2, 2" % (V_T2, V_LANE))
    a("v_add_u32 v%d, v%d, v%d" % (V_T0, V_T0, V_T2))
    a("v_and_b32 v%d, 3, v%d" % (V_T2, V_LANE))
    a("v_lshlrev_b32 v%d, 3, v%d" % (V_T2, V_T2))
    a("v_mul_u32_u24 v%d, 160, v%d" % (V_WLA, V_T0))
    a("v_add_u32 v%d, v%d, v%d" % (V_WLA, V_WLA, V_T2))
    a("v_lshl_add_u32 v%d, v%d, 7, v%d" % (V_WLB, V_T0, V_T2))
    a("v_bfe_u32 v%d, v%d, 1, 2" % (V_T0, V_T0))
    a("v_lshl_add_u32 v%d, v%d, 5, v%d" % (V_WLB, V_T0, V_WLB))
    a("s_mov_b32 s%d, %d" % (S_WS, WRING))
    a("v_add_u32 v%d, s%d, v%d" % (V_W, S_WS, V_WLA))
    a("s_add_u32 s%d, s%d, s%d" % (S_SOFF, S_SOFF, S_COL))
    for r in range(0, 144, 2):
        a("v_mov_b64 v[%d:%d], 0" % (r, r + 1))
    a("s_mov_b32 s%d, 9" % S_CNT)
    a("s_waitcnt vmcnt(0)")
    stamp(1)
    a("s_setprio %d" % opt.prio)
    a("s_barrier")
    stamp(2)
    stampc(5)
    if opt.stamp:
        a("s_waitcnt lgkmcnt(0)")

    q = LdsQ()

    def wread(P, stage, f):
        NT = 5 if P == 0 else 4
        kk, t = f // NT, f % NT
        base = WR + (f % R) * 4
        res = []
        for h in range(2):
            if P == 0:
                ad, off = V_W, kk * 5120 + h * 1280 + t * 32
            else:
                ad, off = V_W + t, kk * 4096 + h * 1024
            res.append(("l", "ds_read_b64_tr_b16 v[%d:%d], v%d offset:%d" % (base + 2 * h, base + 2 * h + 1, ad, off), ("W", stage, f)))
        return res

    def xread(stage, kk):
        va = V_XA + kk
        dst = XSET[kk % 2]
        return [("l", "ds_read_b128 %s, v%d offset:%d" % (vr(dst + 4 * i), va, i * XBLK), ("X", stage, kk)) for i in range(4)]

    def proc_tail(zA, zB, voff, soff, imm, flag, sd, pk=True):
        L = []
        for k, z in enumerate((zA, zB)):
            for r in range(4):
                L.append((8, "v_exp_f32_e64 v%d, -v%d" % (E + 4 * k + r, z + r)))
        if pk:
            for k in range(4):
                L.append((4, "v_pk_fma_f32 v[%d:%d], v[%d:%d], s[%d:%d], s[%d:%d]" % (
                    E + 2 * k, E + 2 * k + 1, E + 2 * k, E + 2 * k + 1, S_L2E, S_L2E + 1, S_L2E, S_L2E + 1)))
        else:
            for k in range(8):
                L.append((4, "v_fma_f32 v%d, v%d, s%d, s%d" % (E + k, E + k, S_L2E, S_L2E)))
        for k in range(8):
            L.append((8, "v_rcp_f32 v%d, v%d" % (E + k, E + k)))
        for k, z in enumerate((zA, zB)):
            if not pk:
                for r in range(4):
                    L.append((4, "v_mul_f32 v%d, v%d, v%d" % (E + 4 * k + r, z + r, E + 4 * k + r)))
                continue
            for h in range(2):
                L.append((4, "v_pk_mul_f32 v[%d:%d], v[%d:%d], v[%d:%d]" % (
                    E + 4 * k + 2 * h, E + 4 * k + 2 * h + 1, z + 2 * h, z + 2 * h + 1,
                    E + 4 * k + 2 * h, E + 4 * k + 2 * h + 1)))
        L.append((4, "v_cvt_pk_bf16_f32 v%d, v%d, v%d" % (sd + 0, E + 0, E + 1)))
        L.append((4, "v_cvt_pk_bf16_f32 v%d, v%d, v%d" % (sd + 2, E + 4, E + 5)))
        L.append((4, "v_cvt_pk_bf16_f32 v%d, v%d, v%d" % (sd + 1, E + 2, E + 3)))
        L.append((4, "v_cvt_pk_bf16_f32 v%d, v%d, v%d" % (sd + 3, E + 6, E + 7)))
        L.append((4, "s_nop 0"))
        L.append((4, "v_permlane16_swap_b32 v%d, v%d" % (sd + 0, sd + 2)))
        L.append((4, "v_permlane16_swap_b32 v%d, v%d" % (sd + 1, sd + 3)))
        L.append((8, "buffer_store_dwordx4 %s, v%d, s[28:31], s%d offen offset:%d %s" % (vr(sd), voff, soff, imm, flag)))
        return L

    def proc_static(accA, accB, parA, parB, voff, soff, imm, flag, sd):
        for acc, par in ((accA, parA), (accB, parB)):
            for h in range(2):
                a("v_pk_fma_f32 v[%d:%d], v[%d:%d], v[%d:%d], v[%d:%d]" % (
                    acc + 2 * h, acc + 2 * h + 1, acc + 2 * h, acc + 2 * h + 1,
                    par + 2 * h, par + 2 * h + 1, par + 4 + 2 * h, par + 4 + 2 * h + 1))
        for c_, ins in proc_tail(accA, accB, voff, soff, imm, flag, sd):
            a(ins)

    def pread_list(tag):
        return [("l", "ds_read_b128 %s, v%d offset:%d" % (vr(PR + 4 * k), V_PAR, 64 * k), tag) for k in range(4)]

    def body(P, stage):
        NT = 5 if P == 0 else 4
        N = 6 * NT
        tiles = [4, 5, 6, 7, 8] if P == 0 else [0, 1, 2, 3]
        gb = N - 4
        fixed = [[] for _ in range(N)]
        for g in range(N):
            kk, t = g // NT, g % NT
            if g + D < N:
                fixed[g] += wread(P, stage, g + D)
            if kk < 5 and t < 2:
                fixed[g] += xread(stage, kk + 1)[2 * t:2 * t + 2]
            if kk < 5 and t == 3:
                fixed[g].append(("v", "v_add_u32 v%d, s%d, v%d" % (V_XA + kk + 1, S_XT, V_XA + kk + 1)))
        fixed[N - 5] += [("s", "s_add_u32 s%d, s%d, %d" % (S_WS, S_WS, WSTAGE)),
                         ("s", "s_cmp_eq_u32 s%d, %d" % (S_WS, WRING + 3 * WSTAGE)),
                         ("s", "s_cselect_b32 s%d, %d, s%d" % (S_WS, WRING, S_WS)),
                         ("v", "v_add_u32 v%d, s%d, v%d" % (V_W, S_WS, V_WLA if P == 0 else V_WLB))]
        if P == 1:
            for t in range(1, 4):
                fixed[N - 5].append(("v", "v_xor_b32 v%d, %d, v%d" % (V_W + t, 32 * t, V_W)))
        xn = xread(stage + 1, 0)
        fixed[gb] += [("bar",)] + xn[0:2] + wread(P, stage + 1, 0)
        fixed[gb + 1] += xn[2:4] + wread(P, stage + 1, 1)
        fixed[gb + 2] += wread(P, stage + 1, 2) + wread(P, stage + 1, 3)
        fixed[gb + 3] += wread(P, stage + 1, 4)
        fixed[gb + 2] += [("s", "s_sub_u32 s%d, 0, s%d" % (S_XT, S_XT))]
        fixed[gb + 3] += [("v", "v_add_u32 v%d, s%d, v%d" % (V_XA, S_XT, V_XA)),
                          ("s", "s_sub_u32 s%d, s%d, 1" % (S_CNT, S_CNT)),
                          ("s", "s_cmp_lg_u32 s%d, 0" % S_CNT)]
        emb = []
        if P == 1 and not opt.noemb:
            for half in range(2):
                ch = ["s_set_gpr_idx_on s%d, gpr_idx(SRC0)" % S_IDX]
                for r in range(4):
                    k = half * 4 + r
                    ch.append("v_fma_f32 v%d, v%d, v%d, v%d" % (Z + k, k, PR + half * 8 + r, PR + half * 8 + 4 + r))
                ch.append("s_set_gpr_idx_off")
                emb.append((8, ("chunk", ch, False)))
            for c_, ins in proc_tail(Z, Z + 4, V_O, S_SO, 0, opt.stflag, SD, opt.embpk):
                emb.append((c_, ("i", ins)))
            emb.append((8, ("chunk", ["s_add_u32 s%d, s%d, 8" % (S_IDX, S_IDX),
                                      "s_add_u32 s%d, s%d, s%d" % (S_SO, S_SO, S_STEP)], False)))
            emb.append((8, ("chunk", ["s_and_b32 s%d, s%d, 31" % (S_T0, S_IDX),
                                      "s_cbranch_scc0 L_fix",
                                      "L_fixret:"], False)))
        out = []

        def emit(s):
            out.append(s if s.endswith(":") else "    " + s)

        def wait(tag):
            n = q.wait(tag)
            if n is not None:
                emit("s_waitcnt lgkmcnt(%d)" % n)

        ei = 0

        def has_wait(g):
            return g % 2 == 0 or g % NT == 0

        for g in range(N):
            kk, t = g // NT, g % NT
            xs = XSET[kk % 2]
            if has_wait(g):
                ns = []
                if t == 0:
                    ns.append(q.wait(("X", stage, kk)))
                ns.append(q.wait(("W", stage, g)))
                if g + 1 < N and not has_wait(g + 1):
                    ns.append(q.wait(("W", stage, g + 1)))
                ns = [x for x in ns if x is not None]
                if ns:
                    emit("s_waitcnt lgkmcnt(%d)" % min(ns))
            else:
                assert q.wait(("W", stage, g)) is None
            seq = fixed[g]
            n = len(seq)
            nw = has_wait(g + 1)
            per = [0, 0, 0, 0]
            if P == 1 and opt.pack:
                order = [0, 0, 3, 1, 1, 2, 2, 3, 0, 1, 2, 3] if nw else [0, 0, 1, 1, 2, 2, 3, 3, 0, 1, 2, 3]
            else:
                order = [0, 1, 2, 3, 0, 1, 2, 3, 0, 1, 2, 3]
            for k in range(n):
                per[order[k]] += 1
            k = 0
            for i in range(4):
                wf = WR + (g % R) * 4
                ac = vr(ACC(tiles[t], i))
                emit("v_mfma_f32_16x16x32_bf16 %s, %s, %s, %s" % (ac, vr(wf), vr(xs + 4 * i), ac))
                used = 4 if (i == 3 and nw) else 0
                for it_ in seq[k:k + per[i]]:
                    used += 4
                    if it_[0] == "l":
                        emit(it_[1])
                        q.issue(it_[2])
                    elif it_[0] == "bar":
                        if q.drain():
                            emit("s_waitcnt lgkmcnt(0)")
                        emit("s_barrier")
                        used += 4
                    else:
                        emit(it_[1])
                k += per[i]
                while ei < len(emb) and g < N - 5 and used + emb[ei][0] <= 8:
                    c_, u = emb[ei]
                    if u[0] == "chunk":
                        for s_ in u[1]:
                            emit(s_)
                    else:
                        emit(u[1])
                    used += c_
                    ei += 1
        assert ei == len(emb), (ei, len(emb))
        return out

    for _, ins, tag in wread(0, 0, 0) + xread(0, 0):
        a(ins)
        q.issue(tag)
    a("v_add_u32 v%d, s%d, v%d" % (V_XA, S_XT, V_XA))
    for f in range(1, D):
        for _, ins, tag in wread(0, 0, f):
            a(ins)
            q.issue(tag)
    a("s_waitcnt lgkmcnt(%d)" % q.wait(("W", 0, 1)))
    body(0, 0)
    bA = body(0, 1)
    assert bA == body(0, 2)
    a(".p2align 6")
    a.label("L_loopA")
    a.lines += bA
    a("s_cbranch_scc1 L_loopA")

    a.c("transition A -> B")
    a("v_add_u32 v%d, s%d, v%d" % (V_W, S_WS, V_WLB))
    for t in range(1, 4):
        a("v_xor_b32 v%d, %d, v%d" % (V_W + t, 32 * t, V_W))
    q.drain()
    for _, ins, tag in pread_list(("P", -1)):
        a(ins)
        q.issue(tag)
    for f in range(D):
        for _, ins, tag in wread(1, 100, f):
            a(ins)
            q.issue(tag)
    a("s_mov_b32 s%d, 9" % S_CNT)
    a("s_mov_b32 s%d, 8" % S_IDX)
    a("s_mov_b32 s%d, %d" % (S_STEP, 16 * ROWB))
    a("s_mov_b32 s%d, %d" % (S_STEPN, 16 * ROWB))
    a("s_add_u32 s%d, s%d, %d" % (S_SO, S_SOFF, 16 * ROWB))
    a("s_waitcnt lgkmcnt(%d)" % q.wait(("P", -1)))
    proc_static(ACC(4, 0), ACC(5, 0), PR, PR + 8, V_O, S_SOFF, 0, opt.stflag, SD)
    a("s_waitcnt lgkmcnt(0)")
    q.drain()
    body(1, 100)
    bB = body(1, 101)
    assert bB == body(1, 102)
    a(".p2align 6")
    a.label("L_loopB")
    a.lines += bB
    a("s_cbranch_scc1 L_loopB")
    stampc(6)
    stamp(3)

    a.c("final epilogue")
    a("s_waitcnt lgkmcnt(0)")
    a("v_subrev_u32 v%d, %d, v%d" % (V_PAR, 8 * 128, V_PAR))
    for k in range(8):
        a("ds_read_b128 %s, v%d offset:%d" % (vr(144 + 4 * k), V_PAR, 64 * k))
    a("s_add_u32 s60, s%d, %d" % (S_SOFF, 16 * ROWB))
    a("s_add_u32 s61, s%d, %d" % (S_SOFF, 32 * ROWB))
    a("s_add_u32 s62, s%d, %d" % (S_SOFF, 48 * ROWB))
    soffs = [S_SOFF, 60, 61, 62]
    a("s_waitcnt lgkmcnt(4)")
    n = 0
    for i in range(4):
        for p in range(2):
            if i == 0 and p == 1:
                a("s_waitcnt lgkmcnt(0)")
            proc_static(ACC(2 * p, i), ACC(2 * p + 1, i), 144 + 16 * p, 144 + 16 * p + 8, V_OB, soffs[i], 64 * p, opt.stflagB, 176 + 4 * (n % 4))
            n += 1
    if opt.noemb:
        pass
    if opt.stamp:
        a("s_waitcnt vmcnt(0)")
        stamp(4)
        a("s_waitcnt lgkmcnt(0)")
        a("s_mov_b32 s32, s18")
        a("s_and_b32 s33, s19, 0xffff")
        a("s_mov_b32 s34, 0x100000")
        a("s_mov_b32 s35, 0x20000")
        a("s_lshl_b32 s36, s2, 3")
        a("s_add_u32 s36, s36, s%d" % S_WAVE)
        a("s_lshl_b32 s36, s36, 6")
        a("s_getreg_b32 s84, hwreg(HW_REG_HW_ID)")
        a("s_getreg_b32 s85, hwreg(HW_REG_XCC_ID)")
        for k in range(16):
            a("v_mov_b32 v%d, s%d" % (k, 70 + k))
        a("v_mov_b32 v16, 0")
        a("v_cmp_eq_u32 vcc, 0, v%d" % V_LANE)
        a("s_and_saveexec_b64 s[40:41], vcc")
        for k in range(4):
            a("buffer_store_dwordx4 v[%d:%d], v16, s[32:35], s36 offen offset:%d" % (4 * k, 4 * k + 3, 16 * k))
    a("s_endpgm")
    if not opt.noemb:
        a.label("L_fix")
        a("s_mov_b32 s%d, s%d" % (S_SO, S_SOFF))
        a("v_mov_b32 v%d, v%d" % (V_O, V_O2))
        a("v_mov_b32 v%d, v%d" % (V_O2, V_O3))
        a("v_add_u32 v%d, 256, v%d" % (V_PAR, V_PAR))
        for _, ins, tag in pread_list(None):
            a(ins)
        a("s_mov_b32 s%d, s%d" % (S_STEP, S_STEPN))
        a("s_mov_b32 s%d, %d" % (S_STEPN, 32 * ROWB))
        a("s_branch L_fixret")

    def lstamp():
        if opt.stamp:
            a("s_memtime s[90:91]")
            a("s_memrealtime s[92:93]")
            a("s_waitcnt lgkmcnt(0)")
            a("s_mov_b32 m0, s69")
            a("s_nop 0")
            a("v_writelane_b32 v40, s90, m0")
            a("v_writelane_b32 v41, s92, m0")
            a("s_add_u32 s69, s69, 1")

    a(".p2align 6")
    a.label("L_loader")
    a.c("loader j = wave-4 (S_T0): W piece j of every k-step, X rows of compute wave j")
    V_WAo, V_WA4, V_WBo = 10, 11, 12
    S_XL, S_XG = 36, 37
    S_WL, S_WG = 38, 39
    S_WL0, S_WL1 = 40, 41
    S_EAL, S_EAG, S_EBL, S_EBG = 42, 43, 44, 45
    a("s_mov_b32 s26, %d" % WBYTES)
    a("s_mov_b32 s27, 0x20000")
    a("s_movk_i32 s60, 0x34")
    a("s_movk_i32 s61, %d" % ROWB)
    a("s_lshl_b32 s62, s%d, 1" % S_R)
    a("s_add_u32 s62, s62, 8")
    a("s_lshl_b32 s%d, s%d, 6" % (S_T2, S_T0))
    for dst, first in ((V_WAo, True), (V_WA4, False)):
        if first:
            a("v_add_u32 v1, s%d, v%d" % (S_T2, V_LANE))
        else:
            a("v_add_u32 v1, 256, v%d" % V_LANE)
        a("v_mul_u32_u24 v3, 6554, v1")
        a("v_lshrrev_b32 v3, 16, v3")
        a("v_mul_u32_u24 v4, 10, v3")
        a("v_sub_u32 v4, v1, v4")
        a("v_add_u32 v4, s62, v4")
        a("v_subrev_u32 v5, 18, v4")
        a("v_min_u32 v4, v4, v5")
        a("v_bfe_u32 v5, v3, 2, 2")
        a("v_lshlrev_b32 v5, 1, v5")
        a("v_bfe_i32 v5, s60, v5, 2")
        a("v_lshl_add_u32 v3, v5, 2, v3")
        a("v_lshlrev_b32 v4, 4, v4")
        a("v_mad_u32_u24 v%d, v3, s61, v4" % dst)
    a("s_lshl_b32 s%d, s%d, 10" % (S_WL0, S_T0))
    a("s_add_u32 s%d, s%d, %d" % (S_WL0, S_WL0, WRING))
    a("s_add_u32 s%d, s%d, %d" % (S_WL1, S_WL0, 3 * WSTAGE))
    a("s_mov_b32 s%d, s%d" % (S_WL, S_WL0))
    a("s_mov_b32 s%d, s%d" % (S_WG, S_COL))
    a("s_mul_i32 s%d, s%d, 4096" % (S_EAL, S_T0))
    a("s_add_u32 s%d, s%d, 4096" % (S_EAL, S_EAL))
    a("s_mul_i32 s%d, s%d, %d" % (S_EAG, S_T0, TAPB))
    a("s_cmp_eq_u32 s%d, 3" % S_T0)
    a("s_cselect_b32 s%d, %d, s%d" % (S_EAG, 32 * ROWB, S_EAG))
    a("s_and_b32 s%d, s%d, 1" % (S_T2, S_T0))
    a("s_mul_i32 s%d, s%d, 5120" % (S_EBL, S_T2))
    a("s_add_u32 s%d, s%d, %d" % (S_EBL, S_EBL, 4 * 5120 + 4096))
    a("s_lshl_b32 s63, s%d, 10" % S_T0)
    a("s_sub_u32 s%d, s%d, s63" % (S_EBL, S_EBL))
    a("s_mul_i32 s%d, s%d, %d" % (S_EBG, S_T2, TAPB))
    a("s_add_u32 s%d, s%d, %d" % (S_EBG, S_EBG, TAPB + 32 * ROWB))
    a("s_waitcnt lgkmcnt(0)")
    a("s_mov_b32 s24, s6")
    a("s_and_b32 s25, s7, 0xffff")
    a("s_mov_b32 s20, s4")
    a("s_and_b32 s21, s5, 0xffff")
    if opt.stamp:
        a("v_mov_b32 v40, 0")
        a("v_mov_b32 v41, s70")
        a("s_mov_b32 s69, 1")
    lstamp()

    def wadv():
        a("s_add_u32 s%d, s%d, %d" % (S_WL, S_WL, WSTAGE))
        a("s_cmp_eq_u32 s%d, s%d" % (S_WL, S_WL1))
        a("s_cselect_b32 s%d, s%d, s%d" % (S_WL, S_WL0, S_WL))
        a("s_add_u32 s%d, s%d, %d" % (S_WG, S_WG, 64 * ROWB))

    def kkg(kk):
        return (kk % 3) * TAPB + (kk // 3) * 32 * ROWB

    def wa():
        for kk in range(6):
            a("s_add_u32 m0, s%d, %d" % (S_WL, kk * 5120))
            a("s_add_u32 s%d, s%d, %d" % (S_T2, S_WG, kkg(kk)))
            a("buffer_load_dwordx4 v%d, s[24:27], s%d offen lds" % (V_WAo, S_T2))
            if kk in (0, 3):
                el, eg = (S_EAL, S_EAG) if kk == 0 else (S_EBL, S_EBG)
                a("s_add_u32 m0, s%d, s%d" % (S_WL, el))
                a("s_add_u32 s%d, s%d, s%d" % (S_T2, S_WG, eg))
                a("buffer_load_dwordx4 v%d, s[24:27], s%d offen lds" % (V_WA4, S_T2))
        wadv()

    def wb():
        for kk in range(6):
            a("s_add_u32 m0, s%d, %d" % (S_WL, kk * 4096))
            a("s_add_u32 s%d, s%d, %d" % (S_T2, S_WG, kkg(kk)))
            a("buffer_load_dwordx4 v%d, s[24:27], s%d offen lds" % (V_WBo, S_T2))
        wadv()

    def xi():
        a("s_mov_b32 m0, s%d" % S_XL)
        a("s_mov_b32 s%d, s%d" % (S_T2, S_XG))
        xdma(S_T2)
        a("s_add_u32 s%d, s%d, s%d" % (S_XL, S_XL, S_XT))
        a("s_sub_u32 s%d, 0, s%d" % (S_XT, S_XT))
        a("s_add_u32 s%d, s%d, 128" % (S_XG, S_XG))

    wa()
    wa()
    a.c("zero rows: r = 8j + (l>>3) (+ row 32 for j == 0)")
    a("s_lshl_b32 s%d, s%d, 3" % (S_T2, S_T0))
    a("v_add_u32 v1, s%d, v%d" % (S_T2, V_T0))
    a("v_mul_u32_u24 v1, %d, v1" % XBLK)
    a("v_and_b32 v2, 7, v%d" % V_LANE)
    a("v_lshl_add_u32 v1, v2, 4, v1")
    a("v_mov_b64 v[4:5], 0")
    a("v_mov_b64 v[6:7], 0")
    a("ds_write_b128 v1, v[4:7]")
    a("v_lshlrev_b32 v1, 4, v2")
    a("v_add_u32 v1, %d, v1" % (32 * XBLK))
    a("ds_write_b128 v1, v[4:7]")
    a("v_and_b32 v1, 3, v%d" % V_T0)
    a("v_bfe_u32 v2, v%d, 2, 1" % V_T0)
    a("v_lshl_add_u32 v1, v2, 3, v1")
    a("s_lshr_b32 s%d, s%d, 1" % (S_T2, S_T0))
    a("s_lshl_b32 s%d, s%d, 4" % (S_T2, S_T2))
    a("s_and_b32 s63, s%d, 1" % S_T0)
    a("s_lshl_b32 s63, s63, 2")
    a("s_add_u32 s%d, s%d, s63" % (S_T2, S_T2))
    a("v_add_u32 v1, s%d, v1" % S_T2)
    a("v_lshlrev_b32 v2, 4, v%d" % V_T1)
    a("v_mad_u32_u24 v%d, v1, s61, v2" % V_WBo)
    a("s_lshl_b32 s%d, s%d, 5" % (S_T2, S_R))
    a("v_add_u32 v%d, s%d, v%d" % (V_WBo, S_T2, V_WBo))
    a("s_add_u32 s%d, s%d, %d" % (S_XL, S_T1, XBUFB + 128))
    a("s_add_u32 s%d, s%d, 128" % (S_XG, S_SOFF))
    a("s_mov_b32 s%d, %d" % (S_XT, (-XBUFB) & 0xffffffff))
    lstamp()
    a("s_waitcnt vmcnt(8) lgkmcnt(0)")
    lstamp()
    a("s_barrier")
    lstamp()
    a("s_mov_b32 s%d, 7" % S_CNT)
    a.label("L_l1")
    xi()
    wa()
    a("s_waitcnt vmcnt(8)")
    lstamp()
    a("s_barrier")
    lstamp()
    a("s_sub_u32 s%d, s%d, 1" % (S_CNT, S_CNT))
    a("s_cmp_lg_u32 s%d, 0" % S_CNT)
    a("s_cbranch_scc1 L_l1")
    a.c("parameter loads: logical idx = 64j + lane; physical = (idx + 16r) mod 144")
    a("s_lshl_b32 s%d, s%d, 6" % (S_T2, S_T0))
    a("v_add_u32 v20, s%d, v%d" % (S_T2, V_LANE))
    a("s_lshl_b32 s%d, s%d, 4" % (S_T2, S_R))
    a("v_add_u32 v21, s%d, v20" % S_T2)
    a("v_subrev_u32 v22, 144, v21")
    a("v_min_u32 v21, v21, v22")
    a("v_lshlrev_b32 v21, 1, v21")
    a("v_add_u32 v21, s%d, v21" % S_COL)
    PS = [28, 32, 76, 96]
    for k in range(4):
        a("s_mov_b32 s%d, s%d" % (PS[k], 8 + 2 * k))
        a("s_and_b32 s%d, s%d, 0xffff" % (PS[k] + 1, 9 + 2 * k))
        a("s_mov_b32 s%d, 1152" % (PS[k] + 2))
        a("s_mov_b32 s%d, 0x20000" % (PS[k] + 3))
    xi()
    a("s_sub_u32 s%d, s%d, %d" % (S_WG, S_WG, 2 * 64 * ROWB))
    wb()
    for k in range(4):
        a("buffer_load_ushort v%d, v21, s[%d:%d], 0 offen" % (24 + k, PS[k], PS[k] + 3))
    a("s_waitcnt vmcnt(10)")
    lstamp()
    a("s_barrier")
    lstamp()
    wb()
    a("s_mov_b32 s%d, s%d" % (S_WG, S_COL))
    a("s_mov_b32 s%d, s%d" % (S_XG, S_SOFF))
    a("s_waitcnt vmcnt(6)")
    a.c("BN parameters: v24=mean v25=var v26=g v27=b (bf16 bits)")
    for k in range(4):
        a("v_lshlrev_b32 v%d, 16, v%d" % (24 + k, 24 + k))
    a("v_add_f32 v25, 0x3727c5ac, v25")
    a("v_cvt_pk_bf16_f32 v25, v25, v25")
    a("v_lshlrev_b32 v25, 16, v25")
    a("v_sqrt_f32 v25, v25")
    a("s_nop 0")
    a("v_cvt_pk_bf16_f32 v25, v25, v25")
    a("v_lshlrev_b32 v25, 16, v25")
    a("v_rcp_f32 v25, v25")
    a("s_nop 0")
    a("v_cvt_pk_bf16_f32 v25, v25, v25")
    a("v_lshlrev_b32 v25, 16, v25")
    a("v_mul_f32 v25, v26, v25")
    a("v_cvt_pk_bf16_f32 v25, v25, v25")
    a("v_lshlrev_b32 v25, 16, v25")
    a("v_fma_f32 v27, -v24, v25, v27")
    a("v_mul_f32 v25, 0x%x, v25" % LOG2E)
    a("v_mul_f32 v27, 0x%x, v27" % LOG2E)
    a("v_lshrrev_b32 v21, 4, v20")
    a("v_lshlrev_b32 v21, 7, v21")
    a("v_and_b32 v22, 15, v20")
    a("v_lshl_add_u32 v21, v22, 2, v21")
    a("v_add_u32 v21, %d, v21" % PARAM)
    a("v_cmp_gt_u32 vcc, 144, v20")
    a("s_and_saveexec_b64 s[46:47], vcc")
    a("ds_write_b32 v21, v25")
    a("ds_write_b32 v21, v27 offset:64")
    a("v_cmp_le_u32 vcc, 128, v20")
    a("s_and_b64 exec, exec, vcc")
    a("ds_write_b32 v21, v25 offset:128")
    a("ds_write_b32 v21, v27 offset:192")
    a("s_mov_b64 exec, s[46:47]")
    a("s_waitcnt lgkmcnt(0)")
    lstamp()
    a("s_barrier")
    lstamp()
    wb()
    a("s_waitcnt vmcnt(6)")
    lstamp()
    a("s_barrier")
    lstamp()
    a("s_mov_b32 s%d, 6" % S_CNT)
    a.label("L_l2")
    xi()
    wb()
    a("s_waitcnt vmcnt(6)")
    lstamp()
    a("s_barrier")
    lstamp()
    a("s_sub_u32 s%d, s%d, 1" % (S_CNT, S_CNT))
    a("s_cmp_lg_u32 s%d, 0" % S_CNT)
    a("s_cbranch_scc1 L_l2")
    xi()
    a("s_waitcnt vmcnt(0)")
    lstamp()
    a("s_barrier")
    lstamp()
    if opt.stamp:
        a("s_mov_b32 s32, s18")
        a("s_and_b32 s33, s19, 0xffff")
        a("s_mov_b32 s34, 0x1000000")
        a("s_mov_b32 s35, 0x20000")
        a("s_lshl_b32 s36, s2, 3")
        a("s_add_u32 s36, s36, s%d" % S_WAVE)
        a("s_lshl_b32 s36, s36, 9")
        a("s_add_u32 s36, s36, 0x100000")
        a("v_lshlrev_b32 v42, 3, v%d" % V_LANE)
        a("buffer_store_dwordx2 v[40:41], v42, s[32:35], s36 offen")
    a.label("L_end")
    a("s_endpgm")

    out = HEADER
    out += "; @launch grid=(256,1,1) block=(512,1,1) lds=%d\n" % LDS_BYTES
    out += '.amdgcn_target "amdgcn-amd-amdhsa--gfx950"\n.text\n.globl %s\n.p2align 8\n.type %s,@function\n' % (KNAME, KNAME)
    out += a.text()
    out += """.section .rodata,"a"
.p2align 6
.amdhsa_kernel %s
  .amdhsa_next_free_vgpr 256
  .amdhsa_next_free_sgpr 102
  .amdhsa_accum_offset 256
  .amdhsa_group_segment_fixed_size 0
  .amdhsa_kernarg_size 72
  .amdhsa_user_sgpr_count 2
  .amdhsa_user_sgpr_kernarg_segment_ptr 1
  .amdhsa_system_sgpr_workgroup_id_x 1
  .amdhsa_float_denorm_mode_32 3
.end_amdhsa_kernel
""" % KNAME
    return out


if __name__ == "__main__":
    ap = argparse.ArgumentParser()
    ap.add_argument("-o", default="standalone__batchnorm__sampling.s")
    ap.add_argument("--prio", type=int, default=3)
    ap.add_argument("--stamp", action="store_true")
    ap.add_argument("--stflag", default="sc0 sc1")
    ap.add_argument("--stflagB", default="")
    ap.add_argument("--noemb", action="store_true")
    ap.add_argument("--embpk", type=int, default=0)
    ap.add_argument("--pack", type=int, default=1)
    opt = ap.parse_args()
    open(opt.o, "w").write(gen(opt))
```

```python
import sys
import argparse

KNAME = "standalone__batchnorm__sampling_kernel"

HEADER = """; Kernarg layout for this problem (72 bytes, ptrs only, base s[0:1]):
"""

XBYTES = 1024 * 16 * 576 * 2
WBYTES = 3 * 576 * 576 * 2
ROWB = 1152
TAPB = 576 * 1152

XBLK = 17 * 128
XBUFB = 16 * XBLK
WRING = 2 * XBUFB + 128
WKS = 10240
WSTAGE = 3 * WKS
PARAM = WRING + 3 * WSTAGE
LDS_BYTES = PARAM + 1280

LOG2E = 0x3FB8AA3B


class Asm:
    def __init__(self):
        self.lines = []

    def __call__(self, s):
        self.lines.append("    " + s)

    def label(self, l):
        self.lines.append(l + ":")

    def c(self, s):
        self.lines.append("    ; " + s)

    def text(self):
        return "\n".join(self.lines) + "\n"


class LdsQ:
    def __init__(self):
        self.q = []

    def issue(self, tag):
        self.q.append(tag)

    def wait(self, tag):
        idx = [i for i, t in enumerate(self.q) if t == tag]
        if not idx:
            return None
        n = min(len(self.q) - 1 - idx[-1], 15)
        self.q = self.q[len(self.q) - n:] if n else []
        return n

    def drain(self):
        had = bool(self.q)
        self.q = []
        return had


def vr(b, n=4):
    return "v[%d:%d]" % (b, b + n - 1)


def sizes_of(lines):
    import subprocess, re, os
    src = '.amdgcn_target "amdgcn-amd-amdhsa--gfx950"\n.text\n' + "\n".join(lines) + "\n" + "".join("N_%d:\n" % k for k in range(1, 14))
    open("_sz.s", "w").write(src)
    r = subprocess.run(["clang", "-x", "assembler", "-target", "amdgcn-amd-amdhsa", "-mcpu=gfx950", "-c", "_sz.s", "-o", "_sz.o"], capture_output=True, text=True)
    assert r.returncode == 0, r.stderr
    d = subprocess.run(["llvm-objdump", "-d", "--mcpu=gfx950", "_sz.o"], capture_output=True, text=True).stdout
    sz = [len(m.group(1).split()) * 4 for m in re.finditer(r"// [0-9A-F]{12}: ((?:[0-9A-F]{8} ?)+)", d)]
    out = []
    k = 0
    for l in lines:
        t = l.strip()
        if not t or t.startswith(";") or t.endswith(":"):
            out.append(0)
        else:
            assert not t.startswith("."), t
            out.append(sz[k])
            k += 1
    assert k == len(sz)
    return out


def resolve_pads(a):
    lines = [l for l in a.lines]
    sz = sizes_of([l if not l.startswith("@") else "" for l in lines])
    out = []
    addr = 0
    epi = None
    for l, n in zip(lines, sz):
        if l.startswith("@PAD "):
            tgt = int(l.split()[1])
            if addr > tgt:
                tgt = (addr + 63) // 64 * 64
            a.base1 = tgt
        elif l == "@NODE1":
            continue
        elif l == "@PADEPI":
            addr_n = addr + 16
            tgt = (addr_n + 4095) // 4096 * 4096 - 16
            epi = tgt + 16
        else:
            out.append(l); addr += n
            continue
        while addr < tgt:
            out.append("    s_endpgm"); addr += 4
    a.lines = out
    return epi


def insert_nodes(a, rets):
    epi = resolve_pads(a)
    target = {k: a.base1 + 1024 * (k - 1) for k in range(1, 5)}
    sz = sizes_of(a.lines)
    L = a.lines
    new = []
    addr = 0
    k = 1
    i = 0
    while i < len(L) and addr < epi:
        if k <= 4 and addr >= target[k] and sz[i]:
            cand = []
            ad, j = addr, i
            while j < len(L) and ad <= target[k] + 60:
                if sz[j]:
                    cand.append(j)
                ad += sz[j]
                j += 1
            pick = cand[0]
            for j in (cand if k > 1 else []):
                prev = [x for x in range(j - 1, -1, -1) if sz[x]][:1]
                if "v_mfma" in L[j] and "v_mfma" in L[prev[0]]:
                    pick = j
                    break
            while i < pick:
                new.append(L[i]); addr += sz[i]; i += 1
            if k == 1:
                assert new[-1] == "L_cgo:"
                new[-1:] = ["N_1:", "    s_branch %s" % rets[k], "L_cgo:"]
            else:
                new.append("N_%d:" % k)
                new.append("    s_cbranch_execz %s" % rets[k])
            addr += 4
            k += 1
            continue
        new.append(L[i]); addr += sz[i]; i += 1
    assert k == 5 and addr == epi, (k, addr, epi)
    seg = epi
    new.append("N_5:")
    new.append("    s_branch %s" % rets[5])
    addr += 4
    k = 6
    while i < len(L):
        ad, j = addr, i
        best_s = best_m = None
        while j < len(L) and ad + sz[j] + 4 <= seg + 1024:
            ad += sz[j]
            if "buffer_store" in L[j]:
                best_s = (j + 1, ad)
            if "v_mfma" in L[j]:
                best_m = (j + 1, ad)
            j += 1
        if j == len(L):
            new += L[i:]
            addr = ad
            break
        cut = best_s if best_s and (not best_m or best_s[1] > best_m[1] - 200) else best_m
        if k not in rets:
            print("; WARNING: code past the last touch node", file=sys.stderr)
            new += L[i:]
            break
        new += L[i:cut[0]]
        i, addr = cut
        new.append("    s_branch L_seg%d" % k)
        addr += 4
        seg = seg + 1344 if (seg % 4096) < 2688 else (seg // 4096 + 1) * 4096
        while addr < seg:
            new.append("    s_endpgm"); addr += 4
        new.append("N_%d:" % k)
        new.append("    s_branch %s" % rets[k])
        new.append("L_seg%d:" % k)
        addr += 4
        k += 1
    for kk in range(k, max(rets) + 1):
        new = [l.replace(" N_%d" % kk, " " + rets[kk]) if l.endswith(" N_%d" % kk) else l for l in new]
    a.lines = new
    a.end_addr = addr
    a.last_seg = seg


opt_tight = False


def gen(opt):
    a = Asm()

    def ACC(tau, i):
        return (tau * 4 + i) * 4 if tau < 8 else 128 + ((tau - 8) * 2 + i) * 4

    XR0 = 144
    WR = 192
    V_WE, V_WO, V_WLE, V_WLO = 240, 241, 242, 243
    V_XA = 244
    V_PAR, V_OUT, V_LANE, V_XD = 250, 251, 252, 253
    V_T0, V_T1, V_T2, V_T3 = 148, 149, 150, 151
    V_WA, V_W4, V_ST = 10, 11, 40

    S_WAVE, S_ROW, S_COL, S_ODD = 48, 49, 50, 57
    S_J, S_XB, S_T2 = 51, 52, 53
    S_WS, S_CNT, S_SOFF = 54, 55, 56
    S_L2E = 58
    S_XT = 63
    S_OUT = 64
    S_WL, S_WG, S_WL0, S_WL1 = 36, 37, 38, 39
    S_EAL, S_EAG, S_EBL, S_EBG = 40, 41, 42, 43
    S_S = 44

    def stamp(idx):
        if opt.stamp:
            a("s_memrealtime s[%d:%d]" % (70 + 2 * idx, 71 + 2 * idx))

    def stampc(idx):
        if opt.stamp:
            a("s_memtime s[%d:%d]" % (70 + 2 * idx, 71 + 2 * idx))

    def lstamp():
        if opt.stamp:
            a("s_memtime s[90:91]")
            a("s_memrealtime s[92:93]")
            a("s_waitcnt lgkmcnt(0)")
            a("s_mov_b32 m0, s94")
            a("s_nop 0")
            a("v_writelane_b32 v%d, s90, m0" % V_ST)
            a("v_writelane_b32 v%d, s92, m0" % (V_ST + 1))
            a("s_add_u32 s94, s94, 1")

    a.label(KNAME)
    stamp(0)
    a("s_load_dwordx8 s[4:11], s[0:1], 0")
    a("s_load_dwordx4 s[12:15], s[0:1], 32")
    a("s_load_dwordx2 s[16:17], s[0:1], 48")
    if opt.stamp:
        a("s_load_dwordx2 s[18:19], s[0:1], 64")
    a("v_lshrrev_b32 v1, 6, v0")
    a("v_and_b32 v%d, 63, v0" % V_LANE)
    a("s_cmp_ge_u32 s2, 256")
    a("s_cbranch_scc1 L_end")
    a("v_readfirstlane_b32 s%d, v1" % S_WAVE)
    a("s_and_b32 s%d, s2, 7" % S_ROW)
    a("s_lshr_b32 s%d, s2, 5" % S_T2)
    a("s_lshl3_add_u32 s%d, s%d, s%d" % (S_ROW, S_ROW, S_T2))
    a("s_bfe_u32 s%d, s2, 0x20003" % S_COL)
    a("s_and_b32 s%d, s%d, 1" % (S_ODD, S_COL))
    a("s_mulk_i32 s%d, 288" % S_COL)
    a("s_lshl_b32 s%d, s%d, 5" % (S_T2, S_ODD))
    a("s_sub_u32 s%d, s%d, s%d" % (S_COL, S_COL, S_T2))
    a("s_and_b32 s%d, s%d, 3" % (S_J, S_WAVE))
    a("s_lshl2_add_u32 s%d, s%d, s%d" % (S_SOFF, S_ROW, S_J))
    a("s_mul_i32 s%d, s%d, %d" % (S_SOFF, S_SOFF, 64 * ROWB))
    a("s_mul_i32 s%d, s%d, %d" % (S_XB, S_J, 4 * XBLK))
    a("s_mov_b32 s22, %d" % XBYTES)
    a("s_mov_b32 s23, 0x20000")
    a("v_lshrrev_b32 v%d, 3, v%d" % (V_T0, V_LANE))
    a("v_and_b32 v%d, 7, v%d" % (V_T1, V_LANE))
    a("v_and_b32 v%d, 6, v%d" % (V_T2, V_T0))
    a("v_xor_b32 v%d, v%d, v%d" % (V_T2, V_T1, V_T2))
    a("v_mul_u32_u24 v%d, %d, v%d" % (V_XD, ROWB, V_T0))
    a("v_lshl_add_u32 v%d, v%d, 4, v%d" % (V_XD, V_T2, V_XD))
    a("s_cmp_ge_u32 s%d, 4" % S_WAVE)
    a("s_cbranch_scc1 L_loader")

    def touch(nodes, ret, ex=True):
        if ex:
            a("s_mov_b64 exec, 0")
        for k, nd in enumerate(nodes[:-1]):
            a("s_cmp_eq_u32 s%d, %d" % (S_J, k))
            a("s_cbranch_scc1 %s" % nd)
        a("s_branch %s" % nodes[-1])
        if ret:
            a.label(ret)
            if ex:
                a("s_mov_b64 exec, -1")

    NODE_RET = {}

    def x4(sg):
        for n in range(4):
            a("buffer_load_dwordx4 v%d, s[20:23], s%d offen lds" % (V_XD, sg))
            if n < 3:
                a("s_addk_i32 m0, %d" % (1024 if n % 2 == 0 else XBLK - 1024))
                a("s_addk_i32 s%d, %d" % (sg, 8 * ROWB))

    def touch1(j, node, ex=True):
        if not opt.touch:
            return
        a("s_cmp_lg_u32 s%d, %d" % (S_J, j))
        a("s_cbranch_scc1 R2_%s" % node)
        if ex:
            a("s_mov_b64 exec, 0")
        a("s_branch %s" % node)
        a.label("R_%s" % node)
        if ex:
            a("s_mov_b64 exec, -1")
        a.label("R2_%s" % node)

    touch1(0, "N_4")
    a.c("compute wave: DMA own X rows, chunk 0 (logical row tiles 0,1 = physical 2*odd.., then the other two)")
    a("s_mul_i32 s60, s%d, %d" % (S_ODD, 32 * ROWB))
    a("s_add_u32 s%d, s%d, s60" % (S_T2, S_SOFF))
    a("s_xor_b32 s60, s60, %d" % (32 * ROWB))
    a("s_add_u32 s61, s%d, s60" % S_SOFF)
    a("s_add_u32 m0, s%d, 128" % S_XB)
    a("s_waitcnt lgkmcnt(0)")
    a("s_mov_b32 s20, s4")
    a("s_and_b32 s21, s5, 0xffff")
    x4(S_T2)
    a("s_addk_i32 m0, %d" % (XBLK - 1024))
    a("s_nop 0")
    x4(61)
    a("s_branch L_csetup")

    a.label("L_loader")
    a.c("loader j: sub-piece j of each 16-row unit of W (+ share of sub-piece 4), X rows of compute wave j")
    a("s_mov_b32 s26, %d" % WBYTES)
    a("s_mov_b32 s27, 0x20000")
    a("s_movk_i32 s60, 0x34")
    a("s_movk_i32 s61, %d" % ROWB)
    a("s_lshl_b32 s62, s%d, 2" % S_ODD)
    a("s_lshl_b32 s%d, s%d, 6" % (S_T2, S_J))
    for dst, first in ((V_WA, True), (V_W4, False)):
        if first:
            a("v_add_u32 v1, s%d, v%d" % (S_T2, V_LANE))
        else:
            a("v_add_u32 v1, 256, v%d" % V_LANE)
        a("v_mul_u32_u24 v3, 3277, v1")
        a("v_lshrrev_b32 v3, 16, v3")
        a("v_mul_u32_u24 v4, 20, v3")
        a("v_sub_u32 v4, v1, v4")
        a("v_lshrrev_b32 v5, 1, v3")
        a("v_and_b32 v2, 2, v5")
        a("v_xor_b32 v4, v2, v4")
        a("v_add_u32 v4, s62, v4")
        a("v_subrev_u32 v2, 20, v4")
        a("v_min_u32 v4, v4, v2")
        a("v_and_b32 v5, 6, v5")
        a("v_bfe_i32 v5, s60, v5, 2")
        a("v_lshl_add_u32 v3, v5, 2, v3")
        a("v_lshlrev_b32 v4, 4, v4")
        a("v_mad_u32_u24 v%d, v3, s61, v4" % dst)
    a("s_lshl_b32 s62, s%d, 10" % S_J)
    a("s_add_u32 s%d, s62, %d" % (S_WL0, WRING))
    a("s_add_u32 s%d, s%d, %d" % (S_WL1, S_WL0, 3 * WSTAGE))
    a("s_mov_b32 s%d, s%d" % (S_WL, S_WL0))
    a("s_mov_b32 s%d, s%d" % (S_WG, S_COL))
    a("s_lshl_b32 s%d, s%d, 12" % (S_EAL, S_J))
    a("s_addk_i32 s%d, 4096" % S_EAL)
    a("s_and_b32 s%d, s%d, 1" % (S_T2, S_J))
    a("s_mul_i32 s%d, s%d, %d" % (S_EBG, S_T2, 16 * ROWB))
    a("s_lshr_b32 s%d, s%d, 1" % (S_EAG, S_J))
    a("s_mul_i32 s%d, s%d, %d" % (S_EAG, S_EAG, TAPB))
    a("s_add_u32 s%d, s%d, s%d" % (S_EAG, S_EAG, S_EBG))
    a("s_add_u32 s%d, s%d, %d" % (S_EBG, S_EBG, 2 * TAPB))
    a("s_mulk_i32 s%d, 5120" % S_T2)
    a("s_addk_i32 s%d, %d" % (S_T2, 4 * 5120 + 4096))
    a("s_sub_u32 s%d, s%d, s62" % (S_EBL, S_T2))
    a("s_mov_b32 s%d, -2" % S_S)
    a("s_waitcnt lgkmcnt(0)")
    a("s_mov_b32 s24, s6")
    a("s_and_b32 s25, s7, 0xffff")
    a("s_mov_b32 s20, s4")
    a("s_and_b32 s21, s5, 0xffff")
    if opt.stamp:
        a("v_mov_b32 v%d, 0" % V_ST)
        a("v_mov_b32 v%d, s70" % (V_ST + 1))
        a("s_mov_b32 s94, 3")
    a.label("L_lw")
    for u in range(6):
        if u == 0:
            a("s_mov_b32 m0, s%d" % S_WL)
            a("s_mov_b32 s%d, s%d" % (S_T2, S_WG))
        else:
            a("s_addk_i32 m0, 5120")
            if u & 1:
                a("s_addk_i32 s%d, %d" % (S_T2, 16 * ROWB))
            else:
                a("s_add_u32 s%d, s%d, %d" % (S_T2, S_T2, TAPB - 16 * ROWB))
        a("buffer_load_dwordx4 v%d, s[24:27], s%d offen lds" % (V_WA, S_T2))
    for el, eg in ((S_EAL, S_EAG), (S_EBL, S_EBG)):
        a("s_add_u32 m0, s%d, s%d" % (S_WL, el))
        a("s_add_u32 s%d, s%d, s%d" % (S_T2, S_WG, eg))
        a("buffer_load_dwordx4 v%d, s[24:27], s%d offen lds" % (V_W4, S_T2))
    a("s_addk_i32 s%d, %d" % (S_WL, WSTAGE))
    a("s_cmp_eq_u32 s%d, s%d" % (S_WL, S_WL1))
    a("s_cselect_b32 s%d, s%d, s%d" % (S_WL, S_WL0, S_WL))
    a("s_add_u32 s%d, s%d, %d" % (S_WG, S_WG, 32 * ROWB))
    a("s_add_i32 s%d, s%d, 1" % (S_S, S_S))
    a("s_cmp_lt_i32 s%d, 0" % S_S)
    a("s_cbranch_scc1 L_lw")
    a("s_cmp_eq_u32 s%d, 0" % S_S)
    a("s_cbranch_scc1 L_lwait")
    a("s_bitcmp0_b32 s%d, 0" % S_S)
    a("s_cbranch_scc1 L_ltouch1")
    a.label("L_lwait")
    a("s_waitcnt vmcnt(8)")
    lstamp()
    a("s_barrier")
    lstamp()
    a("s_cmp_eq_u32 s%d, 16" % S_S)
    a("s_cbranch_scc1 L_ltail")
    a("s_and_b32 s60, s%d, 1" % S_S)
    a("s_lshr_b32 s61, s%d, 1" % S_S)
    a("s_add_u32 s61, s61, 1")
    a("s_mul_i32 s62, s60, %d" % (2 * XBLK))
    a("s_add_u32 s62, s62, s%d" % S_XB)
    a("s_addk_i32 s62, 128")
    a("s_bitcmp1_b32 s61, 0")
    a("s_cselect_b32 s63, %d, 0" % XBUFB)
    a("s_add_u32 m0, s62, s63")
    a("s_xor_b32 s60, s60, s%d" % S_ODD)
    a("s_mul_i32 s60, s60, %d" % (32 * ROWB))
    a("s_lshl_b32 s61, s61, 7")
    a("s_add_u32 s60, s60, s61")
    a("s_add_u32 s60, s60, s%d" % S_SOFF)
    x4(60)
    a("s_branch L_lw")

    a.lines.append("@PAD 1344")
    a.label("L_ltouch1")
    if opt.touch:
        a.c("one instruction-cache touch per stage (each node branches straight back to L_lwait)")
        for k in range(1, 8):
            a("s_cmp_eq_u32 s%d, %d" % (S_S, 2 + 2 * k))
            a("s_cbranch_scc1 N_%d" % (4 + k))
    a("s_cmp_lg_u32 s%d, 2" % S_S)
    a("s_cbranch_scc1 L_lwait")
    a.c("BN parameter loads: logical idx = 64j + lane (<160); physical = (idx + 32*odd) mod 160")
    a("s_lshl_b32 s%d, s%d, 6" % (S_T2, S_J))
    a("v_add_u32 v60, s%d, v%d" % (S_T2, V_LANE))
    a("s_lshl_b32 s%d, s%d, 5" % (S_T2, S_ODD))
    a("v_add_u32 v61, s%d, v60" % S_T2)
    a("v_subrev_u32 v62, 160, v61")
    a("v_min_u32 v61, v61, v62")
    a("v_lshlrev_b32 v61, 1, v61")
    PS = [28, 32, 64, 96]
    for k in range(4):
        a("s_mov_b32 s%d, s%d" % (PS[k], 8 + 2 * k))
        a("s_and_b32 s%d, s%d, 0xffff" % (PS[k] + 1, 9 + 2 * k))
        a("s_movk_i32 s%d, 1152" % (PS[k] + 2))
        a("s_mov_b32 s%d, 0x20000" % (PS[k] + 3))
        a("buffer_load_ushort v%d, v61, s[%d:%d], s%d offen" % (64 + k, PS[k], PS[k] + 3, S_COL))
    a("s_branch L_lwait")

    a.label("L_ltail")
    a.c("BN parameters: v64=mean v65=var v66=g v67=b (bf16 bits); roundings follow the bf16 reference")
    for k in range(4):
        a("v_lshlrev_b32 v%d, 16, v%d" % (64 + k, 64 + k))
    a("v_add_f32 v65, 0x3727c5ac, v65")
    a("v_cvt_pk_bf16_f32 v65, v65, v65")
    a("v_lshlrev_b32 v65, 16, v65")
    a("v_sqrt_f32 v65, v65")
    a("v_lshrrev_b32 v61, 4, v60")
    a("v_cvt_pk_bf16_f32 v65, v65, v65")
    a("v_lshlrev_b32 v65, 16, v65")
    a("v_rcp_f32 v65, v65")
    a("v_lshlrev_b32 v61, 7, v61")
    a("v_cvt_pk_bf16_f32 v65, v65, v65")
    a("v_lshlrev_b32 v65, 16, v65")
    a("v_mul_f32 v65, v66, v65")
    a("v_cvt_pk_bf16_f32 v65, v65, v65")
    a("v_lshlrev_b32 v65, 16, v65")
    a("v_fma_f32 v67, -v64, v65, v67")
    a("v_mul_f32 v65, 0x%x, v65" % LOG2E)
    a("v_mul_f32 v67, 0x%x, v67" % LOG2E)
    a("v_and_b32 v62, 15, v60")
    a("v_lshl_add_u32 v61, v62, 2, v61")
    a("v_add_u32 v61, %d, v61" % PARAM)
    a("v_cmp_gt_u32 vcc, 160, v60")
    a("s_and_saveexec_b64 s[46:47], vcc")
    a("ds_write_b32 v61, v65")
    a("ds_write_b32 v61, v67 offset:64")
    a("s_mov_b64 exec, s[46:47]")
    a("s_waitcnt vmcnt(0) lgkmcnt(0)")
    lstamp()
    a("s_barrier")
    lstamp()
    if opt.stamp:
        a("s_mov_b32 s32, s18")
        a("s_and_b32 s33, s19, 0xffff")
        a("s_mov_b32 s34, 0x1000000")
        a("s_mov_b32 s35, 0x20000")
        a("s_lshl_b32 s36, s2, 3")
        a("s_add_u32 s36, s36, s%d" % S_WAVE)
        a("s_lshl_b32 s36, s36, 9")
        a("s_add_u32 s36, s36, 0x100000")
        a("v_lshlrev_b32 v42, 3, v%d" % V_LANE)
        a("buffer_store_dwordx2 v[%d:%d], v42, s[32:35], s36 offen" % (V_ST, V_ST + 1))
    a.label("L_end")
    a("s_endpgm")

    a.lines.append("@PAD 4096")
    main_lines = a.lines
    a.lines = []
    a.label("L_csetup")
    touch1(1, "N_3")
    a.c("zero rows: r = 8w + (l>>3), and row 32")
    a("s_lshl_b32 s%d, s%d, 3" % (S_T2, S_J))
    a("v_add_u32 v1, s%d, v%d" % (S_T2, V_T0))
    a("v_mul_u32_u24 v1, %d, v1" % XBLK)
    a("v_lshl_add_u32 v1, v%d, 4, v1" % V_T1)
    a("v_mov_b64 v[4:5], 0")
    a("v_mov_b64 v[6:7], 0")
    a("ds_write_b128 v1, v[4:7]")
    a("v_lshlrev_b32 v2, 4, v%d" % V_T1)
    a("v_add_u32 v2, %d, v2" % (32 * XBLK))
    a("ds_write_b128 v2, v[4:7]")
    a("s_mov_b32 s28, s16")
    a("s_and_b32 s29, s17, 0xffff")
    a("s_mov_b32 s30, s22")
    a("s_mov_b32 s31, 0x20000")
    a("s_mov_b32 s%d, 0x%x" % (S_L2E, LOG2E))
    a("s_mov_b32 s%d, s%d" % (S_L2E + 1, S_L2E))
    a("s_mov_b32 s%d, %d" % (S_XT, XBUFB))
    a("v_lshrrev_b32 v%d, 4, v%d" % (V_T3, V_LANE))
    a("v_and_b32 v%d, 15, v%d" % (V_T2, V_LANE))
    for tap in range(3):
        va = V_XA + tap
        a("v_add_u32 v%d, %d, v%d" % (V_T0, tap + 15, V_T2))
        a("v_and_b32 v%d, 6, v%d" % (V_T0, V_T0))
        a("v_xor_b32 v%d, v%d, v%d" % (V_T0, V_T0, V_T3))
        a("v_lshlrev_b32 v%d, 4, v%d" % (V_T0, V_T0))
        a("v_lshl_add_u32 v%d, v%d, 7, v%d" % (V_T0, V_T2, V_T0))
        if tap:
            a("s_addk_i32 s%d, 128" % S_XB)
        a("v_add_u32 v%d, s%d, v%d" % (va, S_XB, V_T0))
        a("v_xor_b32 v%d, 64, v%d" % (va + 3, va))
    touch1(2, "N_2")
    a("v_mul_u32_u24 v%d, %d, v%d" % (V_OUT, ROWB, V_T2))
    a("v_lshrrev_b32 v%d, 1, v%d" % (V_T0, V_T3))
    a("v_lshl_add_u32 v%d, v%d, 4, v%d" % (V_OUT, V_T0, V_OUT))
    a("v_and_b32 v%d, 1, v%d" % (V_T1, V_T3))
    a("v_lshl_add_u32 v%d, v%d, 5, v%d" % (V_OUT, V_T1, V_OUT))
    a("v_lshlrev_b32 v%d, 4, v%d" % (V_PAR, V_T3))
    a("v_add_u32 v%d, %d, v%d" % (V_PAR, PARAM, V_PAR))
    a("v_lshlrev_b32 v%d, 4, v%d" % (V_T0, V_T0))
    a("v_lshl_add_u32 v%d, v%d, 2, v%d" % (V_T0, V_T1, V_T0))
    a("v_bfe_u32 v%d, v%d, 2, 2" % (V_T2, V_LANE))
    a("v_add_u32 v%d, v%d, v%d" % (V_T0, V_T0, V_T2))
    a("v_mul_u32_u24 v%d, 320, v%d" % (V_T0, V_T0))
    a("v_and_b32 v%d, 3, v%d" % (V_T2, V_LANE))
    a("v_lshl_add_u32 v%d, v%d, 3, v%d" % (V_T0, V_T2, V_T0))
    a("v_lshlrev_b32 v%d, 5, v%d" % (V_T1, V_T1))
    a("v_add_u32 v%d, v%d, v%d" % (V_WLE, V_T0, V_T1))
    a("v_sub_u32 v%d, v%d, v%d" % (V_WLO, V_T0, V_T1))
    a("s_mov_b32 s%d, %d" % (S_WS, WRING))
    a("v_add_u32 v%d, s%d, v%d" % (V_WE, S_WS, V_WLE))
    a("v_add_u32 v%d, s%d, v%d" % (V_WO, S_WS, V_WLO))
    a("s_add_u32 s%d, s%d, s%d" % (S_SOFF, S_SOFF, S_COL))
    a("s_mul_i32 s60, s%d, %d" % (S_ODD, 32 * ROWB))
    a("s_add_u32 s61, s%d, s60" % S_SOFF)
    a("s_xor_b32 s60, s60, %d" % (32 * ROWB))
    a("s_add_u32 s62, s%d, s60" % S_SOFF)
    a("s_lshl_b32 s60, s%d, 6" % S_ODD)
    a("s_add_u32 s%d, s61, s60" % S_OUT)
    a("s_add_u32 s%d, s%d, %d" % (S_OUT + 1, S_OUT, 16 * ROWB))
    a("s_add_u32 s%d, s62, s60" % (S_OUT + 2))
    a("s_add_u32 s%d, s%d, %d" % (S_OUT + 3, S_OUT + 2, 16 * ROWB))
    a("s_lshl_b32 s60, s%d, 8" % S_ODD)
    a("s_sub_u32 s%d, s61, s60" % (S_OUT + 4))
    a("s_addk_i32 s%d, 256" % (S_OUT + 4))
    a("s_add_u32 s%d, s%d, %d" % (S_OUT + 5, S_OUT + 4, 16 * ROWB))
    for r in range(0, 144, 2):
        if r == 24:
            touch1(3, "N_1", False)
        a("v_mov_b64 v[%d:%d], 0" % (r, r + 1))
    a("s_mov_b32 s%d, %d" % (S_CNT, 9))
    a("s_branch L_cgo")
    csetup_lines = a.lines
    a.lines = main_lines
    a.lines.append("@NODE1")
    a.label("L_cgo")
    a("s_waitcnt vmcnt(0) lgkmcnt(0)")
    stamp(1)
    a("s_setprio %d" % opt.prio)
    a("s_barrier")
    stamp(2)
    stampc(5)
    if opt.stamp:
        a("s_waitcnt lgkmcnt(0)")

    UNITS = [(0, 2), (0, 3), (1, 3), (1, 2), (1, 1), (1, 0), (0, 0), (0, 1), (2, 1), (2, 0), (2, 2), (2, 3)]
    for tau in range(3, 8):
        UNITS += [(tau, i) for i in ((3, 2, 1, 0) if tau % 2 else (0, 1, 2, 3))]
    UNITS += [(8, 0), (8, 1), (9, 1), (9, 0)]

    def expand(units):
        r = []
        for u, (tau, i) in enumerate(units):
            r += [(tau, i, k) for k in ((0, 1, 2) if u % 2 == 0 else (2, 1, 0))]
        return r

    MF = expand(UNITS)
    assert len(MF) == 108
    BP, MARG, QUIET, TOLD = opt.bp, opt.marg, opt.quiet, opt.told
    XR = lambda i, k: XR0 + (i * 3 + k) * 4
    wslot = lambda s, tau, k: WR + ((s * 30 + tau * 3 + k) % 12) * 4
    gbar = lambda s: 108 * s - BP - 1

    def w_ins(reg, tau, k, h):
        return "ds_read_b64_tr_b16 v[%d:%d], v%d offset:%d" % (reg + 2 * h, reg + 2 * h + 1, V_WE if tau % 2 == 0 else V_WO, k * WKS + h * 2560 + tau * 32)

    def x_ins(s, i, k):
        return "ds_read_b128 %s, v%d offset:%d" % (vr(XR(i, k)), V_XA + (s % 2) * 3 + k, i * XBLK)

    wfirst, wlast, xfirst, xlast = {}, {}, {}, {}
    for idx, (tau, i, k) in enumerate(MF):
        wfirst.setdefault((tau, k), idx); wlast[(tau, k)] = idx
        xfirst.setdefault((i, k), idx); xlast[(i, k)] = idx
    NS = 8
    ops = []
    for s_ in range(1, NS):
        for tau in range(10):
            for k in range(3):
                n = s_ * 30 + tau * 3 + k - 12
                ps, pt, pk_ = n // 30, (n % 30) // 3, n % 3
                e = max(gbar(s_) + 1, 108 * ps + wlast[(pt, pk_)])
                d = min(108 * s_ + wfirst[(tau, k)] - MARG, gbar(s_ + 1) - QUIET)
                for h in range(2):
                    ops.append([e, d, w_ins(wslot(s_, tau, k), tau, k, h), ("W", s_, tau, k)])
        for i in range(4):
            for k in range(3):
                e = max(gbar(s_) + 1, 108 * (s_ - 1) + xlast[(i, k)])
                d = 108 * s_ + xfirst[(i, k)] - MARG
                ops.append([e, d, x_ins(s_, i, k), ("X", s_, i, k)])
    gap = {}
    bars = {gbar(s_) for s_ in range(1, NS + 1)}
    pend = sorted(ops, key=lambda o: (o[1], o[0]))
    late = 0
    lastw, lastx = {}, {}
    for p in range(gbar(1), 108 * NS):
        if p in bars:
            continue
        for o in pend:
            if o[0] <= p:
                gap.setdefault(p, []).append(("l", o[2], o[3]))
                late = max(late, p - o[1])
                (lastw if o[3][0] == "W" else lastx)[o[3][1]] = p
                pend.remove(o)
                break
    assert not pend
    if late > 0:
        print("; worst deadline miss: %d gaps" % late, file=sys.stderr)

    def place(seq, lo, hi):
        free = [p for p in range(lo, hi + 1) if p not in bars and not gap.get(p)]
        slots = [p for p in free for _ in range(2)]
        if len(slots) < len(seq):
            slots = sorted(slots + [p for p in range(lo, hi + 1) if p not in bars and gap.get(p)])
        assert len(slots) >= len(seq), (lo, hi)
        for ins, p in zip(seq, slots):
            gap.setdefault(p, []).append(("i", ins))

    for s_ in range(1, NS - 1):
        assert lastw[s_] < gbar(s_ + 1) - 3
        seq = ["s_addk_i32 s%d, %d" % (S_WS, WSTAGE),
               "s_cmp_eq_u32 s%d, %d" % (S_WS, WRING + 3 * WSTAGE),
               "s_cselect_b32 s%d, %d, s%d" % (S_WS, WRING, S_WS),
               "v_add_u32 v%d, s%d, v%d" % (V_WE, S_WS, V_WLE),
               "v_add_u32 v%d, s%d, v%d" % (V_WO, S_WS, V_WLO)]
        if s_ % 2 == 0:
            seq += ["s_sub_u32 s%d, s%d, 1" % (S_CNT, S_CNT), "s_cmp_eq_u32 s%d, 0" % S_CNT]
        place(seq, lastw[s_] + 1, gbar(s_ + 1) - 1)
        seq = ["v_add_u32 v%d, s%d, v%d" % (V_XA + (s_ % 2) * 3 + k, S_XT, V_XA + (s_ % 2) * 3 + k) for k in range(3)]
        if s_ % 2 == 1:
            seq.append("s_sub_u32 s%d, 0, s%d" % (S_XT, S_XT))
        place(seq, max(lastx[s_] + 1, 108 * s_), lastw[s_] - 1)

    class Q2:
        def __init__(self):
            self.q = []
        def issue(self, tag, t):
            self.q.append((tag, t))
        def need(self, tags, now, told):
            idx = [n for n, (tg, _) in enumerate(self.q) if tg in tags]
            if not idx:
                return None
            n = len(self.q) - 1 - idx[-1]
            young = sum(1 for _, t in self.q if now - t < told)
            n = min(n, young, 15)
            self.q = self.q[len(self.q) - n:] if n else []
            return n

    q = Q2()
    text = {}
    for p in range(gbar(1) + 1, 108 * (NS - 1)):
        out = []
        s_, idx = p // 108, p % 108
        tau, i, k = MF[idx]
        n = q.need({("W", s_, tau, k), ("X", s_, i, k)}, p, TOLD)
        if n is not None:
            out.append("    s_waitcnt lgkmcnt(%d)" % n)
        ac = vr(ACC(tau, i))
        out.append("    v_mfma_f32_16x16x32_bf16 %s, %s, %s, %s" % (ac, vr(wslot(s_, tau, k)), vr(XR(i, k)), ac))
        if p in bars:
            if q.q:
                out.append("    s_waitcnt lgkmcnt(0)")
                q.q = []
            out.append("    s_barrier")
            if (s_ % 2) == 0:
                out.append("    s_cbranch_scc1 L_epi")
        for it_ in gap.get(p, []):
            out.append("    " + it_[1])
            if it_[0] == "l":
                q.issue(it_[2], p)
        text[p] = out
    b1 = [l for p in range(216, 432) for l in text[p]]
    b2 = [l for p in range(432, 648) for l in text[p]]
    assert b1 == b2
    for p in range(gbar(2) + 1, 216):
        for it_ in gap.get(p, []):
            assert it_[0] == "l" and it_[2][1] == 2, it_
            a(it_[1])
    a.label("L_loop")
    a.lines += b1
    a("s_branch L_loop")
    a.lines += csetup_lines
    a.lines.append("@PADEPI")

    a.label("L_epi")
    a.c("rest of stage 16, then stage 17 pair by pair with the epilogue of finished tiles interleaved")
    E = 242
    SL, SN = 2, 3
    PORD = [(0, 2), (0, 3), (0, 1), (0, 0)] + [(p, i) for p in (1, 2, 3) for i in ((0, 1, 2, 3) if p % 2 else (3, 2, 1, 0))] + [(4, 1), (4, 0)]
    un = []
    for n, (p, i) in enumerate(PORD):
        t2 = [(2 * p, i), (2 * p + 1, i)]
        un += t2 if n % 2 == 0 else t2[::-1]
    M17 = expand(un)
    LEAD = opt.lead
    skel = [("m", SL) + MF[idx] for idx in range(108 - BP, 108)]
    skel += [("m", SN) + m for m in M17[:6 * LEAD]]
    for n, (p, i) in enumerate(PORD):
        ms = [("m", SN) + m for m in M17[6 * (n + LEAD):6 * (n + LEAD + 1)]]
        A_, B_ = ACC(2 * p, i), ACC(2 * p + 1, i)
        v = []
        for acc, tau in ((A_, 2 * p), (B_, 2 * p + 1)):
            for h in range(2):
                v.append(("fma", acc + 2 * h, tau, h))
        ex = [("t", "v_exp_f32_e64 v%d, -v%d" % (E + 4 * k + r, acc + r)) for k, acc in enumerate((A_, B_)) for r in range(4)]
        den = [("v", "v_pk_fma_f32 v[%d:%d], v[%d:%d], s[%d:%d], s[%d:%d]" % (
            E + 2 * k, E + 2 * k + 1, E + 2 * k, E + 2 * k + 1, S_L2E, S_L2E + 1, S_L2E, S_L2E + 1)) for k in range(4)]
        rc = [("t", "v_rcp_f32 v%d, v%d" % (E + k, E + k)) for k in range(8)]
        mul = [("v", "v_pk_mul_f32 v[%d:%d], v[%d:%d], v[%d:%d]" % (
            E + 4 * k + 2 * h, E + 4 * k + 2 * h + 1, acc + 2 * h, acc + 2 * h + 1, E + 4 * k + 2 * h, E + 4 * k + 2 * h + 1))
            for k, acc in enumerate((A_, B_)) for h in range(2)]
        so, imm = (S_OUT + i, 64 * p) if p < 4 else (S_OUT + 4 + i, 0)
        fin = [("v", "v_cvt_pk_bf16_f32 v%d, v%d, v%d" % (A_ + 0, E + 0, E + 1)),
               ("v", "v_cvt_pk_bf16_f32 v%d, v%d, v%d" % (A_ + 2, E + 4, E + 5)),
               ("v", "v_cvt_pk_bf16_f32 v%d, v%d, v%d" % (A_ + 1, E + 2, E + 3)),
               ("v", "v_cvt_pk_bf16_f32 v%d, v%d, v%d" % (A_ + 3, E + 6, E + 7)),
               ("v", "s_nop 0"),
               ("v", "v_permlane16_swap_b32 v%d, v%d" % (A_ + 0, A_ + 2)),
               ("v", "v_permlane16_swap_b32 v%d, v%d" % (A_ + 1, A_ + 3))]
        if opt.stamp and n in (0, 2, 6, 10, 14, 17):
            k_ = (0, 2, 6, 10, 14, 17).index(n)
            fin.append(("stamp", "s_memtime s[%d:%d]" % (86 + 2 * k_, 87 + 2 * k_)))
        fin.append(("v", "buffer_store_dwordx4 %s, v%d, s[28:31], s%d offen offset:%d %s" % (vr(A_), V_OUT, so, imm, opt.stflag if n < opt.nwt else "")))

        def weave(tr, mm):
            r = []
            pos = [0, 3, 6][:len(mm)] if opt.weave == 0 else [0, 2, 4][:len(mm)]
            for j, t_ in enumerate(tr):
                if j in pos:
                    r.append(mm[pos.index(j)])
                r.append(t_)
            return r
        skel += v + weave(ex, ms[:3]) + den + weave(rc, ms[3:]) + mul + [("free", B_)] + fin
        if n + LEAD == 17:
            skel.append(("mend",))
    res_first, res_last = {}, {}
    for j, it_ in enumerate(skel):
        tags = []
        if it_[0] == "m":
            tags = [("W", it_[1], it_[2], it_[4]), ("X", it_[1], it_[3], it_[4])]
        elif it_[0] == "fma":
            tags = [("S", it_[2]), ("T", it_[2])]
        for tg in tags:
            res_first.setdefault(tg, j); res_last[tg] = j
    reg = {}
    busy = set()
    for tg in res_first:
        if tg[0] == "W" and tg[1] == SL:
            reg[tg] = wslot(SL, tg[2], tg[3]); busy.add(reg[tg])
    pool = [r for r in range(WR, WR + 48, 4) if r not in busy] + [252]
    todo = sorted([tg for tg in res_first if not (tg[0] in "WX" and tg[1] == SL)], key=lambda tg: res_first[tg])
    subq = []
    q = Q2()
    now = 0
    count = 0
    acc_w = {}

    def em(ins, cyc, ws=1):
        nonlocal now, count
        a(ins); now += cyc; count += ws

    def try_load(j):
        if not subq:
            for tg in todo[:8]:
                if tg[0] == "X":
                    if res_last.get(("X", SL, tg[2], tg[3]), -1) <= j:
                        subq.append((x_ins(SN, tg[2], tg[3]), tg)); todo.remove(tg); break
                else:
                    if pool:
                        r = pool.pop(0); reg[tg] = r
                        if tg[0] == "W":
                            subq.extend((w_ins(r, tg[2], tg[3], h), tg) for h in range(2))
                        else:
                            subq.append(("ds_read_b128 %s, v%d offset:%d" % (vr(r), V_PAR, tg[1] * 128 + (64 if tg[0] == "T" else 0)), tg))
                        todo.remove(tg)
                    elif any(t2[0] == "X" for t2 in todo[:8]):
                        continue
                    break
        if subq:
            ins, tg = subq.pop(0)
            em(ins, 4)
            q.issue(tg, now)
            return True
        return False

    def need(tags, j):
        for tg in tags:
            while tg in todo or any(t2 == tg for _, t2 in subq):
                print("; tail: forced load of", tg, file=sys.stderr)
                assert try_load(j - 1), tg
        n = q.need(set(tags), now, 150)
        if n is not None:
            em("s_waitcnt lgkmcnt(%d)" % n, 4)

    for j, it_ in enumerate(skel):
        kind = it_[0]
        if kind == "m":
            _, s_, tau, i, k = it_
            need([("W", s_, tau, k), ("X", s_, i, k)], j)
            ac = ACC(tau, i)
            nxt = skel[j + 1][0]
            em("v_mfma_f32_16x16x32_bf16 %s, %s, %s, %s" % (vr(ac), vr(reg[("W", s_, tau, k)]), vr(XR(i, k)), vr(ac)), 12 if nxt == "m" else 8)
            acc_w[ac] = count
            if res_last[("W", s_, tau, k)] == j:
                pool.append(reg[("W", s_, tau, k)])
            if not try_load(j) and nxt == "m":
                now += 4
        elif kind == "fma":
            _, r, tau, h = it_
            need([("S", tau), ("T", tau)], j)
            d = count - acc_w.get(r & ~3, -100)
            if d < 9:
                em("s_nop %d" % (8 - d), 4 * (9 - d), 9 - d)
            S_, T_ = reg[("S", tau)] + 2 * h, reg[("T", tau)] + 2 * h
            em("v_pk_fma_f32 v[%d:%d], v[%d:%d], v[%d:%d], v[%d:%d]" % (r, r + 1, r, r + 1, S_, S_ + 1, T_, T_ + 1), 4)
            if res_last[("S", tau)] == j:
                pool.extend([reg[("S", tau)], reg[("T", tau)]])
        elif kind == "t":
            assert not any(tg[0] == "X" for tg in todo) and not any(tg[0] == "X" for _, tg in subq)
            em(it_[1], 8)
            if skel[j + 1][0] == "t":
                try_load(j)
        elif kind == "free":
            pool.append(it_[1])
        elif kind == "mend":
            if opt.stamp:
                a("s_waitcnt lgkmcnt(0)")
                q.q = []
            stampc(6)
            stamp(3)
        elif kind == "stamp":
            a("s_waitcnt lgkmcnt(0)")
            a(it_[1])
            a("s_waitcnt lgkmcnt(0)")
            q.q = []
        else:
            em(it_[1], 4)
    assert not todo and not subq
    if opt.stamp:
        a("s_waitcnt vmcnt(0)")
        stamp(4)
        a("s_waitcnt lgkmcnt(0)")
        a("s_mov_b32 s32, s18")
        a("s_and_b32 s33, s19, 0xffff")
        a("s_mov_b32 s34, 0x100000")
        a("s_mov_b32 s35, 0x20000")
        a("s_lshl_b32 s36, s2, 3")
        a("s_add_u32 s36, s36, s%d" % S_WAVE)
        a("s_lshl_b32 s36, s36, 6")
        a("s_getreg_b32 s84, hwreg(HW_REG_HW_ID)")
        a("s_getreg_b32 s85, hwreg(HW_REG_XCC_ID)")
        for k in range(16):
            a("v_mov_b32 v%d, s%d" % (k, 70 + k))
        a("v_mov_b32 v16, 0")
        a("s_mov_b64 exec, 1")
        for k in range(4):
            a("buffer_store_dwordx4 v[%d:%d], v16, s[32:35], s36 offen offset:%d" % (4 * k, 4 * k + 3, 16 * k))
        a("s_memtime s[98:99]")
        a("s_waitcnt lgkmcnt(0)")
        a("v_mov_b32 v20, s82")
        for k in range(7):
            a("v_mov_b32 v%d, s%d" % (21 + k, 86 + 2 * k))
        a("s_add_u32 s36, s36, 0x80000")
        for k in range(2):
            a("buffer_store_dwordx4 v[%d:%d], v16, s[32:35], s36 offen offset:%d" % (20 + 4 * k, 23 + 4 * k, 16 * k))
    a("s_endpgm")

    if opt.touch:
        insert_nodes(a, dict([(k, "R_N_%d" % k) for k in range(1, 5)] + [(k, "L_lwait") for k in range(5, 12)]))
    else:
        resolve_pads(a)
    out = HEADER
    out += "; @launch grid=(256,1,1) block=(512,1,1) lds=%d\n" % LDS_BYTES
    out += '.amdgcn_target "amdgcn-amd-amdhsa--gfx950"\n.text\n.globl %s\n.p2align 12\n.p2align 8\n.type %s,@function\n' % (KNAME, KNAME)
    out += a.text()
    out += """.section .rodata,"a"
.p2align 6
.amdhsa_kernel %s
  .amdhsa_next_free_vgpr 256
  .amdhsa_next_free_sgpr 102
  .amdhsa_accum_offset 256
  .amdhsa_group_segment_fixed_size 0
  .amdhsa_kernarg_size 72
  .amdhsa_user_sgpr_count 2
  .amdhsa_user_sgpr_kernarg_segment_ptr 1
  .amdhsa_system_sgpr_workgroup_id_x 1
  .amdhsa_float_denorm_mode_32 3
.end_amdhsa_kernel
""" % KNAME
    return out


if __name__ == "__main__":
    ap = argparse.ArgumentParser()
    ap.add_argument("-o", default="standalone__batchnorm__sampling.s")
    ap.add_argument("--prio", type=int, default=3)
    ap.add_argument("--stamp", action="store_true")
    ap.add_argument("--stflag", default="sc1")
    ap.add_argument("--bp", type=int, default=20)
    ap.add_argument("--marg", type=int, default=9)
    ap.add_argument("--quiet", type=int, default=7)
    ap.add_argument("--told", type=int, default=10)
    ap.add_argument("--lead", type=int, default=2)
    ap.add_argument("--weave", type=int, default=0)
    ap.add_argument("--xg", type=lambda x: [int(c) for c in x], default=[0, 2, 3, 4])
    ap.add_argument("--touch", type=int, default=1)
    ap.add_argument("--lnodes", default="0,16,33,50")
    ap.add_argument("--enodes", default="1,5,9,13,16")
    ap.add_argument("--eorder", type=int, default=0)
    ap.add_argument("--nwt", type=int, default=18)
    ap.add_argument("--early", type=int, default=0)
    ap.add_argument("--estart", type=int, default=60)
    ap.add_argument("--align", type=int, default=0)
    opt = ap.parse_args()
    open(opt.o, "w").write(gen(opt))
```

```python
import sys
import argparse

KNAME = "standalone__batchnorm__sampling_kernel"

HEADER = """; Kernarg layout for this problem (72 bytes, ptrs only, base s[0:1]):
"""

XBYTES = 1024 * 16 * 576 * 2
WBYTES = 3 * 576 * 576 * 2
ROWB = 1152
TAPB = 576 * 1152

XBLK = 17 * 128
XBUFB = 16 * XBLK
WRING = 2 * XBUFB + 128
WKS = 10240
WSTAGE = 3 * WKS
PARAM = WRING + 3 * WSTAGE
LDS_BYTES = PARAM + 1280

LOG2E = 0x3FB8AA3B


class Asm:
    def __init__(self):
        self.lines = []

    def __call__(self, s):
        self.lines.append("    " + s)

    def label(self, l):
        self.lines.append(l + ":")

    def c(self, s):
        self.lines.append("    ; " + s)

    def text(self):
        return "\n".join(self.lines) + "\n"


class LdsQ:
    def __init__(self):
        self.q = []

    def issue(self, tag):
        self.q.append(tag)

    def wait(self, tag):
        idx = [i for i, t in enumerate(self.q) if t == tag]
        if not idx:
            return None
        n = min(len(self.q) - 1 - idx[-1], 15)
        self.q = self.q[len(self.q) - n:] if n else []
        return n

    def drain(self):
        had = bool(self.q)
        self.q = []
        return had


def vr(b, n=4):
    return "v[%d:%d]" % (b, b + n - 1)


def sizes_of(lines):
    import subprocess, re, os
    src = '.amdgcn_target "amdgcn-amd-amdhsa--gfx950"\n.text\n' + "\n".join(lines) + "\n" + "".join("N_%d:\n" % k for k in range(1, 14))
    open("_sz.s", "w").write(src)
    r = subprocess.run(["clang", "-x", "assembler", "-target", "amdgcn-amd-amdhsa", "-mcpu=gfx950", "-c", "_sz.s", "-o", "_sz.o"], capture_output=True, text=True)
    assert r.returncode == 0, r.stderr
    d = subprocess.run(["llvm-objdump", "-d", "--mcpu=gfx950", "_sz.o"], capture_output=True, text=True).stdout
    sz = [len(m.group(1).split()) * 4 for m in re.finditer(r"// [0-9A-F]{12}: ((?:[0-9A-F]{8} ?)+)", d)]
    out = []
    k = 0
    for l in lines:
        t = l.strip()
        if not t or t.startswith(";") or t.endswith(":"):
            out.append(0)
        else:
            assert not t.startswith("."), t
            out.append(sz[k])
            k += 1
    assert k == len(sz)
    return out


def resolve_pads(a):
    lines = [l for l in a.lines]
    sz = sizes_of([l if not l.startswith("@") else "" for l in lines])
    out = []
    addr = 0
    epi = None
    for l, n in zip(lines, sz):
        if l.startswith("@PAD "):
            tgt = int(l.split()[1])
            if addr > tgt:
                tgt = (addr + 63) // 64 * 64
            a.base1 = tgt
        elif l == "@NODE1":
            continue
        elif l == "@PADEPI":
            addr_n = addr + 16
            tgt = (addr_n + 4095) // 4096 * 4096 - 16
            epi = tgt + 16
        else:
            out.append(l); addr += n
            continue
        while addr < tgt:
            out.append("    s_endpgm"); addr += 4
    a.lines = out
    return epi


def insert_nodes(a, rets):
    epi = resolve_pads(a)
    target = {k: a.base1 + 1024 * (k - 1) for k in range(1, 5)}
    sz = sizes_of(a.lines)
    L = a.lines
    new = []
    addr = 0
    k = 1
    i = 0
    while i < len(L) and addr < epi:
        if k <= 4 and addr >= target[k] and sz[i]:
            cand = []
            ad, j = addr, i
            while j < len(L) and ad <= target[k] + 60:
                if sz[j]:
                    cand.append(j)
                ad += sz[j]
                j += 1
            pick = cand[0]
            for j in (cand if k > 1 else []):
                prev = [x for x in range(j - 1, -1, -1) if sz[x]][:1]
                if "v_mfma" in L[j] and "v_mfma" in L[prev[0]]:
                    pick = j
                    break
            while i < pick:
                new.append(L[i]); addr += sz[i]; i += 1
            if k == 1:
                assert new[-1] == "L_cgo:"
                new[-1:] = ["N_1:", "    s_branch %s" % rets[k], "L_cgo:"]
            else:
                new.append("N_%d:" % k)
                new.append("    s_cbranch_execz %s" % rets[k])
            addr += 4
            k += 1
            continue
        new.append(L[i]); addr += sz[i]; i += 1
    assert k == 5 and addr == epi, (k, addr, epi)
    seg = epi
    new.append("N_5:")
    new.append("    s_branch %s" % rets[5])
    addr += 4
    k = 6
    while i < len(L):
        ad, j = addr, i
        best_s = best_m = None
        while j < len(L) and ad + sz[j] + 4 <= seg + 1024:
            ad += sz[j]
            if "buffer_store" in L[j]:
                best_s = (j + 1, ad)
            if "v_mfma" in L[j]:
                best_m = (j + 1, ad)
            j += 1
        if j == len(L):
            new += L[i:]
            addr = ad
            break
        cut = best_s if best_s and (not best_m or best_s[1] > best_m[1] - 200) else best_m
        if k not in rets:
            print("; WARNING: code past the last touch node", file=sys.stderr)
            new += L[i:]
            break
        new += L[i:cut[0]]
        i, addr = cut
        new.append("    s_branch L_seg%d" % k)
        addr += 4
        seg = seg + 1344 if (seg % 4096) < 2688 else (seg // 4096 + 1) * 4096
        while addr < seg:
            new.append("    s_endpgm"); addr += 4
        new.append("N_%d:" % k)
        new.append("    s_branch %s" % rets[k])
        new.append("L_seg%d:" % k)
        addr += 4
        k += 1
    for kk in range(k, max(rets) + 1):
        new = [l.replace(" N_%d" % kk, " " + rets[kk]) if l.endswith(" N_%d" % kk) else l for l in new]
    a.lines = new
    a.end_addr = addr
    a.last_seg = seg


opt_tight = False


def gen(opt):
    a = Asm()

    def ACC(tau, i):
        return (tau * 4 + i) * 4 if tau < 8 else 128 + ((tau - 8) * 2 + i) * 4

    XR0 = 144
    WR = 192
    V_WE, V_WO, V_WLE, V_WLO = 240, 241, 242, 243
    V_XA = 244
    V_PAR, V_OUT, V_LANE, V_XD = 250, 251, 252, 253
    V_T0, V_T1, V_T2, V_T3 = 148, 149, 150, 151
    V_WA, V_W4, V_ST = 10, 11, 40

    S_WAVE, S_ROW, S_COL, S_ODD = 48, 49, 50, 57
    S_J, S_XB, S_T2 = 51, 52, 53
    S_WS, S_CNT, S_SOFF = 54, 55, 56
    S_L2E = 58
    S_XT = 63
    S_OUT = 64
    S_WL, S_WG, S_WL0, S_WL1 = 36, 37, 38, 39
    S_EAL, S_EAG, S_EBL, S_EBG = 40, 41, 42, 43
    S_S = 44

    def stamp(idx):
        if opt.stamp:
            a("s_memrealtime s[%d:%d]" % (70 + 2 * idx, 71 + 2 * idx))

    def stampc(idx):
        if opt.stamp:
            a("s_memtime s[%d:%d]" % (70 + 2 * idx, 71 + 2 * idx))

    def lstamp():
        if opt.stamp:
            a("s_memtime s[90:91]")
            a("s_memrealtime s[92:93]")
            a("s_waitcnt lgkmcnt(0)")
            a("s_mov_b32 m0, s94")
            a("s_nop 0")
            a("v_writelane_b32 v%d, s90, m0" % V_ST)
            a("v_writelane_b32 v%d, s92, m0" % (V_ST + 1))
            a("s_add_u32 s94, s94, 1")

    def probe(name, t):
        if opt.probe == name:
            a("s_waitcnt lgkmcnt(0)")
            a("s_add_u32 s72, s70, %d" % (t * 100))
            a.label("L_sp")
            a("s_memrealtime s[74:75]")
            a("s_waitcnt lgkmcnt(0)")
            a("s_sub_u32 s73, s72, s74")
            a("s_cmp_gt_i32 s73, 0")
            a("s_cbranch_scc1 L_sp")

    a.label(KNAME)
    if opt.probe:
        a("s_memrealtime s[70:71]")
    stamp(0)
    a("s_load_dwordx8 s[4:11], s[0:1], 0")
    a("s_load_dwordx4 s[12:15], s[0:1], 32")
    a("s_load_dwordx2 s[16:17], s[0:1], 48")
    if opt.stamp:
        a("s_load_dwordx2 s[18:19], s[0:1], 64")
    a("v_lshrrev_b32 v1, 6, v0")
    a("v_and_b32 v%d, 63, v0" % V_LANE)
    a("s_cmp_ge_u32 s2, 256")
    a("s_cbranch_scc1 L_end")
    a("v_readfirstlane_b32 s%d, v1" % S_WAVE)
    a("s_and_b32 s%d, s2, 7" % S_ROW)
    a("s_lshr_b32 s%d, s2, 5" % S_T2)
    a("s_lshl3_add_u32 s%d, s%d, s%d" % (S_ROW, S_ROW, S_T2))
    a("s_bfe_u32 s%d, s2, 0x20003" % S_COL)
    a("s_and_b32 s%d, s%d, 1" % (S_ODD, S_COL))
    a("s_mulk_i32 s%d, 288" % S_COL)
    a("s_lshl_b32 s%d, s%d, 5" % (S_T2, S_ODD))
    a("s_sub_u32 s%d, s%d, s%d" % (S_COL, S_COL, S_T2))
    a("s_and_b32 s%d, s%d, 3" % (S_J, S_WAVE))
    a("s_lshl2_add_u32 s%d, s%d, s%d" % (S_SOFF, S_ROW, S_J))
    a("s_mul_i32 s%d, s%d, %d" % (S_SOFF, S_SOFF, 64 * ROWB))
    a("s_mul_i32 s%d, s%d, %d" % (S_XB, S_J, 4 * XBLK))
    a("s_mov_b32 s22, %d" % XBYTES)
    a("s_mov_b32 s23, 0x20000")
    a("v_lshrrev_b32 v%d, 3, v%d" % (V_T0, V_LANE))
    a("v_and_b32 v%d, 7, v%d" % (V_T1, V_LANE))
    a("v_and_b32 v%d, 6, v%d" % (V_T2, V_T0))
    a("v_xor_b32 v%d, v%d, v%d" % (V_T2, V_T1, V_T2))
    a("v_mul_u32_u24 v%d, %d, v%d" % (V_XD, ROWB, V_T0))
    a("v_lshl_add_u32 v%d, v%d, 4, v%d" % (V_XD, V_T2, V_XD))
    a("s_cmp_ge_u32 s%d, 4" % S_WAVE)
    a("s_cbranch_scc1 L_loader")

    def touch(nodes, ret, ex=True):
        if ex:
            a("s_mov_b64 exec, 0")
        for k, nd in enumerate(nodes[:-1]):
            a("s_cmp_eq_u32 s%d, %d" % (S_J, k))
            a("s_cbranch_scc1 %s" % nd)
        a("s_branch %s" % nodes[-1])
        if ret:
            a.label(ret)
            if ex:
                a("s_mov_b64 exec, -1")

    NODE_RET = {}

    def x4(sg):
        for n in range(4):
            a("buffer_load_dwordx4 v%d, s[20:23], s%d offen lds" % (V_XD, sg))
            if n < 3:
                a("s_addk_i32 m0, %d" % (1024 if n % 2 == 0 else XBLK - 1024))
                a("s_addk_i32 s%d, %d" % (sg, 8 * ROWB))

    def touch1(j, node, ex=True):
        if not opt.touch:
            return
        a("s_cmp_lg_u32 s%d, %d" % (S_J, j))
        a("s_cbranch_scc1 R2_%s" % node)
        if ex:
            a("s_mov_b64 exec, 0")
        a("s_branch %s" % node)
        a.label("R_%s" % node)
        if ex:
            a("s_mov_b64 exec, -1")
        a.label("R2_%s" % node)

    touch1(0, "N_4")
    a.c("compute wave: DMA own X rows, chunk 0 (logical row tiles 0,1 = physical 2*odd.., then the other two)")
    a("s_mul_i32 s60, s%d, %d" % (S_ODD, 32 * ROWB))
    a("s_add_u32 s%d, s%d, s60" % (S_T2, S_SOFF))
    a("s_xor_b32 s60, s60, %d" % (32 * ROWB))
    a("s_add_u32 s61, s%d, s60" % S_SOFF)
    a("s_add_u32 m0, s%d, 128" % S_XB)
    a("s_waitcnt lgkmcnt(0)")
    a("s_mov_b32 s20, s4")
    a("s_and_b32 s21, s5, 0xffff")
    x4(S_T2)
    a("s_addk_i32 m0, %d" % (XBLK - 1024))
    a("s_nop 0")
    x4(61)
    a("s_branch L_csetup")

    a.label("L_loader")
    a.c("loader j: sub-piece j of each 16-row unit of W (+ share of sub-piece 4), X rows of compute wave j")
    a("s_mov_b32 s26, %d" % WBYTES)
    a("s_mov_b32 s27, 0x20000")
    a("s_movk_i32 s60, 0x34")
    a("s_movk_i32 s61, %d" % ROWB)
    a("s_lshl_b32 s62, s%d, 2" % S_ODD)
    a("s_lshl_b32 s%d, s%d, 6" % (S_T2, S_J))
    for dst, first in ((V_WA, True), (V_W4, False)):
        if first:
            a("v_add_u32 v1, s%d, v%d" % (S_T2, V_LANE))
        else:
            a("v_add_u32 v1, 256, v%d" % V_LANE)
        a("v_mul_u32_u24 v3, 3277, v1")
        a("v_lshrrev_b32 v3, 16, v3")
        a("v_mul_u32_u24 v4, 20, v3")
        a("v_sub_u32 v4, v1, v4")
        a("v_lshrrev_b32 v5, 1, v3")
        a("v_and_b32 v2, 2, v5")
        a("v_xor_b32 v4, v2, v4")
        a("v_add_u32 v4, s62, v4")
        a("v_subrev_u32 v2, 20, v4")
        a("v_min_u32 v4, v4, v2")
        a("v_and_b32 v5, 6, v5")
        a("v_bfe_i32 v5, s60, v5, 2")
        a("v_lshl_add_u32 v3, v5, 2, v3")
        a("v_lshlrev_b32 v4, 4, v4")
        a("v_mad_u32_u24 v%d, v3, s61, v4" % dst)
    a("s_lshl_b32 s62, s%d, 10" % S_J)
    a("s_add_u32 s%d, s62, %d" % (S_WL0, WRING))
    a("s_add_u32 s%d, s%d, %d" % (S_WL1, S_WL0, 3 * WSTAGE))
    a("s_mov_b32 s%d, s%d" % (S_WL, S_WL0))
    a("s_mov_b32 s%d, s%d" % (S_WG, S_COL))
    a("s_lshl_b32 s%d, s%d, 12" % (S_EAL, S_J))
    a("s_addk_i32 s%d, 4096" % S_EAL)
    a("s_and_b32 s%d, s%d, 1" % (S_T2, S_J))
    a("s_mul_i32 s%d, s%d, %d" % (S_EBG, S_T2, 16 * ROWB))
    a("s_lshr_b32 s%d, s%d, 1" % (S_EAG, S_J))
    a("s_mul_i32 s%d, s%d, %d" % (S_EAG, S_EAG, TAPB))
    a("s_add_u32 s%d, s%d, s%d" % (S_EAG, S_EAG, S_EBG))
    a("s_add_u32 s%d, s%d, %d" % (S_EBG, S_EBG, 2 * TAPB))
    a("s_mulk_i32 s%d, 5120" % S_T2)
    a("s_addk_i32 s%d, %d" % (S_T2, 4 * 5120 + 4096))
    a("s_sub_u32 s%d, s%d, s62" % (S_EBL, S_T2))
    a("s_mov_b32 s%d, -2" % S_S)
    a("s_waitcnt lgkmcnt(0)")
    a("s_mov_b32 s24, s6")
    a("s_and_b32 s25, s7, 0xffff")
    a("s_mov_b32 s20, s4")
    a("s_and_b32 s21, s5, 0xffff")
    if opt.stamp:
        a("v_mov_b32 v%d, 0" % V_ST)
        a("v_mov_b32 v%d, s70" % (V_ST + 1))
        a("s_mov_b32 s94, 3")
    a.label("L_lw")
    for u in range(6):
        if u == 0:
            a("s_mov_b32 m0, s%d" % S_WL)
            a("s_mov_b32 s%d, s%d" % (S_T2, S_WG))
        else:
            a("s_addk_i32 m0, 5120")
            if u & 1:
                a("s_addk_i32 s%d, %d" % (S_T2, 16 * ROWB))
            else:
                a("s_add_u32 s%d, s%d, %d" % (S_T2, S_T2, TAPB - 16 * ROWB))
        a("buffer_load_dwordx4 v%d, s[24:27], s%d offen lds" % (V_WA, S_T2))
    for el, eg in ((S_EAL, S_EAG), (S_EBL, S_EBG)):
        a("s_add_u32 m0, s%d, s%d" % (S_WL, el))
        a("s_add_u32 s%d, s%d, s%d" % (S_T2, S_WG, eg))
        a("buffer_load_dwordx4 v%d, s[24:27], s%d offen lds" % (V_W4, S_T2))
    a("s_addk_i32 s%d, %d" % (S_WL, WSTAGE))
    a("s_cmp_eq_u32 s%d, s%d" % (S_WL, S_WL1))
    a("s_cselect_b32 s%d, s%d, s%d" % (S_WL, S_WL0, S_WL))
    a("s_add_u32 s%d, s%d, %d" % (S_WG, S_WG, 32 * ROWB))
    a("s_add_i32 s%d, s%d, 1" % (S_S, S_S))
    a("s_cmp_lt_i32 s%d, 0" % S_S)
    a("s_cbranch_scc1 L_lw")
    a("s_cmp_eq_u32 s%d, 0" % S_S)
    a("s_cbranch_scc1 L_lwait")
    a("s_bitcmp0_b32 s%d, 0" % S_S)
    a("s_cbranch_scc1 L_ltouch1")
    a.label("L_lwait")
    a("s_waitcnt vmcnt(8)")
    lstamp()
    a("s_barrier")
    lstamp()
    a("s_cmp_eq_u32 s%d, 16" % S_S)
    a("s_cbranch_scc1 L_ltail")
    a("s_and_b32 s60, s%d, 1" % S_S)
    a("s_lshr_b32 s61, s%d, 1" % S_S)
    a("s_add_u32 s61, s61, 1")
    a("s_mul_i32 s62, s60, %d" % (2 * XBLK))
    a("s_add_u32 s62, s62, s%d" % S_XB)
    a("s_addk_i32 s62, 128")
    a("s_bitcmp1_b32 s61, 0")
    a("s_cselect_b32 s63, %d, 0" % XBUFB)
    a("s_add_u32 m0, s62, s63")
    a("s_xor_b32 s60, s60, s%d" % S_ODD)
    a("s_mul_i32 s60, s60, %d" % (32 * ROWB))
    a("s_lshl_b32 s61, s61, 7")
    a("s_add_u32 s60, s60, s61")
    a("s_add_u32 s60, s60, s%d" % S_SOFF)
    x4(60)
    a("s_branch L_lw")

    a.lines.append("@PAD 1344")
    a.label("L_ltouch1")
    if opt.touch:
        a.c("one instruction-cache touch per stage (each node branches straight back to L_lwait)")
        for k in range(1, 8):
            a("s_cmp_eq_u32 s%d, %d" % (S_S, 2 + 2 * k))
            a("s_cbranch_scc1 N_%d" % (4 + k))
    a("s_cmp_lg_u32 s%d, 2" % S_S)
    a("s_cbranch_scc1 L_lwait")
    a.c("BN parameter loads: logical idx = 64j + lane (<160); physical = (idx + 32*odd) mod 160")
    a("s_lshl_b32 s%d, s%d, 6" % (S_T2, S_J))
    a("v_add_u32 v60, s%d, v%d" % (S_T2, V_LANE))
    a("s_lshl_b32 s%d, s%d, 5" % (S_T2, S_ODD))
    a("v_add_u32 v61, s%d, v60" % S_T2)
    a("v_subrev_u32 v62, 160, v61")
    a("v_min_u32 v61, v61, v62")
    a("v_lshlrev_b32 v61, 1, v61")
    PS = [28, 32, 64, 96]
    for k in range(4):
        a("s_mov_b32 s%d, s%d" % (PS[k], 8 + 2 * k))
        a("s_and_b32 s%d, s%d, 0xffff" % (PS[k] + 1, 9 + 2 * k))
        a("s_movk_i32 s%d, 1152" % (PS[k] + 2))
        a("s_mov_b32 s%d, 0x20000" % (PS[k] + 3))
        a("buffer_load_ushort v%d, v61, s[%d:%d], s%d offen" % (64 + k, PS[k], PS[k] + 3, S_COL))
    a("s_branch L_lwait")

    a.label("L_ltail")
    a.c("BN parameters: v64=mean v65=var v66=g v67=b (bf16 bits); roundings follow the bf16 reference")
    for k in range(4):
        a("v_lshlrev_b32 v%d, 16, v%d" % (64 + k, 64 + k))
    a("v_add_f32 v65, 0x3727c5ac, v65")
    a("v_cvt_pk_bf16_f32 v65, v65, v65")
    a("v_lshlrev_b32 v65, 16, v65")
    a("v_sqrt_f32 v65, v65")
    a("v_lshrrev_b32 v61, 4, v60")
    a("v_cvt_pk_bf16_f32 v65, v65, v65")
    a("v_lshlrev_b32 v65, 16, v65")
    a("v_rcp_f32 v65, v65")
    a("v_lshlrev_b32 v61, 7, v61")
    a("v_cvt_pk_bf16_f32 v65, v65, v65")
    a("v_lshlrev_b32 v65, 16, v65")
    a("v_mul_f32 v65, v66, v65")
    a("v_cvt_pk_bf16_f32 v65, v65, v65")
    a("v_lshlrev_b32 v65, 16, v65")
    a("v_fma_f32 v67, -v64, v65, v67")
    a("v_mul_f32 v65, 0x%x, v65" % LOG2E)
    a("v_mul_f32 v67, 0x%x, v67" % LOG2E)
    a("v_and_b32 v62, 15, v60")
    a("v_lshl_add_u32 v61, v62, 2, v61")
    a("v_add_u32 v61, %d, v61" % PARAM)
    a("v_cmp_gt_u32 vcc, 160, v60")
    a("s_and_saveexec_b64 s[46:47], vcc")
    a("ds_write_b32 v61, v65")
    a("ds_write_b32 v61, v67 offset:64")
    a("s_mov_b64 exec, s[46:47]")
    a("s_waitcnt vmcnt(0) lgkmcnt(0)")
    lstamp()
    a("s_barrier")
    lstamp()
    if opt.stamp:
        a("s_mov_b32 s32, s18")
        a("s_and_b32 s33, s19, 0xffff")
        a("s_mov_b32 s34, 0x1000000")
        a("s_mov_b32 s35, 0x20000")
        a("s_lshl_b32 s36, s2, 3")
        a("s_add_u32 s36, s36, s%d" % S_WAVE)
        a("s_lshl_b32 s36, s36, 9")
        a("s_add_u32 s36, s36, 0x100000")
        a("v_lshlrev_b32 v42, 3, v%d" % V_LANE)
        a("buffer_store_dwordx2 v[%d:%d], v42, s[32:35], s36 offen" % (V_ST, V_ST + 1))
    a.label("L_end")
    a("s_endpgm")

    a.lines.append("@PAD 4096")
    main_lines = a.lines
    a.lines = []
    a.label("L_csetup")
    touch1(1, "N_3")
    a.c("zero rows: r = 8w + (l>>3), and row 32")
    a("s_lshl_b32 s%d, s%d, 3" % (S_T2, S_J))
    a("v_add_u32 v1, s%d, v%d" % (S_T2, V_T0))
    a("v_mul_u32_u24 v1, %d, v1" % XBLK)
    a("v_lshl_add_u32 v1, v%d, 4, v1" % V_T1)
    a("v_mov_b64 v[4:5], 0")
    a("v_mov_b64 v[6:7], 0")
    a("ds_write_b128 v1, v[4:7]")
    a("v_lshlrev_b32 v2, 4, v%d" % V_T1)
    a("v_add_u32 v2, %d, v2" % (32 * XBLK))
    a("ds_write_b128 v2, v[4:7]")
    a("s_mov_b32 s28, s16")
    a("s_and_b32 s29, s17, 0xffff")
    a("s_mov_b32 s30, s22")
    a("s_mov_b32 s31, 0x20000")
    a("s_mov_b32 s%d, 0x%x" % (S_L2E, LOG2E))
    a("s_mov_b32 s%d, s%d" % (S_L2E + 1, S_L2E))
    a("s_mov_b32 s%d, %d" % (S_XT, XBUFB))
    a("v_lshrrev_b32 v%d, 4, v%d" % (V_T3, V_LANE))
    a("v_and_b32 v%d, 15, v%d" % (V_T2, V_LANE))
    for tap in range(3):
        va = V_XA + tap
        a("v_add_u32 v%d, %d, v%d" % (V_T0, tap + 15, V_T2))
        a("v_and_b32 v%d, 6, v%d" % (V_T0, V_T0))
        a("v_xor_b32 v%d, v%d, v%d" % (V_T0, V_T0, V_T3))
        a("v_lshlrev_b32 v%d, 4, v%d" % (V_T0, V_T0))
        a("v_lshl_add_u32 v%d, v%d, 7, v%d" % (V_T0, V_T2, V_T0))
        if tap:
            a("s_addk_i32 s%d, 128" % S_XB)
        a("v_add_u32 v%d, s%d, v%d" % (va, S_XB, V_T0))
        a("v_xor_b32 v%d, 64, v%d" % (va + 3, va))
    touch1(2, "N_2")
    a("v_mul_u32_u24 v%d, %d, v%d" % (V_OUT, ROWB, V_T2))
    a("v_lshrrev_b32 v%d, 1, v%d" % (V_T0, V_T3))
    a("v_lshl_add_u32 v%d, v%d, 4, v%d" % (V_OUT, V_T0, V_OUT))
    a("v_and_b32 v%d, 1, v%d" % (V_T1, V_T3))
    a("v_lshl_add_u32 v%d, v%d, 5, v%d" % (V_OUT, V_T1, V_OUT))
    a("v_lshlrev_b32 v%d, 4, v%d" % (V_PAR, V_T3))
    a("v_add_u32 v%d, %d, v%d" % (V_PAR, PARAM, V_PAR))
    a("v_lshlrev_b32 v%d, 4, v%d" % (V_T0, V_T0))
    a("v_lshl_add_u32 v%d, v%d, 2, v%d" % (V_T0, V_T1, V_T0))
    a("v_bfe_u32 v%d, v%d, 2, 2" % (V_T2, V_LANE))
    a("v_add_u32 v%d, v%d, v%d" % (V_T0, V_T0, V_T2))
    a("v_mul_u32_u24 v%d, 320, v%d" % (V_T0, V_T0))
    a("v_and_b32 v%d, 3, v%d" % (V_T2, V_LANE))
    a("v_lshl_add_u32 v%d, v%d, 3, v%d" % (V_T0, V_T2, V_T0))
    a("v_lshlrev_b32 v%d, 5, v%d" % (V_T1, V_T1))
    a("v_add_u32 v%d, v%d, v%d" % (V_WLE, V_T0, V_T1))
    a("v_sub_u32 v%d, v%d, v%d" % (V_WLO, V_T0, V_T1))
    a("s_mov_b32 s%d, %d" % (S_WS, WRING))
    a("v_add_u32 v%d, s%d, v%d" % (V_WE, S_WS, V_WLE))
    a("v_add_u32 v%d, s%d, v%d" % (V_WO, S_WS, V_WLO))
    a("s_add_u32 s%d, s%d, s%d" % (S_SOFF, S_SOFF, S_COL))
    a("s_mul_i32 s60, s%d, %d" % (S_ODD, 32 * ROWB))
    a("s_add_u32 s61, s%d, s60" % S_SOFF)
    a("s_xor_b32 s60, s60, %d" % (32 * ROWB))
    a("s_add_u32 s62, s%d, s60" % S_SOFF)
    a("s_lshl_b32 s60, s%d, 6" % S_ODD)
    a("s_add_u32 s%d, s61, s60" % S_OUT)
    a("s_add_u32 s%d, s%d, %d" % (S_OUT + 1, S_OUT, 16 * ROWB))
    a("s_add_u32 s%d, s62, s60" % (S_OUT + 2))
    a("s_add_u32 s%d, s%d, %d" % (S_OUT + 3, S_OUT + 2, 16 * ROWB))
    a("s_lshl_b32 s60, s%d, 8" % S_ODD)
    a("s_sub_u32 s%d, s61, s60" % (S_OUT + 4))
    a("s_addk_i32 s%d, 256" % (S_OUT + 4))
    a("s_add_u32 s%d, s%d, %d" % (S_OUT + 5, S_OUT + 4, 16 * ROWB))
    for r in range(0, 144, 2):
        if r == 24:
            touch1(3, "N_1", False)
        a("v_mov_b64 v[%d:%d], 0" % (r, r + 1))
    a("s_mov_b32 s%d, %d" % (S_CNT, 9))
    a("s_branch L_cgo")
    csetup_lines = a.lines
    a.lines = main_lines
    a.lines.append("@NODE1")
    a.label("L_cgo")
    a("s_waitcnt vmcnt(0) lgkmcnt(0)")
    stamp(1)
    probe("b0", 12)
    a("s_setprio %d" % opt.prio)
    a("s_barrier")
    stamp(2)
    stampc(5)
    if opt.stamp:
        a("s_waitcnt lgkmcnt(0)")

    UNITS = [(0, 2), (0, 3), (1, 3), (1, 2), (1, 1), (1, 0), (0, 0), (0, 1), (2, 1), (2, 0), (2, 2), (2, 3)]
    for tau in range(3, 8):
        UNITS += [(tau, i) for i in ((3, 2, 1, 0) if tau % 2 else (0, 1, 2, 3))]
    UNITS += [(8, 0), (8, 1), (9, 1), (9, 0)]

    def expand(units):
        r = []
        for u, (tau, i) in enumerate(units):
            r += [(tau, i, k) for k in ((0, 1, 2) if u % 2 == 0 else (2, 1, 0))]
        return r

    MF = expand(UNITS)
    assert len(MF) == 108
    BP, MARG, QUIET, TOLD = opt.bp, opt.marg, opt.quiet, opt.told
    XR = lambda i, k: XR0 + (i * 3 + k) * 4
    wslot = lambda s, tau, k: WR + ((s * 30 + tau * 3 + k) % 12) * 4
    gbar = lambda s: 108 * s - BP - 1

    def w_ins(reg, tau, k, h):
        return "ds_read_b64_tr_b16 v[%d:%d], v%d offset:%d" % (reg + 2 * h, reg + 2 * h + 1, V_WE if tau % 2 == 0 else V_WO, k * WKS + h * 2560 + tau * 32)

    def x_ins(s, i, k):
        return "ds_read_b128 %s, v%d offset:%d" % (vr(XR(i, k)), V_XA + (s % 2) * 3 + k, i * XBLK)

    wfirst, wlast, xfirst, xlast = {}, {}, {}, {}
    for idx, (tau, i, k) in enumerate(MF):
        wfirst.setdefault((tau, k), idx); wlast[(tau, k)] = idx
        xfirst.setdefault((i, k), idx); xlast[(i, k)] = idx
    NS = 8
    ops = []
    for s_ in range(1, NS):
        for tau in range(10):
            for k in range(3):
                n = s_ * 30 + tau * 3 + k - 12
                ps, pt, pk_ = n // 30, (n % 30) // 3, n % 3
                e = max(gbar(s_) + 1, 108 * ps + wlast[(pt, pk_)])
                d = min(108 * s_ + wfirst[(tau, k)] - MARG, gbar(s_ + 1) - QUIET)
                for h in range(2):
                    ops.append([e, d, w_ins(wslot(s_, tau, k), tau, k, h), ("W", s_, tau, k)])
        for i in range(4):
            for k in range(3):
                e = max(gbar(s_) + 1, 108 * (s_ - 1) + xlast[(i, k)])
                d = 108 * s_ + xfirst[(i, k)] - MARG
                ops.append([e, d, x_ins(s_, i, k), ("X", s_, i, k)])
    gap = {}
    bars = {gbar(s_) for s_ in range(1, NS + 1)}
    pend = sorted(ops, key=lambda o: (o[1], o[0]))
    late = 0
    lastw, lastx = {}, {}
    for p in range(gbar(1), 108 * NS):
        if p in bars:
            continue
        for o in pend:
            if o[0] <= p:
                gap.setdefault(p, []).append(("l", o[2], o[3]))
                late = max(late, p - o[1])
                (lastw if o[3][0] == "W" else lastx)[o[3][1]] = p
                pend.remove(o)
                break
    assert not pend
    if late > 0:
        print("; worst deadline miss: %d gaps" % late, file=sys.stderr)

    def place(seq, lo, hi):
        free = [p for p in range(lo, hi + 1) if p not in bars and not gap.get(p)]
        slots = [p for p in free for _ in range(2)]
        if len(slots) < len(seq):
            slots = sorted(slots + [p for p in range(lo, hi + 1) if p not in bars and gap.get(p)])
        assert len(slots) >= len(seq), (lo, hi)
        for ins, p in zip(seq, slots):
            gap.setdefault(p, []).append(("i", ins))

    for s_ in range(1, NS - 1):
        assert lastw[s_] < gbar(s_ + 1) - 3
        seq = ["s_addk_i32 s%d, %d" % (S_WS, WSTAGE),
               "s_cmp_eq_u32 s%d, %d" % (S_WS, WRING + 3 * WSTAGE),
               "s_cselect_b32 s%d, %d, s%d" % (S_WS, WRING, S_WS),
               "v_add_u32 v%d, s%d, v%d" % (V_WE, S_WS, V_WLE),
               "v_add_u32 v%d, s%d, v%d" % (V_WO, S_WS, V_WLO)]
        if s_ % 2 == 0:
            seq += ["s_sub_u32 s%d, s%d, 1" % (S_CNT, S_CNT), "s_cmp_eq_u32 s%d, 0" % S_CNT]
        place(seq, lastw[s_] + 1, gbar(s_ + 1) - 1)
        seq = ["v_add_u32 v%d, s%d, v%d" % (V_XA + (s_ % 2) * 3 + k, S_XT, V_XA + (s_ % 2) * 3 + k) for k in range(3)]
        if s_ % 2 == 1:
            seq.append("s_sub_u32 s%d, 0, s%d" % (S_XT, S_XT))
        place(seq, max(lastx[s_] + 1, 108 * s_), lastw[s_] - 1)

    class Q2:
        def __init__(self):
            self.q = []
        def issue(self, tag, t):
            self.q.append((tag, t))
        def need(self, tags, now, told):
            idx = [n for n, (tg, _) in enumerate(self.q) if tg in tags]
            if not idx:
                return None
            n = len(self.q) - 1 - idx[-1]
            young = sum(1 for _, t in self.q if now - t < told)
            n = min(n, young, 15)
            self.q = self.q[len(self.q) - n:] if n else []
            return n

    q = Q2()
    text = {}
    for p in range(gbar(1) + 1, 108 * (NS - 1)):
        out = []
        s_, idx = p // 108, p % 108
        tau, i, k = MF[idx]
        n = q.need({("W", s_, tau, k), ("X", s_, i, k)}, p, TOLD)
        if n is not None:
            out.append("    s_waitcnt lgkmcnt(%d)" % n)
        ac = vr(ACC(tau, i))
        out.append("    v_mfma_f32_16x16x32_bf16 %s, %s, %s, %s" % (ac, vr(wslot(s_, tau, k)), vr(XR(i, k)), ac))
        if p in bars:
            if q.q:
                out.append("    s_waitcnt lgkmcnt(0)")
                q.q = []
            out.append("    s_barrier")
            if (s_ % 2) == 0:
                out.append("    s_cbranch_scc1 L_epi")
        for it_ in gap.get(p, []):
            out.append("    " + it_[1])
            if it_[0] == "l":
                q.issue(it_[2], p)
        text[p] = out
    b1 = [l for p in range(216, 432) for l in text[p]]
    b2 = [l for p in range(432, 648) for l in text[p]]
    assert b1 == b2
    for p in range(gbar(2) + 1, 216):
        for it_ in gap.get(p, []):
            assert it_[0] == "l" and it_[2][1] == 2, it_
            a(it_[1])
    a.label("L_loop")
    a.lines += b1
    a("s_branch L_loop")
    a.lines += csetup_lines
    a.lines.append("@PADEPI")

    a.label("L_epi")
    probe("epi", 30)
    a.c("rest of stage 16, then stage 17 pair by pair with the epilogue of finished tiles interleaved")
    E = 242
    SL, SN = 2, 3
    PORD = [(0, 2), (0, 3), (0, 1), (0, 0)] + [(p, i) for p in (1, 2, 3) for i in ((0, 1, 2, 3) if p % 2 else (3, 2, 1, 0))] + [(4, 1), (4, 0)]
    un = []
    for n, (p, i) in enumerate(PORD):
        t2 = [(2 * p, i), (2 * p + 1, i)]
        un += t2 if n % 2 == 0 else t2[::-1]
    M17 = expand(un)
    LEAD = opt.lead
    skel = [("m", SL) + MF[idx] for idx in range(108 - BP, 108)]
    skel += [("m", SN) + m for m in M17[:6 * LEAD]]
    for n, (p, i) in enumerate(PORD):
        ms = [("m", SN) + m for m in M17[6 * (n + LEAD):6 * (n + LEAD + 1)]]
        A_, B_ = ACC(2 * p, i), ACC(2 * p + 1, i)
        v = []
        for acc, tau in ((A_, 2 * p), (B_, 2 * p + 1)):
            for h in range(2):
                v.append(("fma", acc + 2 * h, tau, h))
        ex = [("t", "v_exp_f32_e64 v%d, -v%d" % (E + 4 * k + r, acc + r)) for k, acc in enumerate((A_, B_)) for r in range(4)]
        den = [("v", "v_pk_fma_f32 v[%d:%d], v[%d:%d], s[%d:%d], s[%d:%d]" % (
            E + 2 * k, E + 2 * k + 1, E + 2 * k, E + 2 * k + 1, S_L2E, S_L2E + 1, S_L2E, S_L2E + 1)) for k in range(4)]
        rc = [("t", "v_rcp_f32 v%d, v%d" % (E + k, E + k)) for k in range(8)]
        mul = [("v", "v_pk_mul_f32 v[%d:%d], v[%d:%d], v[%d:%d]" % (
            E + 4 * k + 2 * h, E + 4 * k + 2 * h + 1, acc + 2 * h, acc + 2 * h + 1, E + 4 * k + 2 * h, E + 4 * k + 2 * h + 1))
            for k, acc in enumerate((A_, B_)) for h in range(2)]
        so, imm = (S_OUT + i, 64 * p) if p < 4 else (S_OUT + 4 + i, 0)
        fin = [("v", "v_cvt_pk_bf16_f32 v%d, v%d, v%d" % (A_ + 0, E + 0, E + 1)),
               ("v", "v_cvt_pk_bf16_f32 v%d, v%d, v%d" % (A_ + 2, E + 4, E + 5)),
               ("v", "v_cvt_pk_bf16_f32 v%d, v%d, v%d" % (A_ + 1, E + 2, E + 3)),
               ("v", "v_cvt_pk_bf16_f32 v%d, v%d, v%d" % (A_ + 3, E + 6, E + 7)),
               ("v", "s_nop 0"),
               ("v", "v_permlane16_swap_b32 v%d, v%d" % (A_ + 0, A_ + 2)),
               ("v", "v_permlane16_swap_b32 v%d, v%d" % (A_ + 1, A_ + 3))]
        if opt.stamp and n in (0, 2, 6, 10, 14, 17):
            k_ = (0, 2, 6, 10, 14, 17).index(n)
            fin.append(("stamp", "s_memtime s[%d:%d]" % (86 + 2 * k_, 87 + 2 * k_)))
        fin.append(("v", "buffer_store_dwordx4 %s, v%d, s[28:31], s%d offen offset:%d %s" % (vr(A_), V_OUT, so, imm, opt.stflag if n < opt.nwt else "")))

        def weave(tr, mm):
            r = []
            pos = [0, 3, 6][:len(mm)] if opt.weave == 0 else [0, 2, 4][:len(mm)]
            for j, t_ in enumerate(tr):
                if j in pos:
                    r.append(mm[pos.index(j)])
                r.append(t_)
            return r
        skel += v + weave(ex, ms[:3]) + den + weave(rc, ms[3:]) + mul + [("free", B_)] + fin
        if n + LEAD == 17:
            skel.append(("mend",))
    res_first, res_last = {}, {}
    for j, it_ in enumerate(skel):
        tags = []
        if it_[0] == "m":
            tags = [("W", it_[1], it_[2], it_[4]), ("X", it_[1], it_[3], it_[4])]
        elif it_[0] == "fma":
            tags = [("S", it_[2]), ("T", it_[2])]
        for tg in tags:
            res_first.setdefault(tg, j); res_last[tg] = j
    reg = {}
    busy = set()
    for tg in res_first:
        if tg[0] == "W" and tg[1] == SL:
            reg[tg] = wslot(SL, tg[2], tg[3]); busy.add(reg[tg])
    pool = [r for r in range(WR, WR + 48, 4) if r not in busy] + [252]
    todo = sorted([tg for tg in res_first if not (tg[0] in "WX" and tg[1] == SL)], key=lambda tg: res_first[tg])
    subq = []
    q = Q2()
    now = 0
    count = 0
    acc_w = {}

    def em(ins, cyc, ws=1):
        nonlocal now, count
        a(ins); now += cyc; count += ws

    def try_load(j):
        if not subq:
            for tg in todo[:8]:
                if tg[0] == "X":
                    if res_last.get(("X", SL, tg[2], tg[3]), -1) <= j:
                        subq.append((x_ins(SN, tg[2], tg[3]), tg)); todo.remove(tg); break
                else:
                    if pool:
                        r = pool.pop(0); reg[tg] = r
                        if tg[0] == "W":
                            subq.extend((w_ins(r, tg[2], tg[3], h), tg) for h in range(2))
                        else:
                            subq.append(("ds_read_b128 %s, v%d offset:%d" % (vr(r), V_PAR, tg[1] * 128 + (64 if tg[0] == "T" else 0)), tg))
                        todo.remove(tg)
                    elif any(t2[0] == "X" for t2 in todo[:8]):
                        continue
                    break
        if subq:
            ins, tg = subq.pop(0)
            em(ins, 4)
            q.issue(tg, now)
            return True
        return False

    def need(tags, j):
        for tg in tags:
            while tg in todo or any(t2 == tg for _, t2 in subq):
                print("; tail: forced load of", tg, file=sys.stderr)
                assert try_load(j - 1), tg
        n = q.need(set(tags), now, 150)
        if n is not None:
            em("s_waitcnt lgkmcnt(%d)" % n, 4)

    for j, it_ in enumerate(skel):
        kind = it_[0]
        if kind == "m":
            _, s_, tau, i, k = it_
            need([("W", s_, tau, k), ("X", s_, i, k)], j)
            ac = ACC(tau, i)
            nxt = skel[j + 1][0]
            em("v_mfma_f32_16x16x32_bf16 %s, %s, %s, %s" % (vr(ac), vr(reg[("W", s_, tau, k)]), vr(XR(i, k)), vr(ac)), 12 if nxt == "m" else 8)
            acc_w[ac] = count
            if res_last[("W", s_, tau, k)] == j:
                pool.append(reg[("W", s_, tau, k)])
            if not try_load(j) and nxt == "m":
                now += 4
        elif kind == "fma":
            _, r, tau, h = it_
            need([("S", tau), ("T", tau)], j)
            d = count - acc_w.get(r & ~3, -100)
            if d < 9:
                em("s_nop %d" % (8 - d), 4 * (9 - d), 9 - d)
            S_, T_ = reg[("S", tau)] + 2 * h, reg[("T", tau)] + 2 * h
            em("v_pk_fma_f32 v[%d:%d], v[%d:%d], v[%d:%d], v[%d:%d]" % (r, r + 1, r, r + 1, S_, S_ + 1, T_, T_ + 1), 4)
            if res_last[("S", tau)] == j:
                pool.extend([reg[("S", tau)], reg[("T", tau)]])
        elif kind == "t":
            assert not any(tg[0] == "X" for tg in todo) and not any(tg[0] == "X" for _, tg in subq)
            em(it_[1], 8)
            if skel[j + 1][0] == "t":
                try_load(j)
        elif kind == "free":
            pool.append(it_[1])
        elif kind == "mend":
            if opt.stamp:
                a("s_waitcnt lgkmcnt(0)")
                q.q = []
            stampc(6)
            stamp(3)
        elif kind == "stamp":
            a("s_waitcnt lgkmcnt(0)")
            a(it_[1])
            a("s_waitcnt lgkmcnt(0)")
            q.q = []
        else:
            em(it_[1], 4)
    assert not todo and not subq
    probe("end", 40)
    if opt.stamp:
        a("s_waitcnt vmcnt(0)")
        stamp(4)
        a("s_waitcnt lgkmcnt(0)")
        a("s_mov_b32 s32, s18")
        a("s_and_b32 s33, s19, 0xffff")
        a("s_mov_b32 s34, 0x100000")
        a("s_mov_b32 s35, 0x20000")
        a("s_lshl_b32 s36, s2, 3")
        a("s_add_u32 s36, s36, s%d" % S_WAVE)
        a("s_lshl_b32 s36, s36, 6")
        a("s_getreg_b32 s84, hwreg(HW_REG_HW_ID)")
        a("s_getreg_b32 s85, hwreg(HW_REG_XCC_ID)")
        for k in range(16):
            a("v_mov_b32 v%d, s%d" % (k, 70 + k))
        a("v_mov_b32 v16, 0")
        a("s_mov_b64 exec, 1")
        for k in range(4):
            a("buffer_store_dwordx4 v[%d:%d], v16, s[32:35], s36 offen offset:%d" % (4 * k, 4 * k + 3, 16 * k))
        a("s_memtime s[98:99]")
        a("s_waitcnt lgkmcnt(0)")
        a("v_mov_b32 v20, s82")
        for k in range(7):
            a("v_mov_b32 v%d, s%d" % (21 + k, 86 + 2 * k))
        a("s_add_u32 s36, s36, 0x80000")
        for k in range(2):
            a("buffer_store_dwordx4 v[%d:%d], v16, s[32:35], s36 offen offset:%d" % (20 + 4 * k, 23 + 4 * k, 16 * k))
    a("s_endpgm")

    if opt.touch:
        insert_nodes(a, dict([(k, "R_N_%d" % k) for k in range(1, 5)] + [(k, "L_lwait") for k in range(5, 12)]))
    else:
        resolve_pads(a)
    out = HEADER
    out += "; @launch grid=(256,1,1) block=(512,1,1) lds=%d\n" % LDS_BYTES
    out += '.amdgcn_target "amdgcn-amd-amdhsa--gfx950"\n.text\n.globl %s\n.p2align 12\n.p2align 8\n.type %s,@function\n' % (KNAME, KNAME)
    out += a.text()
    out += """.section .rodata,"a"
.p2align 6
.amdhsa_kernel %s
  .amdhsa_next_free_vgpr 256
  .amdhsa_next_free_sgpr 102
  .amdhsa_accum_offset 256
  .amdhsa_group_segment_fixed_size 0
  .amdhsa_kernarg_size 72
  .amdhsa_user_sgpr_count 2
  .amdhsa_user_sgpr_kernarg_segment_ptr 1
  .amdhsa_system_sgpr_workgroup_id_x 1
  .amdhsa_float_denorm_mode_32 3
.end_amdhsa_kernel
""" % KNAME
    return out


if __name__ == "__main__":
    ap = argparse.ArgumentParser()
    ap.add_argument("-o", default="standalone__batchnorm__sampling.s")
    ap.add_argument("--prio", type=int, default=3)
    ap.add_argument("--stamp", action="store_true")
    ap.add_argument("--stflag", default="sc1")
    ap.add_argument("--bp", type=int, default=20)
    ap.add_argument("--marg", type=int, default=9)
    ap.add_argument("--quiet", type=int, default=7)
    ap.add_argument("--told", type=int, default=10)
    ap.add_argument("--lead", type=int, default=2)
    ap.add_argument("--weave", type=int, default=1)
    ap.add_argument("--probe", default="")
    ap.add_argument("--xg", type=lambda x: [int(c) for c in x], default=[0, 2, 3, 4])
    ap.add_argument("--touch", type=int, default=1)
    ap.add_argument("--lnodes", default="0,16,33,50")
    ap.add_argument("--enodes", default="1,5,9,13,16")
    ap.add_argument("--eorder", type=int, default=0)
    ap.add_argument("--nwt", type=int, default=18)
    ap.add_argument("--early", type=int, default=0)
    ap.add_argument("--estart", type=int, default=60)
    ap.add_argument("--align", type=int, default=0)
    opt = ap.parse_args()
    open(opt.o, "w").write(gen(opt))
```

```python
import sys
import argparse

KNAME = "standalone__batchnorm__sampling_kernel"

HEADER = """; Kernarg layout for this problem (72 bytes, ptrs only, base s[0:1]):
"""

XBYTES = 1024 * 16 * 576 * 2
WBYTES = 3 * 576 * 576 * 2
ROWB = 1152
TAPB = 576 * 1152

XBLK = 17 * 128
XBUFB = 16 * XBLK
WRING = 2 * XBUFB + 128
WKS = 10240
WSTAGE = 3 * WKS
PARAM = WRING + 3 * WSTAGE
LDS_BYTES = PARAM + 1280

LOG2E = 0x3FB8AA3B


class Asm:
    def __init__(self):
        self.lines = []

    def __call__(self, s):
        self.lines.append("    " + s)

    def label(self, l):
        self.lines.append(l + ":")

    def c(self, s):
        self.lines.append("    ; " + s)

    def text(self):
        return "\n".join(self.lines) + "\n"


class LdsQ:
    def __init__(self):
        self.q = []

    def issue(self, tag):
        self.q.append(tag)

    def wait(self, tag):
        idx = [i for i, t in enumerate(self.q) if t == tag]
        if not idx:
            return None
        n = min(len(self.q) - 1 - idx[-1], 15)
        self.q = self.q[len(self.q) - n:] if n else []
        return n

    def drain(self):
        had = bool(self.q)
        self.q = []
        return had


def vr(b, n=4):
    return "v[%d:%d]" % (b, b + n - 1)


def sizes_of(lines):
    import subprocess, re, os
    src = '.amdgcn_target "amdgcn-amd-amdhsa--gfx950"\n.text\n' + "\n".join(lines) + "\n" + "".join("N_%d:\n" % k for k in range(1, 14))
    open("_sz.s", "w").write(src)
    r = subprocess.run(["clang", "-x", "assembler", "-target", "amdgcn-amd-amdhsa", "-mcpu=gfx950", "-c", "_sz.s", "-o", "_sz.o"], capture_output=True, text=True)
    assert r.returncode == 0, r.stderr
    d = subprocess.run(["llvm-objdump", "-d", "--mcpu=gfx950", "_sz.o"], capture_output=True, text=True).stdout
    sz = [len(m.group(1).split()) * 4 for m in re.finditer(r"// [0-9A-F]{12}: ((?:[0-9A-F]{8} ?)+)", d)]
    out = []
    k = 0
    for l in lines:
        t = l.strip()
        if not t or t.startswith(";") or t.endswith(":"):
            out.append(0)
        else:
            assert not t.startswith("."), t
            out.append(sz[k])
            k += 1
    assert k == len(sz)
    return out


def resolve_pads(a):
    lines = [l for l in a.lines]
    sz = sizes_of([l if not l.startswith("@") else "" for l in lines])
    out = []
    addr = 0
    epi = None
    for l, n in zip(lines, sz):
        if l.startswith("@PAD "):
            tgt = int(l.split()[1])
            if addr > tgt:
                tgt = (addr + 63) // 64 * 64
            a.base1 = tgt
        elif l == "@NODE1":
            continue
        elif l == "@PADEPI":
            addr_n = addr + 16
            tgt = (addr_n + 4095) // 4096 * 4096 - 16
            epi = tgt + 16
        else:
            out.append(l); addr += n
            continue
        while addr < tgt:
            out.append("    s_endpgm"); addr += 4
    a.lines = out
    return epi


def insert_nodes(a, rets):
    epi = resolve_pads(a)
    target = {k: a.base1 + 1024 * (k - 1) for k in range(1, 5)}
    sz = sizes_of(a.lines)
    L = a.lines
    new = []
    addr = 0
    k = 1
    i = 0
    while i < len(L) and addr < epi:
        if k <= 4 and addr >= target[k] and sz[i]:
            cand = []
            ad, j = addr, i
            while j < len(L) and ad <= target[k] + 60:
                if sz[j]:
                    cand.append(j)
                ad += sz[j]
                j += 1
            pick = cand[0]
            for j in (cand if k > 1 else []):
                prev = [x for x in range(j - 1, -1, -1) if sz[x]][:1]
                if "v_mfma" in L[j] and "v_mfma" in L[prev[0]]:
                    pick = j
                    break
            while i < pick:
                new.append(L[i]); addr += sz[i]; i += 1
            if k == 1:
                assert new[-1] == "L_cgo:"
                new[-1:] = ["N_1:", "    s_branch %s" % rets[k], "L_cgo:"]
            else:
                new.append("N_%d:" % k)
                new.append("    s_cbranch_execz %s" % rets[k])
            addr += 4
            k += 1
            continue
        new.append(L[i]); addr += sz[i]; i += 1
    assert k == 5 and addr == epi, (k, addr, epi)
    if CONTIG:
        new.append("N_5:")
        new.append("    s_branch %s" % rets[5])
        addr += 4
        k = 6
        while i < len(L):
            tg = epi + 1024 * (k - 5)
            if k in rets and addr >= tg and sz[i]:
                cand = []
                ad, j = addr, i
                while j < len(L) and ad <= tg + 60:
                    if sz[j]:
                        cand.append(j)
                    ad += sz[j]
                    j += 1
                pick, repl = cand[0], False
                for j in cand:
                    prev = [x for x in range(j - 1, -1, -1) if sz[x]][0]
                    if L[j].strip() == "s_nop 0" and "cvt_pk" in L[prev]:
                        pick, repl = j, True
                        break
                else:
                    for j in cand:
                        prev = [x for x in range(j - 1, -1, -1) if sz[x]][0]
                        if "v_exp" in L[prev] or "v_rcp" in L[prev]:
                            pick = j
                            break
                while i < pick:
                    new.append(L[i]); addr += sz[i]; i += 1
                new.append("N_%d:" % k)
                new.append("    s_cbranch_execz %s" % rets[k])
                addr += 4
                if repl:
                    i += 1
                k += 1
                continue
            new.append(L[i]); addr += sz[i]; i += 1
        if addr > epi + 1024 * (k - 5):
            print("; WARNING: code past the last touch window", file=sys.stderr)
        for kk in range(k, max(rets) + 1):
            new = [l.replace(" N_%d" % kk, " " + rets[kk]) if l.endswith(" N_%d" % kk) else l for l in new]
        a.lines = new
        return
    seg = epi
    new.append("N_5:")
    new.append("    s_branch %s" % rets[5])
    addr += 4
    k = 6
    while i < len(L):
        ad, j = addr, i
        best_s = best_m = None
        while j < len(L) and ad + sz[j] + 4 <= seg + 1024:
            ad += sz[j]
            if "buffer_store" in L[j]:
                best_s = (j + 1, ad)
            if "v_mfma" in L[j]:
                best_m = (j + 1, ad)
            j += 1
        if j == len(L):
            new += L[i:]
            addr = ad
            break
        cut = best_s if best_s and (not best_m or best_s[1] > best_m[1] - 200) else best_m
        if k not in rets:
            print("; WARNING: code past the last touch node", file=sys.stderr)
            new += L[i:]
            break
        new += L[i:cut[0]]
        i, addr = cut
        new.append("    s_branch L_seg%d" % k)
        addr += 4
        seg = seg + 1344 if (seg % 4096) < 2688 else (seg // 4096 + 1) * 4096
        while addr < seg:
            new.append("    s_endpgm"); addr += 4
        new.append("N_%d:" % k)
        new.append("    s_branch %s" % rets[k])
        new.append("L_seg%d:" % k)
        addr += 4
        k += 1
    for kk in range(k, max(rets) + 1):
        new = [l.replace(" N_%d" % kk, " " + rets[kk]) if l.endswith(" N_%d" % kk) else l for l in new]
    a.lines = new
    a.end_addr = addr
    a.last_seg = seg


opt_tight = False
CONTIG = False


def gen(opt):
    global CONTIG
    CONTIG = bool(opt.contig)
    a = Asm()

    def ACC(tau, i):
        return (tau * 4 + i) * 4 if tau < 8 else 128 + ((tau - 8) * 2 + i) * 4

    XR0 = 144
    WR = 192
    V_WE, V_WO, V_WLE, V_WLO = 240, 241, 242, 243
    V_XA = 244
    V_PAR, V_OUT, V_LANE, V_XD = 250, 251, 252, 253
    V_T0, V_T1, V_T2, V_T3 = 148, 149, 150, 151
    V_WA, V_W4, V_ST = 10, 11, 40

    S_WAVE, S_ROW, S_COL, S_ODD = 48, 49, 50, 57
    S_J, S_XB, S_T2 = 51, 52, 53
    S_WS, S_CNT, S_SOFF = 54, 55, 56
    S_L2E = 58
    S_XT = 63
    S_OUT = 64
    S_WL, S_WG, S_WL0, S_WL1 = 36, 37, 38, 39
    S_EAL, S_EAG, S_EBL, S_EBG = 40, 41, 42, 43
    S_S = 44

    def stamp(idx):
        if opt.stamp:
            a("s_memrealtime s[%d:%d]" % (70 + 2 * idx, 71 + 2 * idx))

    def stampc(idx):
        if opt.stamp:
            a("s_memtime s[%d:%d]" % (70 + 2 * idx, 71 + 2 * idx))

    def lstamp():
        if opt.stamp:
            a("s_memtime s[90:91]")
            a("s_memrealtime s[92:93]")
            a("s_waitcnt lgkmcnt(0)")
            a("s_mov_b32 m0, s94")
            a("s_nop 0")
            a("v_writelane_b32 v%d, s90, m0" % V_ST)
            a("v_writelane_b32 v%d, s92, m0" % (V_ST + 1))
            a("s_add_u32 s94, s94, 1")

    def probe(name, t):
        if opt.probe == name:
            a("s_waitcnt lgkmcnt(0)")
            a("s_add_u32 s72, s70, %d" % (t * 100))
            a.label("L_sp")
            a("s_memrealtime s[74:75]")
            a("s_waitcnt lgkmcnt(0)")
            a("s_sub_u32 s73, s72, s74")
            a("s_cmp_gt_i32 s73, 0")
            a("s_cbranch_scc1 L_sp")

    a.label(KNAME)
    if opt.probe:
        a("s_memrealtime s[70:71]")
    stamp(0)
    a("s_load_dwordx8 s[4:11], s[0:1], 0")
    a("s_load_dwordx4 s[12:15], s[0:1], 32")
    a("s_load_dwordx2 s[16:17], s[0:1], 48")
    if opt.stamp:
        a("s_load_dwordx2 s[18:19], s[0:1], 64")
    a("v_lshrrev_b32 v1, 6, v0")
    a("v_and_b32 v%d, 63, v0" % V_LANE)
    a("s_cmp_ge_u32 s2, 256")
    a("s_cbranch_scc1 L_end")
    a("v_readfirstlane_b32 s%d, v1" % S_WAVE)
    a("s_and_b32 s%d, s2, 7" % S_ROW)
    a("s_lshr_b32 s%d, s2, 5" % S_T2)
    a("s_lshl3_add_u32 s%d, s%d, s%d" % (S_ROW, S_ROW, S_T2))
    a("s_bfe_u32 s%d, s2, 0x20003" % S_COL)
    a("s_and_b32 s%d, s%d, 1" % (S_ODD, S_COL))
    a("s_mulk_i32 s%d, 288" % S_COL)
    a("s_lshl_b32 s%d, s%d, 5" % (S_T2, S_ODD))
    a("s_sub_u32 s%d, s%d, s%d" % (S_COL, S_COL, S_T2))
    a("s_and_b32 s%d, s%d, 3" % (S_J, S_WAVE))
    a("s_lshl2_add_u32 s%d, s%d, s%d" % (S_SOFF, S_ROW, S_J))
    a("s_mul_i32 s%d, s%d, %d" % (S_SOFF, S_SOFF, 64 * ROWB))
    a("s_mul_i32 s%d, s%d, %d" % (S_XB, S_J, 4 * XBLK))
    a("s_mov_b32 s22, %d" % XBYTES)
    a("s_mov_b32 s23, 0x20000")
    a("v_lshrrev_b32 v%d, 3, v%d" % (V_T0, V_LANE))
    a("v_and_b32 v%d, 7, v%d" % (V_T1, V_LANE))
    a("v_and_b32 v%d, 6, v%d" % (V_T2, V_T0))
    a("v_xor_b32 v%d, v%d, v%d" % (V_T2, V_T1, V_T2))
    a("v_mul_u32_u24 v%d, %d, v%d" % (V_XD, ROWB, V_T0))
    a("v_lshl_add_u32 v%d, v%d, 4, v%d" % (V_XD, V_T2, V_XD))
    a(("s_cmp_lt_u32 s%d, 4" if opt.swap else "s_cmp_ge_u32 s%d, 4") % S_WAVE)
    a("s_cbranch_scc1 L_loader")

    def touch(nodes, ret, ex=True):
        if ex:
            a("s_mov_b64 exec, 0")
        for k, nd in enumerate(nodes[:-1]):
            a("s_cmp_eq_u32 s%d, %d" % (S_J, k))
            a("s_cbranch_scc1 %s" % nd)
        a("s_branch %s" % nodes[-1])
        if ret:
            a.label(ret)
            if ex:
                a("s_mov_b64 exec, -1")

    NODE_RET = {}

    def x4(sg):
        for n in range(4):
            a("buffer_load_dwordx4 v%d, s[20:23], s%d offen lds" % (V_XD, sg))
            if n < 3:
                a("s_addk_i32 m0, %d" % (1024 if n % 2 == 0 else XBLK - 1024))
                a("s_addk_i32 s%d, %d" % (sg, 8 * ROWB))

    def touch1(j, node, ex=True):
        if not opt.touch:
            return
        a("s_cmp_lg_u32 s%d, %d" % (S_J, j))
        a("s_cbranch_scc1 R2_%s" % node)
        if ex:
            a("s_mov_b64 exec, 0")
        a("s_branch %s" % node)
        a.label("R_%s" % node)
        if ex:
            a("s_mov_b64 exec, -1")
        a.label("R2_%s" % node)

    a("s_setprio %d" % opt.prio)
    if opt.t0 == 0:
        touch1(0, "N_4")
    elif opt.touch:
        touch(["N_4", "N_3", "N_2", "N_1"], "L_t0ret")
    a.c("compute wave: DMA own X rows, chunk 0 (logical row tiles 0,1 = physical 2*odd.., then the other two)")
    a("s_mul_i32 s60, s%d, %d" % (S_ODD, 32 * ROWB))
    a("s_add_u32 s%d, s%d, s60" % (S_T2, S_SOFF))
    a("s_xor_b32 s60, s60, %d" % (32 * ROWB))
    a("s_add_u32 m0, s%d, 128" % S_XB)
    a("s_waitcnt lgkmcnt(0)")
    a("s_mov_b32 s20, s4")
    a("s_and_b32 s21, s5, 0xffff")
    x4(S_T2)
    a("s_addk_i32 m0, %d" % (XBLK - 1024))
    a("s_add_u32 s61, s%d, s60" % S_SOFF)
    x4(61)
    a("s_branch L_csetup")

    a.label("L_loader")
    a.c("loader j: sub-piece j of each 16-row unit of W (+ share of sub-piece 4), X rows of compute wave j")
    a("s_mov_b32 s26, %d" % WBYTES)
    a("s_mov_b32 s27, 0x20000")
    a("s_movk_i32 s60, 0x34")
    a("s_movk_i32 s61, %d" % ROWB)
    a("s_lshl_b32 s62, s%d, 2" % S_ODD)
    a("s_lshl_b32 s%d, s%d, 6" % (S_T2, S_J))
    for dst, first in ((V_WA, True), (V_W4, False)):
        if first:
            a("v_add_u32 v1, s%d, v%d" % (S_T2, V_LANE))
        else:
            a("v_add_u32 v1, 256, v%d" % V_LANE)
        a("v_mul_u32_u24 v3, 3277, v1")
        a("v_lshrrev_b32 v3, 16, v3")
        a("v_mul_u32_u24 v4, 20, v3")
        a("v_sub_u32 v4, v1, v4")
        a("v_lshrrev_b32 v5, 1, v3")
        a("v_and_b32 v2, 2, v5")
        a("v_xor_b32 v4, v2, v4")
        a("v_add_u32 v4, s62, v4")
        a("v_subrev_u32 v2, 20, v4")
        a("v_min_u32 v4, v4, v2")
        a("v_and_b32 v5, 6, v5")
        a("v_bfe_i32 v5, s60, v5, 2")
        a("v_lshl_add_u32 v3, v5, 2, v3")
        a("v_lshlrev_b32 v4, 4, v4")
        a("v_mad_u32_u24 v%d, v3, s61, v4" % dst)
    a("s_lshl_b32 s62, s%d, 10" % S_J)
    a("s_add_u32 s%d, s62, %d" % (S_WL0, WRING))
    a("s_add_u32 s%d, s%d, %d" % (S_WL1, S_WL0, 3 * WSTAGE))
    a("s_mov_b32 s%d, s%d" % (S_WL, S_WL0))
    a("s_mov_b32 s%d, s%d" % (S_WG, S_COL))
    a("s_lshl_b32 s%d, s%d, 12" % (S_EAL, S_J))
    a("s_addk_i32 s%d, 4096" % S_EAL)
    a("s_and_b32 s%d, s%d, 1" % (S_T2, S_J))
    a("s_mul_i32 s%d, s%d, %d" % (S_EBG, S_T2, 16 * ROWB))
    a("s_lshr_b32 s%d, s%d, 1" % (S_EAG, S_J))
    a("s_mul_i32 s%d, s%d, %d" % (S_EAG, S_EAG, TAPB))
    a("s_add_u32 s%d, s%d, s%d" % (S_EAG, S_EAG, S_EBG))
    a("s_add_u32 s%d, s%d, %d" % (S_EBG, S_EBG, 2 * TAPB))
    a("s_mulk_i32 s%d, 5120" % S_T2)
    a("s_addk_i32 s%d, %d" % (S_T2, 4 * 5120 + 4096))
    a("s_sub_u32 s%d, s%d, s62" % (S_EBL, S_T2))
    a("s_mov_b32 s%d, -2" % S_S)
    a("s_cmp_lt_u32 s%d, 2" % S_J)
    a("s_cselect_b64 s[46:47], -1, 1")
    a("s_waitcnt lgkmcnt(0)")
    a("s_mov_b32 s24, s6")
    a("s_and_b32 s25, s7, 0xffff")
    a("s_mov_b32 s20, s4")
    a("s_and_b32 s21, s5, 0xffff")
    if opt.stamp:
        a("v_mov_b32 v%d, 0" % V_ST)
        a("v_mov_b32 v%d, s70" % (V_ST + 1))
        a("s_mov_b32 s94, 3")
    a.label("L_lw")
    for u in range(6):
        if u == 0:
            a("s_mov_b32 m0, s%d" % S_WL)
            a("s_mov_b32 s%d, s%d" % (S_T2, S_WG))
        else:
            a("s_addk_i32 m0, 5120")
            if u & 1:
                a("s_addk_i32 s%d, %d" % (S_T2, 16 * ROWB))
            else:
                a("s_add_u32 s%d, s%d, %d" % (S_T2, S_T2, TAPB - 16 * ROWB))
        a("buffer_load_dwordx4 v%d, s[24:27], s%d offen lds" % (V_WA, S_T2))
    for el, eg in ((S_EAL, S_EAG), (S_EBL, S_EBG)):
        if el == S_EBL:
            a("s_mov_b64 exec, s[46:47]")
        a("s_add_u32 m0, s%d, s%d" % (S_WL, el))
        a("s_add_u32 s%d, s%d, s%d" % (S_T2, S_WG, eg))
        a("buffer_load_dwordx4 v%d, s[24:27], s%d offen lds" % (V_W4, S_T2))
    a("s_mov_b64 exec, -1")
    a("s_addk_i32 s%d, %d" % (S_WL, WSTAGE))
    a("s_cmp_eq_u32 s%d, s%d" % (S_WL, S_WL1))
    a("s_cselect_b32 s%d, s%d, s%d" % (S_WL, S_WL0, S_WL))
    a("s_add_u32 s%d, s%d, %d" % (S_WG, S_WG, 32 * ROWB))
    a("s_add_i32 s%d, s%d, 1" % (S_S, S_S))
    a("s_cmp_lt_i32 s%d, 0" % S_S)
    a("s_cbranch_scc1 L_lw")
    a("s_bitcmp1_b32 0x15554, s%d" % S_S)
    a("s_cbranch_scc1 L_ltouch1")
    a.label("L_lwait")
    a("s_waitcnt vmcnt(8)")
    lstamp()
    a("s_barrier")
    lstamp()
    a("s_cmp_eq_u32 s%d, 16" % S_S)
    a("s_cbranch_scc1 L_ltail")
    a("s_and_b32 s60, s%d, 1" % S_S)
    a("s_lshr_b32 s61, s%d, 1" % S_S)
    a("s_add_u32 s61, s61, 1")
    a("s_mul_i32 s62, s60, %d" % (2 * XBLK))
    a("s_add_u32 s62, s62, s%d" % S_XB)
    a("s_addk_i32 s62, 128")
    a("s_bitcmp1_b32 s61, 0")
    a("s_cselect_b32 s63, %d, 0" % XBUFB)
    a("s_add_u32 m0, s62, s63")
    a("s_xor_b32 s60, s60, s%d" % S_ODD)
    a("s_mul_i32 s60, s60, %d" % (32 * ROWB))
    a("s_lshl_b32 s61, s61, 7")
    a("s_add_u32 s60, s60, s61")
    a("s_add_u32 s60, s60, s%d" % S_SOFF)
    x4(60)
    a("s_branch L_lw")

    a.lines.append("@PAD 1344")
    a.label("L_ltouch1")
    if opt.touch:
        a.c("one instruction-cache touch per stage (each node branches straight back to L_lwait)")
        if opt.contig:
            a("s_mov_b64 exec, 0")
        for k in range(1, 8):
            a("s_cmp_eq_u32 s%d, %d" % (S_S, 2 + 2 * k))
            a("s_cbranch_scc1 N_%d" % ((12 - k) if opt.contig else (4 + k)))
        if opt.contig:
            a.label("L_tret")
            a("s_mov_b64 exec, -1")
    a("s_cmp_lg_u32 s%d, 2" % S_S)
    a("s_cbranch_scc1 L_lwait")
    a.c("BN parameter loads: logical idx = 64j + lane (<160); physical = (idx + 32*odd) mod 160")
    a("s_lshl_b32 s%d, s%d, 6" % (S_T2, S_J))
    a("v_add_u32 v60, s%d, v%d" % (S_T2, V_LANE))
    a("s_lshl_b32 s%d, s%d, 5" % (S_T2, S_ODD))
    a("v_add_u32 v61, s%d, v60" % S_T2)
    a("v_subrev_u32 v62, 160, v61")
    a("v_min_u32 v61, v61, v62")
    a("v_lshlrev_b32 v61, 1, v61")
    PS = [28, 32, 64, 96]
    for k in range(4):
        a("s_mov_b32 s%d, s%d" % (PS[k], 8 + 2 * k))
        a("s_and_b32 s%d, s%d, 0xffff" % (PS[k] + 1, 9 + 2 * k))
        a("s_movk_i32 s%d, 1152" % (PS[k] + 2))
        a("s_mov_b32 s%d, 0x20000" % (PS[k] + 3))
        a("buffer_load_ushort v%d, v61, s[%d:%d], s%d offen" % (64 + k, PS[k], PS[k] + 3, S_COL))
    a("s_branch L_lwait")

    a.label("L_ltail")
    if opt.l2c:
        a.c("refresh the tail code in L2 (one dword per 128-B line)")
        a("s_getpc_b64 s[60:61]")
        a.label("L_pc3")
        a("s_lshl_b32 s62, s%d, 13" % S_J)
        a("v_lshl_add_u32 v12, v%d, 7, s62" % V_LANE)
        a("v_min_u32 v12, L_last-L_epi, v12")
        a("s_add_u32 s60, s60, L_epi-L_pc3")
        a("s_addc_u32 s61, s61, 0")
        a("v_mov_b32 v13, s61")
        a("v_add_co_u32 v12, vcc, s60, v12")
        a("s_nop 1")
        a("v_addc_co_u32 v13, vcc, 0, v13, vcc")
        a("global_load_dword v14, v[12:13], off")
    a.c("BN parameters: v64=mean v65=var v66=g v67=b (bf16 bits); roundings follow the bf16 reference")
    for k in range(4):
        a("v_lshlrev_b32 v%d, 16, v%d" % (64 + k, 64 + k))
    a("v_add_f32 v65, 0x3727c5ac, v65")
    a("v_cvt_pk_bf16_f32 v65, v65, v65")
    a("v_lshlrev_b32 v65, 16, v65")
    a("v_sqrt_f32 v65, v65")
    a("v_lshrrev_b32 v61, 4, v60")
    a("v_cvt_pk_bf16_f32 v65, v65, v65")
    a("v_lshlrev_b32 v65, 16, v65")
    a("v_rcp_f32 v65, v65")
    a("v_lshlrev_b32 v61, 7, v61")
    a("v_cvt_pk_bf16_f32 v65, v65, v65")
    a("v_lshlrev_b32 v65, 16, v65")
    a("v_mul_f32 v65, v66, v65")
    a("v_cvt_pk_bf16_f32 v65, v65, v65")
    a("v_lshlrev_b32 v65, 16, v65")
    a("v_fma_f32 v67, -v64, v65, v67")
    a("v_mul_f32 v65, 0x%x, v65" % LOG2E)
    a("v_mul_f32 v67, 0x%x, v67" % LOG2E)
    a("v_and_b32 v62, 15, v60")
    a("v_lshl_add_u32 v61, v62, 2, v61")
    a("v_add_u32 v61, %d, v61" % PARAM)
    a("v_cmp_gt_u32 vcc, 160, v60")
    a("s_and_saveexec_b64 s[46:47], vcc")
    a("ds_write_b32 v61, v65")
    a("ds_write_b32 v61, v67 offset:64")
    a("s_mov_b64 exec, s[46:47]")
    a("s_waitcnt vmcnt(0) lgkmcnt(0)")
    lstamp()
    a("s_barrier")
    lstamp()
    if opt.stamp:
        a("s_mov_b32 s32, s18")
        a("s_and_b32 s33, s19, 0xffff")
        a("s_mov_b32 s34, 0x1000000")
        a("s_mov_b32 s35, 0x20000")
        a("s_lshl_b32 s36, s2, 3")
        a("s_add_u32 s36, s36, s%d" % S_J)
        a("s_add_u32 s36, s36, 4")
        a("s_lshl_b32 s36, s36, 9")
        a("s_add_u32 s36, s36, 0x100000")
        a("v_lshlrev_b32 v42, 3, v%d" % V_LANE)
        a("buffer_store_dwordx2 v[%d:%d], v42, s[32:35], s36 offen" % (V_ST, V_ST + 1))
    a.label("L_end")
    a("s_endpgm")

    a.lines.append("@PAD 4096")
    main_lines = a.lines
    a.lines = []
    a.label("L_csetup")
    if opt.t0 == 0:
        touch1(1, "N_3")
    a.c("zero rows: r = 8w + (l>>3), and row 32")
    a("s_lshl_b32 s%d, s%d, 3" % (S_T2, S_J))
    a("v_add_u32 v1, s%d, v%d" % (S_T2, V_T0))
    a("v_mul_u32_u24 v1, %d, v1" % XBLK)
    a("v_lshl_add_u32 v1, v%d, 4, v1" % V_T1)
    a("v_mov_b64 v[4:5], 0")
    a("v_mov_b64 v[6:7], 0")
    a("ds_write_b128 v1, v[4:7]")
    a("v_lshlrev_b32 v2, 4, v%d" % V_T1)
    a("v_add_u32 v2, %d, v2" % (32 * XBLK))
    a("ds_write_b128 v2, v[4:7]")
    a("s_mov_b32 s28, s16")
    a("s_and_b32 s29, s17, 0xffff")
    a("s_mov_b32 s30, s22")
    a("s_mov_b32 s31, 0x20000")
    a("s_mov_b32 s%d, 0x%x" % (S_L2E, LOG2E))
    a("s_mov_b32 s%d, s%d" % (S_L2E + 1, S_L2E))
    a("s_mov_b32 s%d, %d" % (S_XT, XBUFB))
    a("v_lshrrev_b32 v%d, 4, v%d" % (V_T3, V_LANE))
    a("v_and_b32 v%d, 15, v%d" % (V_T2, V_LANE))
    for tap in range(3):
        va = V_XA + tap
        a("v_add_u32 v%d, %d, v%d" % (V_T0, tap + 15, V_T2))
        a("v_and_b32 v%d, 6, v%d" % (V_T0, V_T0))
        a("v_xor_b32 v%d, v%d, v%d" % (V_T0, V_T0, V_T3))
        a("v_lshlrev_b32 v%d, 4, v%d" % (V_T0, V_T0))
        a("v_lshl_add_u32 v%d, v%d, 7, v%d" % (V_T0, V_T2, V_T0))
        if tap:
            a("s_addk_i32 s%d, 128" % S_XB)
        a("v_add_u32 v%d, s%d, v%d" % (va, S_XB, V_T0))
        a("v_xor_b32 v%d, 64, v%d" % (va + 3, va))
    if opt.t0 == 0:
        touch1(2, "N_2")
    a("v_mul_u32_u24 v%d, %d, v%d" % (V_OUT, ROWB, V_T2))
    a("v_lshrrev_b32 v%d, 1, v%d" % (V_T0, V_T3))
    a("v_lshl_add_u32 v%d, v%d, 4, v%d" % (V_OUT, V_T0, V_OUT))
    a("v_and_b32 v%d, 1, v%d" % (V_T1, V_T3))
    a("v_lshl_add_u32 v%d, v%d, 5, v%d" % (V_OUT, V_T1, V_OUT))
    a("v_lshlrev_b32 v%d, 4, v%d" % (V_PAR, V_T3))
    a("v_add_u32 v%d, %d, v%d" % (V_PAR, PARAM, V_PAR))
    a("v_lshlrev_b32 v%d, 4, v%d" % (V_T0, V_T0))
    a("v_lshl_add_u32 v%d, v%d, 2, v%d" % (V_T0, V_T1, V_T0))
    a("v_bfe_u32 v%d, v%d, 2, 2" % (V_T2, V_LANE))
    a("v_add_u32 v%d, v%d, v%d" % (V_T0, V_T0, V_T2))
    a("v_mul_u32_u24 v%d, 320, v%d" % (V_T0, V_T0))
    a("v_and_b32 v%d, 3, v%d" % (V_T2, V_LANE))
    a("v_lshl_add_u32 v%d, v%d, 3, v%d" % (V_T0, V_T2, V_T0))
    a("v_lshlrev_b32 v%d, 5, v%d" % (V_T1, V_T1))
    a("v_add_u32 v%d, v%d, v%d" % (V_WLE, V_T0, V_T1))
    a("v_sub_u32 v%d, v%d, v%d" % (V_WLO, V_T0, V_T1))
    a("s_mov_b32 s%d, %d" % (S_WS, WRING))
    a("v_add_u32 v%d, s%d, v%d" % (V_WE, S_WS, V_WLE))
    a("v_add_u32 v%d, s%d, v%d" % (V_WO, S_WS, V_WLO))
    a("s_add_u32 s%d, s%d, s%d" % (S_SOFF, S_SOFF, S_COL))
    a("s_mul_i32 s60, s%d, %d" % (S_ODD, 32 * ROWB))
    a("s_add_u32 s61, s%d, s60" % S_SOFF)
    a("s_xor_b32 s60, s60, %d" % (32 * ROWB))
    a("s_add_u32 s62, s%d, s60" % S_SOFF)
    a("s_lshl_b32 s60, s%d, 6" % S_ODD)
    a("s_add_u32 s%d, s61, s60" % S_OUT)
    a("s_add_u32 s%d, s%d, %d" % (S_OUT + 1, S_OUT, 16 * ROWB))
    a("s_add_u32 s%d, s62, s60" % (S_OUT + 2))
    a("s_add_u32 s%d, s%d, %d" % (S_OUT + 3, S_OUT + 2, 16 * ROWB))
    a("s_lshl_b32 s60, s%d, 8" % S_ODD)
    a("s_sub_u32 s%d, s61, s60" % (S_OUT + 4))
    a("s_addk_i32 s%d, 256" % (S_OUT + 4))
    a("s_add_u32 s%d, s%d, %d" % (S_OUT + 5, S_OUT + 4, 16 * ROWB))
    for r in range(0, 144, 2):
        if r == 24 and opt.t0 == 0:
            touch1(3, "N_1", False)
        a("v_mov_b64 v[%d:%d], 0" % (r, r + 1))
    a("s_mov_b32 s%d, %d" % (S_CNT, 9))
    a("s_branch L_cgo")
    csetup_lines = a.lines
    a.lines = main_lines
    a.lines.append("@NODE1")
    a.label("L_cgo")
    a("s_waitcnt vmcnt(0) lgkmcnt(0)")
    stamp(1)
    probe("b0", 12)
    a("s_barrier")
    stamp(2)
    stampc(5)
    if opt.stamp:
        a("s_waitcnt lgkmcnt(0)")

    UNITS = [(0, 2), (0, 3), (1, 3), (1, 2), (1, 1), (1, 0), (0, 0), (0, 1), (2, 1), (2, 0), (2, 2), (2, 3)]
    for tau in range(3, 8):
        UNITS += [(tau, i) for i in ((3, 2, 1, 0) if tau % 2 else (0, 1, 2, 3))]
    UNITS += [(8, 0), (8, 1), (9, 1), (9, 0)]

    def expand(units):
        r = []
        for u, (tau, i) in enumerate(units):
            r += [(tau, i, k) for k in ((0, 1, 2) if u % 2 == 0 else (2, 1, 0))]
        return r

    MF = expand(UNITS)
    assert len(MF) == 108
    BP, MARG, QUIET, TOLD = opt.bp, opt.marg, opt.quiet, opt.told
    XR = lambda i, k: XR0 + (i * 3 + k) * 4
    wslot = lambda s, tau, k: WR + ((s * 30 + tau * 3 + k) % 12) * 4
    gbar = lambda s: 108 * s - BP - 1

    def w_ins(reg, tau, k, h):
        return "ds_read_b64_tr_b16 v[%d:%d], v%d offset:%d" % (reg + 2 * h, reg + 2 * h + 1, V_WE if tau % 2 == 0 else V_WO, k * WKS + h * 2560 + tau * 32)

    def x_ins(s, i, k):
        return "ds_read_b128 %s, v%d offset:%d" % (vr(XR(i, k)), V_XA + (s % 2) * 3 + k, i * XBLK)

    wfirst, wlast, xfirst, xlast = {}, {}, {}, {}
    for idx, (tau, i, k) in enumerate(MF):
        wfirst.setdefault((tau, k), idx); wlast[(tau, k)] = idx
        xfirst.setdefault((i, k), idx); xlast[(i, k)] = idx
    NS = 8
    ops = []
    for s_ in range(1, NS):
        for tau in range(10):
            for k in range(3):
                n = s_ * 30 + tau * 3 + k - 12
                ps, pt, pk_ = n // 30, (n % 30) // 3, n % 3
                e = max(gbar(s_) + 1, 108 * ps + wlast[(pt, pk_)])
                d = min(108 * s_ + wfirst[(tau, k)] - MARG, gbar(s_ + 1) - QUIET)
                for h in range(2):
                    ops.append([e, d, w_ins(wslot(s_, tau, k), tau, k, h), ("W", s_, tau, k)])
        for i in range(4):
            for k in range(3):
                e = max(gbar(s_) + 1, 108 * (s_ - 1) + xlast[(i, k)])
                d = 108 * s_ + xfirst[(i, k)] - MARG
                ops.append([e, d, x_ins(s_, i, k), ("X", s_, i, k)])
    gap = {}
    bars = {gbar(s_) for s_ in range(1, NS + 1)}
    pend = sorted(ops, key=lambda o: (o[1], o[0]))
    late = 0
    lastw, lastx = {}, {}
    for p in range(gbar(1), 108 * NS):
        if p in bars:
            continue
        for o in pend:
            if o[0] <= p:
                gap.setdefault(p, []).append(("l", o[2], o[3]))
                late = max(late, p - o[1])
                (lastw if o[3][0] == "W" else lastx)[o[3][1]] = p
                pend.remove(o)
                break
    assert not pend
    if late > 0:
        print("; worst deadline miss: %d gaps" % late, file=sys.stderr)

    def place(seq, lo, hi):
        free = [p for p in range(lo, hi + 1) if p not in bars and not gap.get(p)]
        slots = [p for p in free for _ in range(2)]
        if len(slots) < len(seq):
            slots = sorted(slots + [p for p in range(lo, hi + 1) if p not in bars and gap.get(p)])
        assert len(slots) >= len(seq), (lo, hi)
        for ins, p in zip(seq, slots):
            gap.setdefault(p, []).append(("i", ins))

    for s_ in range(1, NS - 1):
        assert lastw[s_] < gbar(s_ + 1) - 3
        seq = ["s_addk_i32 s%d, %d" % (S_WS, WSTAGE),
               "s_cmp_eq_u32 s%d, %d" % (S_WS, WRING + 3 * WSTAGE),
               "s_cselect_b32 s%d, %d, s%d" % (S_WS, WRING, S_WS),
               "v_add_u32 v%d, s%d, v%d" % (V_WE, S_WS, V_WLE),
               "v_add_u32 v%d, s%d, v%d" % (V_WO, S_WS, V_WLO)]
        if s_ % 2 == 0:
            seq += ["s_sub_u32 s%d, s%d, 1" % (S_CNT, S_CNT), "s_cmp_eq_u32 s%d, 0" % S_CNT]
        place(seq, lastw[s_] + 1, gbar(s_ + 1) - 1)
        seq = ["v_add_u32 v%d, s%d, v%d" % (V_XA + (s_ % 2) * 3 + k, S_XT, V_XA + (s_ % 2) * 3 + k) for k in range(3)]
        if s_ % 2 == 1:
            seq.append("s_sub_u32 s%d, 0, s%d" % (S_XT, S_XT))
        place(seq, max(lastx[s_] + 1, 108 * s_), lastw[s_] - 1)

    class Q2:
        def __init__(self):
            self.q = []
        def issue(self, tag, t):
            self.q.append((tag, t))
        def need(self, tags, now, told):
            idx = [n for n, (tg, _) in enumerate(self.q) if tg in tags]
            if not idx:
                return None
            n = len(self.q) - 1 - idx[-1]
            young = sum(1 for _, t in self.q if now - t < told)
            n = min(n, young, 15)
            self.q = self.q[len(self.q) - n:] if n else []
            return n

    q = Q2()
    text = {}
    for p in range(gbar(1) + 1, 108 * (NS - 1)):
        out = []
        s_, idx = p // 108, p % 108
        tau, i, k = MF[idx]
        n = q.need({("W", s_, tau, k), ("X", s_, i, k)}, p, TOLD)
        if n is not None:
            out.append("    s_waitcnt lgkmcnt(%d)" % n)
        ac = vr(ACC(tau, i))
        out.append("    v_mfma_f32_16x16x32_bf16 %s, %s, %s, %s" % (ac, vr(wslot(s_, tau, k)), vr(XR(i, k)), ac))
        if p in bars:
            if q.q:
                out.append("    s_waitcnt lgkmcnt(0)")
                q.q = []
            out.append("    s_barrier")
            if (s_ % 2) == 0:
                out.append("    s_cbranch_scc1 L_epi")
        for it_ in gap.get(p, []):
            out.append("    " + it_[1])
            if it_[0] == "l":
                q.issue(it_[2], p)
        text[p] = out
    b1 = [l for p in range(216, 432) for l in text[p]]
    b2 = [l for p in range(432, 648) for l in text[p]]
    assert b1 == b2
    for p in range(gbar(2) + 1, 216):
        for it_ in gap.get(p, []):
            assert it_[0] == "l" and it_[2][1] == 2, it_
            a(it_[1])
    a.label("L_loop")
    a.lines += b1
    a("s_branch L_loop")
    a.lines += csetup_lines
    a.lines.append("@PADEPI")

    a.label("L_epi")
    probe("epi", 30)
    a.c("rest of stage 16, then stage 17 pair by pair with the epilogue of finished tiles interleaved")
    E = 242
    SL, SN = 2, 3
    PORD = [(0, 2), (0, 3), (0, 1), (0, 0)] + [(p, i) for p in (1, 2, 3) for i in ((0, 1, 2, 3) if p % 2 else (3, 2, 1, 0))] + [(4, 1), (4, 0)]
    un = []
    for n, (p, i) in enumerate(PORD):
        t2 = [(2 * p, i), (2 * p + 1, i)]
        un += t2 if n % 2 == 0 else t2[::-1]
    M17 = expand(un)
    LEAD = opt.lead
    skel = [("m", SL) + MF[idx] for idx in range(108 - BP, 108)]
    skel += [("m", SN) + m for m in M17[:6 * LEAD]]
    for n, (p, i) in enumerate(PORD):
        ms = [("m", SN) + m for m in M17[6 * (n + LEAD):6 * (n + LEAD + 1)]]
        A_, B_ = ACC(2 * p, i), ACC(2 * p + 1, i)
        v = []
        for acc, tau in ((A_, 2 * p), (B_, 2 * p + 1)):
            for h in range(2):
                v.append(("fma", acc + 2 * h, tau, h))
        ex = [("t", "v_exp_f32_e64 v%d, -v%d" % (E + 4 * k + r, acc + r)) for k, acc in enumerate((A_, B_)) for r in range(4)]
        den = [("v", "v_pk_fma_f32 v[%d:%d], v[%d:%d], s[%d:%d], s[%d:%d]" % (
            E + 2 * k, E + 2 * k + 1, E + 2 * k, E + 2 * k + 1, S_L2E, S_L2E + 1, S_L2E, S_L2E + 1)) for k in range(4)]
        rc = [("t", "v_rcp_f32 v%d, v%d" % (E + k, E + k)) for k in range(8)]
        mul = [("v", "v_pk_mul_f32 v[%d:%d], v[%d:%d], v[%d:%d]" % (
            E + 4 * k + 2 * h, E + 4 * k + 2 * h + 1, acc + 2 * h, acc + 2 * h + 1, E + 4 * k + 2 * h, E + 4 * k + 2 * h + 1))
            for k, acc in enumerate((A_, B_)) for h in range(2)]
        so, imm = (S_OUT + i, 64 * p) if p < 4 else (S_OUT + 4 + i, 0)
        fin = [("v", "v_cvt_pk_bf16_f32 v%d, v%d, v%d" % (A_ + 0, E + 0, E + 1)),
               ("v", "v_cvt_pk_bf16_f32 v%d, v%d, v%d" % (A_ + 2, E + 4, E + 5)),
               ("v", "v_cvt_pk_bf16_f32 v%d, v%d, v%d" % (A_ + 1, E + 2, E + 3)),
               ("v", "v_cvt_pk_bf16_f32 v%d, v%d, v%d" % (A_ + 3, E + 6, E + 7)),
               ("v", "s_nop 0"),
               ("v", "v_permlane16_swap_b32 v%d, v%d" % (A_ + 0, A_ + 2)),
               ("v", "v_permlane16_swap_b32 v%d, v%d" % (A_ + 1, A_ + 3))]
        if opt.stamp and n in (0, 2, 6, 10, 14, 17):
            k_ = (0, 2, 6, 10, 14, 17).index(n)
            fin.append(("stamp", "s_memtime s[%d:%d]" % (86 + 2 * k_, 87 + 2 * k_)))
        fin.append(("v", "buffer_store_dwordx4 %s, v%d, s[28:31], s%d offen offset:%d %s" % (vr(A_), V_OUT, so, imm, opt.stflag if n < opt.nwt else "")))

        def weave(tr, mm):
            r = []
            pos = [0, 3, 6][:len(mm)] if opt.weave == 0 else [0, 2, 4][:len(mm)]
            for j, t_ in enumerate(tr):
                if j in pos:
                    r.append(mm[pos.index(j)])
                r.append(t_)
            return r
        skel += v + weave(ex, ms[:3]) + den + weave(rc, ms[3:]) + mul + [("free", B_)] + fin
        if n + LEAD == 17:
            skel.append(("mend",))
    res_first, res_last = {}, {}
    for j, it_ in enumerate(skel):
        tags = []
        if it_[0] == "m":
            tags = [("W", it_[1], it_[2], it_[4]), ("X", it_[1], it_[3], it_[4])]
        elif it_[0] == "fma":
            tags = [("S", it_[2]), ("T", it_[2])]
        for tg in tags:
            res_first.setdefault(tg, j); res_last[tg] = j
    reg = {}
    busy = set()
    for tg in res_first:
        if tg[0] == "W" and tg[1] == SL:
            reg[tg] = wslot(SL, tg[2], tg[3]); busy.add(reg[tg])
    pool = [r for r in range(WR, WR + 48, 4) if r not in busy] + [252]
    todo = sorted([tg for tg in res_first if not (tg[0] in "WX" and tg[1] == SL)], key=lambda tg: res_first[tg])
    subq = []
    q = Q2()
    now = 0
    count = 0
    acc_w = {}

    def em(ins, cyc, ws=1):
        nonlocal now, count
        a(ins); now += cyc; count += ws

    def try_load(j):
        if not subq:
            for tg in todo[:8]:
                if tg[0] == "X":
                    if res_last.get(("X", SL, tg[2], tg[3]), -1) <= j:
                        subq.append((x_ins(SN, tg[2], tg[3]), tg)); todo.remove(tg); break
                else:
                    if pool:
                        r = pool.pop(0); reg[tg] = r
                        if tg[0] == "W":
                            subq.extend((w_ins(r, tg[2], tg[3], h), tg) for h in range(2))
                        else:
                            subq.append(("ds_read_b128 %s, v%d offset:%d" % (vr(r), V_PAR, tg[1] * 128 + (64 if tg[0] == "T" else 0)), tg))
                        todo.remove(tg)
                    elif any(t2[0] == "X" for t2 in todo[:8]):
                        continue
                    break
        if subq:
            ins, tg = subq.pop(0)
            em(ins, 4)
            q.issue(tg, now)
            return True
        return False

    def need(tags, j):
        for tg in tags:
            while tg in todo or any(t2 == tg for _, t2 in subq):
                print("; tail: forced load of", tg, file=sys.stderr)
                assert try_load(j - 1), tg
            for t2, t_ in q.q:
                if t2 == tg and now - t_ < 120:
                    print("; tail: short latency", tg, now - t_, file=sys.stderr)
        n = q.need(set(tags), now, 150)
        if n is not None:
            em("s_waitcnt lgkmcnt(%d)" % n, 4)

    for j, it_ in enumerate(skel):
        kind = it_[0]
        if kind == "m":
            _, s_, tau, i, k = it_
            need([("W", s_, tau, k), ("X", s_, i, k)], j)
            ac = ACC(tau, i)
            nxt = skel[j + 1][0]
            em("v_mfma_f32_16x16x32_bf16 %s, %s, %s, %s" % (vr(ac), vr(reg[("W", s_, tau, k)]), vr(XR(i, k)), vr(ac)), 12 if nxt == "m" else 8)
            acc_w[ac] = count
            if res_last[("W", s_, tau, k)] == j:
                pool.append(reg[("W", s_, tau, k)])
            if not try_load(j) and nxt == "m":
                now += 4
            elif nxt != "m" and opt.ld2 and subq:
                try_load(j)
        elif kind == "fma":
            _, r, tau, h = it_
            need([("S", tau), ("T", tau)], j)
            d = count - acc_w.get(r & ~3, -100)
            if d < 9:
                em("s_nop %d" % (8 - d), 4 * (9 - d), 9 - d)
            S_, T_ = reg[("S", tau)] + 2 * h, reg[("T", tau)] + 2 * h
            em("v_pk_fma_f32 v[%d:%d], v[%d:%d], v[%d:%d], v[%d:%d]" % (r, r + 1, r, r + 1, S_, S_ + 1, T_, T_ + 1), 4)
            if res_last[("S", tau)] == j:
                pool.extend([reg[("S", tau)], reg[("T", tau)]])
        elif kind == "t":
            assert not any(tg[0] == "X" for tg in todo) and not any(tg[0] == "X" for _, tg in subq)
            em(it_[1], 8)
        elif kind == "free":
            pool.append(it_[1])
        elif kind == "mend":
            if opt.stamp:
                a("s_waitcnt lgkmcnt(0)")
                q.q = []
            stampc(6)
            stamp(3)
        elif kind == "stamp":
            a("s_waitcnt lgkmcnt(0)")
            a(it_[1])
            a("s_waitcnt lgkmcnt(0)")
            q.q = []
        else:
            em(it_[1], 4)
    assert not todo and not subq
    probe("end", 40)
    if opt.stamp:
        a("s_waitcnt vmcnt(0)")
        stamp(4)
        a("s_waitcnt lgkmcnt(0)")
        a("s_mov_b32 s32, s18")
        a("s_and_b32 s33, s19, 0xffff")
        a("s_mov_b32 s34, 0x100000")
        a("s_mov_b32 s35, 0x20000")
        a("s_lshl_b32 s36, s2, 3")
        a("s_add_u32 s36, s36, s%d" % S_J)
        a("s_lshl_b32 s36, s36, 6")
        a("s_getreg_b32 s84, hwreg(HW_REG_HW_ID)")
        a("s_getreg_b32 s85, hwreg(HW_REG_XCC_ID)")
        for k in range(16):
            a("v_mov_b32 v%d, s%d" % (k, 70 + k))
        a("v_mov_b32 v16, 0")
        a("s_mov_b64 exec, 1")
        for k in range(4):
            a("buffer_store_dwordx4 v[%d:%d], v16, s[32:35], s36 offen offset:%d" % (4 * k, 4 * k + 3, 16 * k))
        a("s_memtime s[98:99]")
        a("s_waitcnt lgkmcnt(0)")
        a("v_mov_b32 v20, s82")
        for k in range(7):
            a("v_mov_b32 v%d, s%d" % (21 + k, 86 + 2 * k))
        a("s_add_u32 s36, s36, 0x80000")
        for k in range(2):
            a("buffer_store_dwordx4 v[%d:%d], v16, s[32:35], s36 offen offset:%d" % (20 + 4 * k, 23 + 4 * k, 16 * k))
    a.label("L_last")
    a("s_endpgm")

    if opt.touch:
        insert_nodes(a, dict([(k, "R_N_%d" % k if opt.t0 == 0 else "L_t0ret") for k in range(1, 5)] + [(k, "L_tret" if opt.contig else "L_lwait") for k in range(5, 12)]))
    else:
        resolve_pads(a)
    out = HEADER
    out += "; @launch grid=(256,1,1) block=(512,1,1) lds=%d\n" % LDS_BYTES
    out += '.amdgcn_target "amdgcn-amd-amdhsa--gfx950"\n.text\n.globl %s\n.p2align 12\n.p2align 8\n.type %s,@function\n' % (KNAME, KNAME)
    out += a.text()
    out += """.section .rodata,"a"
.p2align 6
.amdhsa_kernel %s
  .amdhsa_next_free_vgpr 256
  .amdhsa_next_free_sgpr 102
  .amdhsa_accum_offset 256
  .amdhsa_group_segment_fixed_size 0
  .amdhsa_kernarg_size 72
  .amdhsa_user_sgpr_count 2
  .amdhsa_user_sgpr_kernarg_segment_ptr 1
  .amdhsa_system_sgpr_workgroup_id_x 1
  .amdhsa_float_denorm_mode_32 3
.end_amdhsa_kernel
""" % KNAME
    return out


if __name__ == "__main__":
    ap = argparse.ArgumentParser()
    ap.add_argument("-o", default="standalone__batchnorm__sampling.s")
    ap.add_argument("--prio", type=int, default=3)
    ap.add_argument("--stamp", action="store_true")
    ap.add_argument("--stflag", default="sc1")
    ap.add_argument("--bp", type=int, default=20)
    ap.add_argument("--marg", type=int, default=9)
    ap.add_argument("--quiet", type=int, default=7)
    ap.add_argument("--told", type=int, default=10)
    ap.add_argument("--lead", type=int, default=2)
    ap.add_argument("--weave", type=int, default=1)
    ap.add_argument("--probe", default="")
    ap.add_argument("--ld2", type=int, default=0)
    ap.add_argument("--contig", type=int, default=1)
    ap.add_argument("--swap", type=int, default=0)
    ap.add_argument("--t0", type=int, default=1)
    ap.add_argument("--l2c", type=int, default=0)
    ap.add_argument("--xg", type=lambda x: [int(c) for c in x], default=[0, 2, 3, 4])
    ap.add_argument("--touch", type=int, default=1)
    ap.add_argument("--lnodes", default="0,16,33,50")
    ap.add_argument("--enodes", default="1,5,9,13,16")
    ap.add_argument("--eorder", type=int, default=0)
    ap.add_argument("--nwt", type=int, default=18)
    ap.add_argument("--early", type=int, default=0)
    ap.add_argument("--estart", type=int, default=60)
    ap.add_argument("--align", type=int, default=0)
    opt = ap.parse_args()
    open(opt.o, "w").write(gen(opt))
```

```python
import sys
import argparse

KNAME = "standalone__batchnorm__sampling_kernel"

HEADER = """; Kernarg layout for this problem (72 bytes, ptrs only, base s[0:1]):
"""

XBYTES = 1024 * 16 * 576 * 2
WBYTES = 3 * 576 * 576 * 2
ROWB = 1152
TAPB = 576 * 1152

XBLK = 17 * 128
XBUFB = 16 * XBLK
WRING = 2 * XBUFB + 128
WKS = 10240
WSTAGE = 3 * WKS
PARAM = WRING + 3 * WSTAGE
LDS_BYTES = PARAM + 1280

LOG2E = 0x3FB8AA3B


class Asm:
    def __init__(self):
        self.lines = []

    def __call__(self, s):
        self.lines.append("    " + s)

    def label(self, l):
        self.lines.append(l + ":")

    def c(self, s):
        self.lines.append("    ; " + s)

    def text(self):
        return "\n".join(self.lines) + "\n"


class LdsQ:
    def __init__(self):
        self.q = []

    def issue(self, tag):
        self.q.append(tag)

    def wait(self, tag):
        idx = [i for i, t in enumerate(self.q) if t == tag]
        if not idx:
            return None
        n = min(len(self.q) - 1 - idx[-1], 15)
        self.q = self.q[len(self.q) - n:] if n else []
        return n

    def drain(self):
        had = bool(self.q)
        self.q = []
        return had


def vr(b, n=4):
    return "v[%d:%d]" % (b, b + n - 1)


def sizes_of(lines):
    import subprocess, re, os
    src = '.amdgcn_target "amdgcn-amd-amdhsa--gfx950"\n.text\n' + "\n".join(lines) + "\n" + "".join("N_%d:\n" % k for k in range(1, 14))
    open("_sz.s", "w").write(src)
    r = subprocess.run(["clang", "-x", "assembler", "-target", "amdgcn-amd-amdhsa", "-mcpu=gfx950", "-c", "_sz.s", "-o", "_sz.o"], capture_output=True, text=True)
    assert r.returncode == 0, r.stderr
    d = subprocess.run(["llvm-objdump", "-d", "--mcpu=gfx950", "_sz.o"], capture_output=True, text=True).stdout
    sz = [len(m.group(1).split()) * 4 for m in re.finditer(r"// [0-9A-F]{12}: ((?:[0-9A-F]{8} ?)+)", d)]
    out = []
    k = 0
    for l in lines:
        t = l.strip()
        if not t or t.startswith(";") or t.endswith(":"):
            out.append(0)
        else:
            assert not t.startswith("."), t
            out.append(sz[k])
            k += 1
    assert k == len(sz)
    return out


def resolve_pads(a):
    lines = [l for l in a.lines]
    sz = sizes_of([l if not l.startswith("@") else "" for l in lines])
    out = []
    addr = 0
    epi = None
    for l, n in zip(lines, sz):
        if l.startswith("@PAD "):
            tgt = int(l.split()[1])
            if addr > tgt:
                tgt = (addr + 63) // 64 * 64
            a.base1 = tgt
        elif l == "@NODE1":
            continue
        elif l == "@PADEPI":
            addr_n = addr + 16
            tgt = (addr_n + 4095) // 4096 * 4096 - 16
            epi = tgt + 16
        else:
            out.append(l); addr += n
            continue
        while addr < tgt:
            out.append("    s_endpgm"); addr += 4
    a.lines = out
    return epi


def insert_nodes(a, rets):
    epi = resolve_pads(a)
    target = {k: a.base1 + 1024 * (k - 1) for k in range(1, 5)}
    sz = sizes_of(a.lines)
    L = a.lines
    new = []
    addr = 0
    k = 1
    i = 0
    while i < len(L) and addr < epi:
        if k <= 4 and addr >= target[k] and sz[i]:
            cand = []
            ad, j = addr, i
            while j < len(L) and ad <= target[k] + 60:
                if sz[j]:
                    cand.append(j)
                ad += sz[j]
                j += 1
            pick = cand[0]
            for j in (cand if k > 1 else []):
                prev = [x for x in range(j - 1, -1, -1) if sz[x]][:1]
                if "v_mfma" in L[j] and "v_mfma" in L[prev[0]]:
                    pick = j
                    break
            while i < pick:
                new.append(L[i]); addr += sz[i]; i += 1
            if k == 1:
                assert new[-1] == "L_cgo:"
                dist = 0
                jj = i
                while L[jj] != "L_loop:":
                    dist += sz[jj]; jj += 1
                npad = 0
                if LALIGN >= 0:
                    npad = ((LALIGN - (addr + 4 + dist)) % 64) // 4
                new[-1:] = ["N_1:", "    s_branch %s" % rets[k]] + ["    s_endpgm"] * npad + ["L_cgo:"]
                addr += 4 * npad
                drop = npad
            else:
                new.append("N_%d:" % k)
                new.append("    s_cbranch_execz %s" % rets[k])
            addr += 4
            k += 1
            continue
        new.append(L[i]); addr += sz[i]; i += 1
    while L[i] != "L_epi:":
        assert L[i].strip() == "s_endpgm", L[i]
        i += 1
    assert k == 5 and addr == epi, (k, addr, epi)
    if CONTIG:
        new.append("N_5:")
        new.append("    s_branch %s" % rets[5])
        addr += 4
        k = 6
        while i < len(L):
            tg = epi + 1024 * (k - 5)
            if k in rets and addr >= tg and sz[i]:
                cand = []
                ad, j = addr, i
                while j < len(L) and ad <= tg + 60:
                    if sz[j]:
                        cand.append(j)
                    ad += sz[j]
                    j += 1
                pick, repl = cand[0], False
                for j in cand:
                    prev = [x for x in range(j - 1, -1, -1) if sz[x]][0]
                    if L[j].strip() == "s_nop 0" and "cvt_pk" in L[prev]:
                        pick, repl = j, True
                        break
                else:
                    for j in cand:
                        prev = [x for x in range(j - 1, -1, -1) if sz[x]][0]
                        if "v_exp" in L[prev] or "v_rcp" in L[prev]:
                            pick = j
                            break
                while i < pick:
                    new.append(L[i]); addr += sz[i]; i += 1
                new.append("N_%d:" % k)
                new.append("    s_cbranch_execz %s" % rets[k])
                addr += 4
                if repl:
                    i += 1
                k += 1
                continue
            new.append(L[i]); addr += sz[i]; i += 1
        if addr > epi + 1024 * (k - 5):
            print("; WARNING: code past the last touch window", file=sys.stderr)
        for kk in range(k, max(rets) + 1):
            new = [l.replace(" N_%d" % kk, " " + rets[kk]) if l.endswith(" N_%d" % kk) else l for l in new]
        a.lines = new
        return
    seg = epi
    new.append("N_5:")
    new.append("    s_branch %s" % rets[5])
    addr += 4
    k = 6
    while i < len(L):
        ad, j = addr, i
        best_s = best_m = None
        while j < len(L) and ad + sz[j] + 4 <= seg + 1024:
            ad += sz[j]
            if "buffer_store" in L[j]:
                best_s = (j + 1, ad)
            if "v_mfma" in L[j]:
                best_m = (j + 1, ad)
            j += 1
        if j == len(L):
            new += L[i:]
            addr = ad
            break
        cut = best_s if best_s and (not best_m or best_s[1] > best_m[1] - 200) else best_m
        if k not in rets:
            print("; WARNING: code past the last touch node", file=sys.stderr)
            new += L[i:]
            break
        new += L[i:cut[0]]
        i, addr = cut
        new.append("    s_branch L_seg%d" % k)
        addr += 4
        seg = seg + 1344 if (seg % 4096) < 2688 else (seg // 4096 + 1) * 4096
        while addr < seg:
            new.append("    s_endpgm"); addr += 4
        new.append("N_%d:" % k)
        new.append("    s_branch %s" % rets[k])
        new.append("L_seg%d:" % k)
        addr += 4
        k += 1
    for kk in range(k, max(rets) + 1):
        new = [l.replace(" N_%d" % kk, " " + rets[kk]) if l.endswith(" N_%d" % kk) else l for l in new]
    a.lines = new
    a.end_addr = addr
    a.last_seg = seg


opt_tight = False
CONTIG = False
LALIGN = -1


def gen(opt):
    global CONTIG, LALIGN
    CONTIG = bool(opt.contig)
    LALIGN = opt.lalign
    a = Asm()

    def ACC(tau, i):
        return (tau * 4 + i) * 4 if tau < 8 else 128 + ((tau - 8) * 2 + i) * 4

    XR0 = 144
    WR = 192
    V_WE, V_WO, V_WLE, V_WLO = 240, 241, 242, 243
    V_XA = 244
    V_PAR, V_OUT, V_LANE, V_XD = 250, 251, 252, 253
    V_T0, V_T1, V_T2, V_T3 = 148, 149, 150, 151
    V_WA, V_W4, V_ST = 10, 11, 40

    S_WAVE, S_ROW, S_COL, S_ODD = 48, 49, 50, 57
    S_J, S_XB, S_T2 = 51, 52, 53
    S_WS, S_CNT, S_SOFF = 54, 55, 56
    S_L2E = 58
    S_XT = 63
    S_OUT = 64
    S_WL, S_WG, S_WL0, S_WL1 = 36, 37, 38, 39
    S_EAL, S_EAG, S_EBL, S_EBG = 40, 41, 42, 43
    S_S = 44

    def stamp(idx):
        if opt.stamp:
            a("s_memrealtime s[%d:%d]" % (70 + 2 * idx, 71 + 2 * idx))

    def stampc(idx):
        if opt.stamp:
            a("s_memtime s[%d:%d]" % (70 + 2 * idx, 71 + 2 * idx))

    def lstamp():
        if opt.stamp:
            a("s_memtime s[90:91]")
            a("s_memrealtime s[92:93]")
            a("s_waitcnt lgkmcnt(0)")
            a("s_mov_b32 m0, s94")
            a("s_nop 0")
            a("v_writelane_b32 v%d, s90, m0" % V_ST)
            a("v_writelane_b32 v%d, s92, m0" % (V_ST + 1))
            a("s_add_u32 s94, s94, 1")

    def probe(name, t):
        if opt.probe == name:
            a("s_waitcnt lgkmcnt(0)")
            a("s_add_u32 s72, s70, %d" % (t * 100))
            a.label("L_sp")
            a("s_memrealtime s[74:75]")
            a("s_waitcnt lgkmcnt(0)")
            a("s_sub_u32 s73, s72, s74")
            a("s_cmp_gt_i32 s73, 0")
            a("s_cbranch_scc1 L_sp")

    a.label(KNAME)
    if opt.probe:
        a("s_memrealtime s[70:71]")
    stamp(0)
    a("s_load_dwordx8 s[4:11], s[0:1], 0")
    a("s_load_dwordx4 s[12:15], s[0:1], 32")
    a("s_load_dwordx2 s[16:17], s[0:1], 48")
    if opt.stamp:
        a("s_load_dwordx2 s[18:19], s[0:1], 64")
    a("v_lshrrev_b32 v1, 6, v0")
    a("v_and_b32 v%d, 63, v0" % V_LANE)
    a("s_cmp_ge_u32 s2, 256")
    a("s_cbranch_scc1 L_end")
    a("v_readfirstlane_b32 s%d, v1" % S_WAVE)
    a("s_and_b32 s%d, s2, 7" % S_ROW)
    a("s_lshr_b32 s%d, s2, 5" % S_T2)
    a("s_lshl3_add_u32 s%d, s%d, s%d" % (S_ROW, S_ROW, S_T2))
    a("s_bfe_u32 s%d, s2, 0x20003" % S_COL)
    a("s_and_b32 s%d, s%d, 1" % (S_ODD, S_COL))
    a("s_mulk_i32 s%d, 288" % S_COL)
    a("s_lshl_b32 s%d, s%d, 5" % (S_T2, S_ODD))
    a("s_sub_u32 s%d, s%d, s%d" % (S_COL, S_COL, S_T2))
    a("s_and_b32 s%d, s%d, 3" % (S_J, S_WAVE))
    a("s_lshl2_add_u32 s%d, s%d, s%d" % (S_SOFF, S_ROW, S_J))
    a("s_mul_i32 s%d, s%d, %d" % (S_SOFF, S_SOFF, 64 * ROWB))
    a("s_mul_i32 s%d, s%d, %d" % (S_XB, S_J, 4 * XBLK))
    a("s_mov_b32 s22, %d" % XBYTES)
    a("s_mov_b32 s23, 0x20000")
    a("v_lshrrev_b32 v%d, 3, v%d" % (V_T0, V_LANE))
    a("v_and_b32 v%d, 7, v%d" % (V_T1, V_LANE))
    a("v_and_b32 v%d, 6, v%d" % (V_T2, V_T0))
    a("v_xor_b32 v%d, v%d, v%d" % (V_T2, V_T1, V_T2))
    a("v_mul_u32_u24 v%d, %d, v%d" % (V_XD, ROWB, V_T0))
    a("v_lshl_add_u32 v%d, v%d, 4, v%d" % (V_XD, V_T2, V_XD))
    a(("s_cmp_lt_u32 s%d, 4" if opt.swap else "s_cmp_ge_u32 s%d, 4") % S_WAVE)
    a("s_cbranch_scc1 L_loader")

    def touch(nodes, ret, ex=True):
        if ex:
            a("s_mov_b64 exec, 0")
        for k, nd in enumerate(nodes[:-1]):
            a("s_cmp_eq_u32 s%d, %d" % (S_J, k))
            a("s_cbranch_scc1 %s" % nd)
        a("s_branch %s" % nodes[-1])
        if ret:
            a.label(ret)
            if ex:
                a("s_mov_b64 exec, -1")

    NODE_RET = {}

    def x4(sg):
        for n in range(4):
            a("buffer_load_dwordx4 v%d, s[20:23], s%d offen lds" % (V_XD, sg))
            if n < 3:
                a("s_addk_i32 m0, %d" % (1024 if n % 2 == 0 else XBLK - 1024))
                a("s_addk_i32 s%d, %d" % (sg, 8 * ROWB))

    def touch1(j, node, ex=True):
        if not opt.touch:
            return
        a("s_cmp_lg_u32 s%d, %d" % (S_J, j))
        a("s_cbranch_scc1 R2_%s" % node)
        if ex:
            a("s_mov_b64 exec, 0")
        a("s_branch %s" % node)
        a.label("R_%s" % node)
        if ex:
            a("s_mov_b64 exec, -1")
        a.label("R2_%s" % node)

    a("s_setprio 2")
    if opt.t0 == 0:
        touch1(0, "N_4")
    elif opt.touch:
        touch(["N_4", "N_3", "N_2", "N_1"], "L_t0ret")
    a.c("compute wave: DMA own X rows, chunk 0 (logical row tiles 0,1 = physical 2*odd.., then the other two)")
    a("s_mul_i32 s60, s%d, %d" % (S_ODD, 32 * ROWB))
    a("s_xor_b32 s62, s60, %d" % (32 * ROWB))
    a("s_add_u32 s%d, s%d, s62" % (S_T2, S_SOFF))
    a("s_add_u32 m0, s%d, %d" % (S_XB, 128 + 2 * XBLK))
    a("s_waitcnt lgkmcnt(0)")
    a("s_mov_b64 s[20:21], s[4:5]")
    x4(S_T2)
    a("s_addk_i32 m0, %d" % (-(3 * XBLK + 1024)))
    a("s_add_u32 s61, s%d, s60" % S_SOFF)
    x4(61)
    a("s_branch L_csetup")

    a.label("L_loader")
    a.c("loader j: sub-piece j of each 16-row unit of W (+ share of sub-piece 4), X rows of compute wave j")
    a("s_setprio %d" % opt.lprio)
    a("s_mov_b32 s26, %d" % WBYTES)
    a("s_mov_b32 s27, 0x20000")
    a("s_movk_i32 s60, 0x34")
    a("s_movk_i32 s61, %d" % ROWB)
    a("s_lshl_b32 s62, s%d, 2" % S_ODD)
    a("s_lshl_b32 s%d, s%d, 6" % (S_T2, S_J))
    for dst, first in ((V_WA, True), (V_W4, False)):
        if first:
            a("v_add_u32 v1, s%d, v%d" % (S_T2, V_LANE))
        else:
            a("v_add_u32 v1, 256, v%d" % V_LANE)
        a("v_mul_u32_u24 v3, 3277, v1")
        a("v_lshrrev_b32 v3, 16, v3")
        a("v_mul_u32_u24 v4, 20, v3")
        a("v_sub_u32 v4, v1, v4")
        a("v_lshrrev_b32 v5, 1, v3")
        a("v_and_b32 v2, 2, v5")
        a("v_xor_b32 v4, v2, v4")
        a("v_add_u32 v4, s62, v4")
        a("v_subrev_u32 v2, 20, v4")
        a("v_min_u32 v4, v4, v2")
        a("v_and_b32 v5, 6, v5")
        a("v_bfe_i32 v5, s60, v5, 2")
        a("v_lshl_add_u32 v3, v5, 2, v3")
        a("v_lshlrev_b32 v4, 4, v4")
        a("v_mad_u32_u24 v%d, v3, s61, v4" % dst)
    a("s_lshl_b32 s62, s%d, 10" % S_J)
    a("s_add_u32 s%d, s62, %d" % (S_WL0, WRING))
    a("s_add_u32 s%d, s%d, %d" % (S_WL1, S_WL0, 3 * WSTAGE))
    a("s_mov_b32 s%d, s%d" % (S_WL, S_WL0))
    a("s_mov_b32 s%d, s%d" % (S_WG, S_COL))
    a("s_lshl_b32 s%d, s%d, 12" % (S_EAL, S_J))
    a("s_addk_i32 s%d, 4096" % S_EAL)
    a("s_and_b32 s%d, s%d, 1" % (S_T2, S_J))
    a("s_mul_i32 s%d, s%d, %d" % (S_EBG, S_T2, 16 * ROWB))
    a("s_lshr_b32 s%d, s%d, 1" % (S_EAG, S_J))
    a("s_mul_i32 s%d, s%d, %d" % (S_EAG, S_EAG, TAPB))
    a("s_add_u32 s%d, s%d, s%d" % (S_EAG, S_EAG, S_EBG))
    a("s_add_u32 s%d, s%d, %d" % (S_EBG, S_EBG, 2 * TAPB))
    a("s_mulk_i32 s%d, 5120" % S_T2)
    a("s_addk_i32 s%d, %d" % (S_T2, 4 * 5120 + 4096))
    a("s_sub_u32 s%d, s%d, s62" % (S_EBL, S_T2))
    a("s_mov_b32 s%d, -2" % S_S)
    a("s_cmp_lt_u32 s%d, 2" % S_J)
    a("s_cselect_b64 s[46:47], -1, 1")
    a("s_waitcnt lgkmcnt(0)")
    a("s_mov_b64 s[24:25], s[6:7]")
    a("s_mov_b64 s[20:21], s[4:5]")
    if opt.stamp:
        a("v_mov_b32 v%d, 0" % V_ST)
        a("v_mov_b32 v%d, s70" % (V_ST + 1))
        a("s_mov_b32 s94, 3")
    a.label("L_lw")
    for u in range(6):
        if u == 0:
            a("s_mov_b32 m0, s%d" % S_WL)
            a("s_mov_b32 s%d, s%d" % (S_T2, S_WG))
        else:
            a("s_addk_i32 m0, 5120")
            if u & 1:
                a("s_addk_i32 s%d, %d" % (S_T2, 16 * ROWB))
            else:
                a("s_add_u32 s%d, s%d, %d" % (S_T2, S_T2, TAPB - 16 * ROWB))
        a("buffer_load_dwordx4 v%d, s[24:27], s%d offen lds" % (V_WA, S_T2))
    for el, eg in ((S_EAL, S_EAG), (S_EBL, S_EBG)):
        if el == S_EBL:
            a("s_mov_b64 exec, s[46:47]")
        a("s_add_u32 m0, s%d, s%d" % (S_WL, el))
        a("s_add_u32 s%d, s%d, s%d" % (S_T2, S_WG, eg))
        a("buffer_load_dwordx4 v%d, s[24:27], s%d offen lds" % (V_W4, S_T2))
    a("s_mov_b64 exec, -1")
    a("s_setprio 0")
    a("s_addk_i32 s%d, %d" % (S_WL, WSTAGE))
    a("s_cmp_eq_u32 s%d, s%d" % (S_WL, S_WL1))
    a("s_cselect_b32 s%d, s%d, s%d" % (S_WL, S_WL0, S_WL))
    a("s_add_u32 s%d, s%d, %d" % (S_WG, S_WG, 32 * ROWB))
    a("s_add_i32 s%d, s%d, 1" % (S_S, S_S))
    a("s_cmp_lt_i32 s%d, 0" % S_S)
    a("s_cbranch_scc1 L_lw")
    a("s_bitcmp1_b32 0x15554, s%d" % S_S)
    a("s_cbranch_scc1 L_ltouch1")
    a.label("L_lwait")
    a("s_waitcnt vmcnt(8)")
    lstamp()
    a("s_barrier")
    lstamp()
    a("s_cmp_eq_u32 s%d, 16" % S_S)
    a("s_cbranch_scc1 L_ltail")
    a("s_and_b32 s60, s%d, 1" % S_S)
    a("s_lshr_b32 s61, s%d, 1" % S_S)
    a("s_add_u32 s61, s61, 1")
    a("s_mul_i32 s62, s60, %d" % (2 * XBLK))
    a("s_add_u32 s62, s62, s%d" % S_XB)
    a("s_addk_i32 s62, 128")
    a("s_bitcmp1_b32 s61, 0")
    a("s_cselect_b32 s63, %d, 0" % XBUFB)
    a("s_add_u32 m0, s62, s63")
    a("s_xor_b32 s60, s60, s%d" % S_ODD)
    a("s_mul_i32 s60, s60, %d" % (32 * ROWB))
    a("s_lshl_b32 s61, s61, 7")
    a("s_add_u32 s60, s60, s61")
    a("s_add_u32 s60, s60, s%d" % S_SOFF)
    x4(60)
    a("s_branch L_lw")

    a.lines.append("@PAD 1344")
    a.label("L_ltouch1")
    if opt.touch:
        a.c("one instruction-cache touch per stage (each node branches straight back to L_lwait)")
        if opt.contig:
            a("s_mov_b64 exec, 0")
        for k in range(1, 8):
            a("s_cmp_eq_u32 s%d, %d" % (S_S, 2 + 2 * k))
            a("s_cbranch_scc1 N_%d" % ((12 - k) if opt.contig else (4 + k)))
        if opt.contig:
            a.label("L_tret")
            a("s_mov_b64 exec, -1")
    a("s_cmp_lg_u32 s%d, 2" % S_S)
    a("s_cbranch_scc1 L_lwait")
    a.c("BN parameter loads: logical idx = 64j + lane (<160); physical = (idx + 32*odd) mod 160")
    a("s_lshl_b32 s%d, s%d, 6" % (S_T2, S_J))
    a("v_add_u32 v60, s%d, v%d" % (S_T2, V_LANE))
    a("s_lshl_b32 s%d, s%d, 5" % (S_T2, S_ODD))
    a("v_add_u32 v61, s%d, v60" % S_T2)
    a("v_subrev_u32 v62, 160, v61")
    a("v_min_u32 v61, v61, v62")
    a("v_lshlrev_b32 v61, 1, v61")
    PS = [28, 32, 64, 96]
    for k in range(4):
        a("s_mov_b32 s%d, s%d" % (PS[k], 8 + 2 * k))
        a("s_and_b32 s%d, s%d, 0xffff" % (PS[k] + 1, 9 + 2 * k))
        a("s_movk_i32 s%d, 1152" % (PS[k] + 2))
        a("s_mov_b32 s%d, 0x20000" % (PS[k] + 3))
        a("buffer_load_ushort v%d, v61, s[%d:%d], s%d offen" % (64 + k, PS[k], PS[k] + 3, S_COL))
    a("s_branch L_lwait")

    a.label("L_ltail")
    if opt.l2c:
        a.c("refresh the tail code in L2 (one dword per 128-B line)")
        a("s_getpc_b64 s[60:61]")
        a.label("L_pc3")
        a("s_lshl_b32 s62, s%d, 13" % S_J)
        a("v_lshl_add_u32 v12, v%d, 7, s62" % V_LANE)
        a("v_min_u32 v12, L_last-L_epi, v12")
        a("s_add_u32 s60, s60, L_epi-L_pc3")
        a("s_addc_u32 s61, s61, 0")
        a("v_mov_b32 v13, s61")
        a("v_add_co_u32 v12, vcc, s60, v12")
        a("s_nop 1")
        a("v_addc_co_u32 v13, vcc, 0, v13, vcc")
        a("global_load_dword v14, v[12:13], off")
    a.c("BN parameters: v64=mean v65=var v66=g v67=b (bf16 bits); roundings follow the bf16 reference")
    for k in range(4):
        a("v_lshlrev_b32 v%d, 16, v%d" % (64 + k, 64 + k))
    a("v_add_f32 v65, 0x3727c5ac, v65")
    a("v_cvt_pk_bf16_f32 v65, v65, v65")
    a("v_lshlrev_b32 v65, 16, v65")
    a("v_sqrt_f32 v65, v65")
    a("v_lshrrev_b32 v61, 4, v60")
    a("v_cvt_pk_bf16_f32 v65, v65, v65")
    a("v_lshlrev_b32 v65, 16, v65")
    a("v_rcp_f32 v65, v65")
    a("v_lshlrev_b32 v61, 7, v61")
    a("v_cvt_pk_bf16_f32 v65, v65, v65")
    a("v_lshlrev_b32 v65, 16, v65")
    a("v_mul_f32 v65, v66, v65")
    a("v_cvt_pk_bf16_f32 v65, v65, v65")
    a("v_lshlrev_b32 v65, 16, v65")
    a("v_fma_f32 v67, -v64, v65, v67")
    a("v_mul_f32 v65, 0x%x, v65" % LOG2E)
    a("v_mul_f32 v67, 0x%x, v67" % LOG2E)
    a("v_and_b32 v62, 15, v60")
    a("v_lshl_add_u32 v61, v62, 2, v61")
    a("v_add_u32 v61, %d, v61" % PARAM)
    a("v_cmp_gt_u32 vcc, 160, v60")
    a("s_and_saveexec_b64 s[46:47], vcc")
    a("ds_write_b32 v61, v65")
    a("ds_write_b32 v61, v67 offset:64")
    a("s_mov_b64 exec, s[46:47]")
    a("s_waitcnt vmcnt(0) lgkmcnt(0)")
    lstamp()
    a("s_barrier")
    lstamp()
    if opt.stamp:
        a("s_mov_b32 s32, s18")
        a("s_and_b32 s33, s19, 0xffff")
        a("s_mov_b32 s34, 0x1000000")
        a("s_mov_b32 s35, 0x20000")
        a("s_lshl_b32 s36, s2, 3")
        a("s_add_u32 s36, s36, s%d" % S_J)
        a("s_add_u32 s36, s36, 4")
        a("s_lshl_b32 s36, s36, 9")
        a("s_add_u32 s36, s36, 0x100000")
        a("v_lshlrev_b32 v42, 3, v%d" % V_LANE)
        a("buffer_store_dwordx2 v[%d:%d], v42, s[32:35], s36 offen" % (V_ST, V_ST + 1))
    a.label("L_end")
    a("s_endpgm")

    a.lines.append("@PAD 4096")
    main_lines = a.lines
    a.lines = []
    a.label("L_csetup")
    if opt.t0 == 0:
        touch1(1, "N_3")
    a.c("zero rows: r = 8w + (l>>3), and row 32")
    a("s_lshl_b32 s%d, s%d, 3" % (S_T2, S_J))
    a("v_add_u32 v1, s%d, v%d" % (S_T2, V_T0))
    a("v_mul_u32_u24 v1, %d, v1" % XBLK)
    a("v_lshl_add_u32 v1, v%d, 4, v1" % V_T1)
    a("v_mov_b64 v[4:5], 0")
    a("v_mov_b64 v[6:7], 0")
    a("ds_write_b128 v1, v[4:7]")
    a("v_lshlrev_b32 v2, 4, v%d" % V_T1)
    a("v_add_u32 v2, %d, v2" % (32 * XBLK))
    a("ds_write_b128 v2, v[4:7]")
    a("s_mov_b32 s28, s16")
    a("s_and_b32 s29, s17, 0xffff")
    a("s_mov_b32 s30, s22")
    a("s_mov_b32 s31, 0x20000")
    a("s_mov_b32 s%d, 0x%x" % (S_L2E, LOG2E))
    a("s_mov_b32 s%d, s%d" % (S_L2E + 1, S_L2E))
    a("s_mov_b32 s%d, %d" % (S_XT, XBUFB))
    a("v_lshrrev_b32 v%d, 4, v%d" % (V_T3, V_LANE))
    a("v_and_b32 v%d, 15, v%d" % (V_T2, V_LANE))
    for tap in range(3):
        va = V_XA + tap
        a("v_add_u32 v%d, %d, v%d" % (V_T0, tap + 15, V_T2))
        a("v_and_b32 v%d, 6, v%d" % (V_T0, V_T0))
        a("v_xor_b32 v%d, v%d, v%d" % (V_T0, V_T0, V_T3))
        a("v_lshlrev_b32 v%d, 4, v%d" % (V_T0, V_T0))
        a("v_lshl_add_u32 v%d, v%d, 7, v%d" % (V_T0, V_T2, V_T0))
        if tap:
            a("s_addk_i32 s%d, 128" % S_XB)
        a("v_add_u32 v%d, s%d, v%d" % (va, S_XB, V_T0))
        a("v_xor_b32 v%d, 64, v%d" % (va + 3, va))
    if opt.t0 == 0:
        touch1(2, "N_2")
    a("v_mul_u32_u24 v%d, %d, v%d" % (V_OUT, ROWB, V_T2))
    a("v_lshrrev_b32 v%d, 1, v%d" % (V_T0, V_T3))
    a("v_lshl_add_u32 v%d, v%d, 4, v%d" % (V_OUT, V_T0, V_OUT))
    a("v_and_b32 v%d, 1, v%d" % (V_T1, V_T3))
    a("v_lshl_add_u32 v%d, v%d, 5, v%d" % (V_OUT, V_T1, V_OUT))
    a("v_lshlrev_b32 v%d, 4, v%d" % (V_PAR, V_T3))
    a("v_add_u32 v%d, %d, v%d" % (V_PAR, PARAM, V_PAR))
    a("v_lshlrev_b32 v%d, 4, v%d" % (V_T0, V_T0))
    a("v_lshl_add_u32 v%d, v%d, 2, v%d" % (V_T0, V_T1, V_T0))
    a("v_bfe_u32 v%d, v%d, 2, 2" % (V_T2, V_LANE))
    a("v_add_u32 v%d, v%d, v%d" % (V_T0, V_T0, V_T2))
    a("v_mul_u32_u24 v%d, 320, v%d" % (V_T0, V_T0))
    a("v_and_b32 v%d, 3, v%d" % (V_T2, V_LANE))
    a("v_lshl_add_u32 v%d, v%d, 3, v%d" % (V_T0, V_T2, V_T0))
    a("v_lshlrev_b32 v%d, 5, v%d" % (V_T1, V_T1))
    a("v_add_u32 v%d, v%d, v%d" % (V_WLE, V_T0, V_T1))
    a("v_sub_u32 v%d, v%d, v%d" % (V_WLO, V_T0, V_T1))
    a("s_mov_b32 s%d, %d" % (S_WS, WRING))
    a("v_add_u32 v%d, s%d, v%d" % (V_WE, S_WS, V_WLE))
    a("v_add_u32 v%d, s%d, v%d" % (V_WO, S_WS, V_WLO))
    a("s_add_u32 s%d, s%d, s%d" % (S_SOFF, S_SOFF, S_COL))
    a("s_mul_i32 s60, s%d, %d" % (S_ODD, 32 * ROWB))
    a("s_add_u32 s61, s%d, s60" % S_SOFF)
    a("s_xor_b32 s60, s60, %d" % (32 * ROWB))
    a("s_add_u32 s62, s%d, s60" % S_SOFF)
    a("s_lshl_b32 s60, s%d, 6" % S_ODD)
    a("s_add_u32 s%d, s61, s60" % S_OUT)
    a("s_add_u32 s%d, s%d, %d" % (S_OUT + 1, S_OUT, 16 * ROWB))
    a("s_add_u32 s%d, s62, s60" % (S_OUT + 2))
    a("s_add_u32 s%d, s%d, %d" % (S_OUT + 3, S_OUT + 2, 16 * ROWB))
    a("s_lshl_b32 s60, s%d, 8" % S_ODD)
    a("s_sub_u32 s%d, s61, s60" % (S_OUT + 4))
    a("s_addk_i32 s%d, 256" % (S_OUT + 4))
    a("s_add_u32 s%d, s%d, %d" % (S_OUT + 5, S_OUT + 4, 16 * ROWB))
    for r in range(0, 144, 2):
        if r == 24 and opt.t0 == 0:
            touch1(3, "N_1", False)
        a("v_mov_b64 v[%d:%d], 0" % (r, r + 1))
    a("s_mov_b32 s%d, %d" % (S_CNT, 9))
    a("s_branch L_cgo")
    csetup_lines = a.lines
    a.lines = main_lines
    a.lines.append("@NODE1")
    a.label("L_cgo")
    a("s_waitcnt lgkmcnt(0)" if opt.p3 else "s_waitcnt vmcnt(0) lgkmcnt(0)")
    stamp(1)
    probe("b0", 12)
    a("s_barrier")
    stamp(2)
    stampc(5)
    if opt.stamp:
        a("s_waitcnt lgkmcnt(0)")

    UNITS = [(0, 2), (0, 3), (1, 3), (1, 2), (1, 1), (1, 0), (0, 0), (0, 1), (2, 1), (2, 0), (2, 2), (2, 3)]
    for tau in range(3, 8):
        UNITS += [(tau, i) for i in ((3, 2, 1, 0) if tau % 2 else (0, 1, 2, 3))]
    UNITS += [(8, 0), (8, 1), (9, 1), (9, 0)]

    def expand(units):
        r = []
        for u, (tau, i) in enumerate(units):
            r += [(tau, i, k) for k in ((0, 1, 2) if u % 2 == 0 else (2, 1, 0))]
        return r

    MF = expand(UNITS)
    assert len(MF) == 108
    BP, MARG, QUIET, TOLD = opt.bp, opt.marg, opt.quiet, opt.told
    XR = lambda i, k: XR0 + (i * 3 + k) * 4
    wslot = lambda s, tau, k: WR + ((s * 30 + tau * 3 + k) % 12) * 4
    gbar = lambda s: 108 * s - BP - 1

    def w_ins(reg, tau, k, h):
        return "ds_read_b64_tr_b16 v[%d:%d], v%d offset:%d" % (reg + 2 * h, reg + 2 * h + 1, V_WE if tau % 2 == 0 else V_WO, k * WKS + h * 2560 + tau * 32)

    def x_ins(s, i, k):
        return "ds_read_b128 %s, v%d offset:%d" % (vr(XR(i, k)), V_XA + (s % 2) * 3 + k, i * XBLK)

    wfirst, wlast, xfirst, xlast = {}, {}, {}, {}
    for idx, (tau, i, k) in enumerate(MF):
        wfirst.setdefault((tau, k), idx); wlast[(tau, k)] = idx
        xfirst.setdefault((i, k), idx); xlast[(i, k)] = idx
    NS = 8
    ops = []
    for s_ in range(1, NS):
        for tau in range(10):
            for k in range(3):
                n = s_ * 30 + tau * 3 + k - 12
                ps, pt, pk_ = n // 30, (n % 30) // 3, n % 3
                e = max(gbar(s_) + 1, 108 * ps + wlast[(pt, pk_)])
                d = min(108 * s_ + wfirst[(tau, k)] - MARG, gbar(s_ + 1) - QUIET)
                for h in range(2):
                    ops.append([e, d, w_ins(wslot(s_, tau, k), tau, k, h), ("W", s_, tau, k)])
        for i in range(4):
            for k in range(3):
                e = max(gbar(s_) + 1, 108 * (s_ - 1) + xlast[(i, k)])
                d = 108 * s_ + xfirst[(i, k)] - MARG
                ops.append([e, d, x_ins(s_, i, k), ("X", s_, i, k)])
    gap = {}
    bars = {gbar(s_) for s_ in range(1, NS + 1)}
    pend = sorted(ops, key=lambda o: (o[1], o[0]))
    late = 0
    lastw, lastx = {}, {}
    for p in range(gbar(1), 108 * NS):
        if p in bars:
            continue
        for o in pend:
            if o[0] <= p:
                gap.setdefault(p, []).append(("l", o[2], o[3]))
                late = max(late, p - o[1])
                (lastw if o[3][0] == "W" else lastx)[o[3][1]] = p
                pend.remove(o)
                break
    assert not pend
    if late > 0:
        print("; worst deadline miss: %d gaps" % late, file=sys.stderr)

    def place(seq, lo, hi):
        free = [p for p in range(lo, hi + 1) if p not in bars and not gap.get(p)]
        slots = [p for p in free for _ in range(2)]
        if len(slots) < len(seq):
            slots = sorted(slots + [p for p in range(lo, hi + 1) if p not in bars and gap.get(p)])
        assert len(slots) >= len(seq), (lo, hi)
        for ins, p in zip(seq, slots):
            gap.setdefault(p, []).append(("i", ins))

    for s_ in range(1, NS - 1):
        assert lastw[s_] < gbar(s_ + 1) - 3
        seq = ["s_addk_i32 s%d, %d" % (S_WS, WSTAGE),
               "s_cmp_eq_u32 s%d, %d" % (S_WS, WRING + 3 * WSTAGE),
               "s_cselect_b32 s%d, %d, s%d" % (S_WS, WRING, S_WS),
               "v_add_u32 v%d, s%d, v%d" % (V_WE, S_WS, V_WLE),
               "v_add_u32 v%d, s%d, v%d" % (V_WO, S_WS, V_WLO)]
        if s_ % 2 == 0:
            seq += ["s_sub_u32 s%d, s%d, 1" % (S_CNT, S_CNT), "s_cmp_eq_u32 s%d, 0" % S_CNT]
        place(seq, lastw[s_] + 1, gbar(s_ + 1) - 1)
        seq = ["v_add_u32 v%d, s%d, v%d" % (V_XA + (s_ % 2) * 3 + k, S_XT, V_XA + (s_ % 2) * 3 + k) for k in range(3)]
        if s_ % 2 == 1:
            seq.append("s_sub_u32 s%d, 0, s%d" % (S_XT, S_XT))
        place(seq, max(lastx[s_] + 1, 108 * s_), lastw[s_] - 1)

    class Q2:
        def __init__(self):
            self.q = []
        def issue(self, tag, t):
            self.q.append((tag, t))
        def need(self, tags, now, told):
            idx = [n for n, (tg, _) in enumerate(self.q) if tg in tags]
            if not idx:
                return None
            n = len(self.q) - 1 - idx[-1]
            young = sum(1 for _, t in self.q if now - t < told)
            n = min(n, young, 15)
            self.q = self.q[len(self.q) - n:] if n else []
            return n

    q = Q2()
    text = {}
    for p in range(gbar(1) + 1, 108 * (NS - 1)):
        out = []
        s_, idx = p // 108, p % 108
        tau, i, k = MF[idx]
        n = q.need({("W", s_, tau, k), ("X", s_, i, k)}, p, TOLD)
        if n is not None:
            out.append("    s_waitcnt lgkmcnt(%d)" % n)
        ac = vr(ACC(tau, i))
        out.append("    v_mfma_f32_16x16x32_bf16 %s, %s, %s, %s" % (ac, vr(wslot(s_, tau, k)), vr(XR(i, k)), ac))
        if p in bars:
            if q.q:
                out.append("    s_waitcnt lgkmcnt(0)")
                q.q = []
            out.append("    s_barrier")
            if (s_ % 2) == 0:
                out.append("    s_cbranch_scc1 L_epi")
        for it_ in gap.get(p, []):
            out.append("    " + it_[1])
            if it_[0] == "l":
                q.issue(it_[2], p)
        text[p] = out
    b1 = [l for p in range(216, 432) for l in text[p]]
    b2 = [l for p in range(432, 648) for l in text[p]]
    assert b1 == b2
    seen = set()
    for p in range(gbar(2) + 1, 216):
        for it_ in gap.get(p, []):
            assert it_[0] == "l" and it_[2][1] == 2, it_
            if opt.p3 and it_[2][0] == "X":
                nv = {2: 6, 3: 4, 0: 2, 1: 0}[it_[2][2]]
                if not seen or nv < min(seen):
                    a("s_waitcnt vmcnt(%d)" % nv)
                seen.add(nv)
            a(it_[1])
    if opt.p3:
        assert 0 in seen
    if opt.rot:
        R_ = opt.rot
        assert len(text[216 + R_ - 1]) == 1 and len(text[216 + R_]) == 1, (text[216 + R_ - 1], text[216 + R_])
        a("s_branch L_entry")
        for _ in range(opt.lpad):
            a("s_nop 0")
        a.label("L_loop")
        a.lines += [l for p in range(216 + R_, 432) for l in text[p]]
        a.label("L_entry")
        a.lines += [l for p in range(216, 216 + R_) for l in text[p]]
    else:
        a.label("L_loop")
        a.lines += b1
    a("s_branch L_loop")
    a.lines += csetup_lines
    a.lines.append("@PADEPI")

    a.label("L_epi")
    probe("epi", 30)
    a.c("rest of stage 16, then stage 17 pair by pair with the epilogue of finished tiles interleaved")
    E = 242
    SL, SN = 2, 3
    PORD = [(0, 2), (0, 3), (0, 1), (0, 0)] + [(p, i) for p in (1, 2, 3) for i in ((0, 1, 2, 3) if p % 2 else (3, 2, 1, 0))] + [(4, 1), (4, 0)]
    un = []
    for n, (p, i) in enumerate(PORD):
        t2 = [(2 * p, i), (2 * p + 1, i)]
        un += t2 if n % 2 == 0 else t2[::-1]
    M17 = expand(un)
    LEAD = opt.lead
    skel = [("m", SL) + MF[idx] for idx in range(108 - BP, 108)]
    skel += [("m", SN) + m for m in M17[:6 * LEAD]]
    for n, (p, i) in enumerate(PORD):
        ms = [("m", SN) + m for m in M17[6 * (n + LEAD):6 * (n + LEAD + 1)]]
        A_, B_ = ACC(2 * p, i), ACC(2 * p + 1, i)
        v = []
        for acc, tau in ((A_, 2 * p), (B_, 2 * p + 1)):
            for h in range(2):
                v.append(("fma", acc + 2 * h, tau, h))
        ex = [("t", "v_exp_f32_e64 v%d, -v%d" % (E + 4 * k + r, acc + r)) for k, acc in enumerate((A_, B_)) for r in range(4)]
        den = [("v", "v_pk_fma_f32 v[%d:%d], v[%d:%d], s[%d:%d], s[%d:%d]" % (
            E + 2 * k, E + 2 * k + 1, E + 2 * k, E + 2 * k + 1, S_L2E, S_L2E + 1, S_L2E, S_L2E + 1)) for k in range(4)]
        rc = [("t", "v_rcp_f32 v%d, v%d" % (E + k, E + k)) for k in range(8)]
        mul = [("v", "v_pk_mul_f32 v[%d:%d], v[%d:%d], v[%d:%d]" % (
            E + 4 * k + 2 * h, E + 4 * k + 2 * h + 1, acc + 2 * h, acc + 2 * h + 1, E + 4 * k + 2 * h, E + 4 * k + 2 * h + 1))
            for k, acc in enumerate((A_, B_)) for h in range(2)]
        so, imm = (S_OUT + i, 64 * p) if p < 4 else (S_OUT + 4 + i, 0)
        fin = [("v", "v_cvt_pk_bf16_f32 v%d, v%d, v%d" % (A_ + 0, E + 0, E + 1)),
               ("v", "v_cvt_pk_bf16_f32 v%d, v%d, v%d" % (A_ + 2, E + 4, E + 5)),
               ("v", "v_cvt_pk_bf16_f32 v%d, v%d, v%d" % (A_ + 1, E + 2, E + 3)),
               ("v", "v_cvt_pk_bf16_f32 v%d, v%d, v%d" % (A_ + 3, E + 6, E + 7)),
               ("v", "s_nop 0"),
               ("v", "v_permlane16_swap_b32 v%d, v%d" % (A_ + 0, A_ + 2)),
               ("v", "v_permlane16_swap_b32 v%d, v%d" % (A_ + 1, A_ + 3))]
        if opt.stamp and n in (0, 2, 6, 10, 14, 17):
            k_ = (0, 2, 6, 10, 14, 17).index(n)
            fin.append(("stamp", "s_memtime s[%d:%d]" % (86 + 2 * k_, 87 + 2 * k_)))
        fin.append(("v", "buffer_store_dwordx4 %s, v%d, s[28:31], s%d offen offset:%d %s" % (vr(A_), V_OUT, so, imm, opt.stflag if n < opt.nwt else "")))

        def weave(tr, mm):
            r = []
            pos = [0, 3, 6][:len(mm)] if opt.weave == 0 else [0, 2, 4][:len(mm)]
            for j, t_ in enumerate(tr):
                if j in pos:
                    r.append(mm[pos.index(j)])
                r.append(t_)
            return r
        skel += v + weave(ex, ms[:3]) + den + weave(rc, ms[3:]) + mul + [("free", B_)] + fin
        if n + LEAD == 17:
            skel.append(("mend",))
    res_first, res_last = {}, {}
    for j, it_ in enumerate(skel):
        tags = []
        if it_[0] == "m":
            tags = [("W", it_[1], it_[2], it_[4]), ("X", it_[1], it_[3], it_[4])]
        elif it_[0] == "fma":
            tags = [("S", it_[2]), ("T", it_[2])]
        for tg in tags:
            res_first.setdefault(tg, j); res_last[tg] = j
    reg = {}
    busy = set()
    for tg in res_first:
        if tg[0] == "W" and tg[1] == SL:
            reg[tg] = wslot(SL, tg[2], tg[3]); busy.add(reg[tg])
    pool = [r for r in range(WR, WR + 48, 4) if r not in busy] + [252]
    todo = sorted([tg for tg in res_first if not (tg[0] in "WX" and tg[1] == SL)], key=lambda tg: res_first[tg])
    subq = []
    q = Q2()
    now = 0
    count = 0
    acc_w = {}

    def em(ins, cyc, ws=1):
        nonlocal now, count
        a(ins); now += cyc; count += ws

    def try_load(j):
        if not subq:
            for tg in todo[:8]:
                if tg[0] == "X":
                    if res_last.get(("X", SL, tg[2], tg[3]), -1) <= j:
                        subq.append((x_ins(SN, tg[2], tg[3]), tg)); todo.remove(tg); break
                else:
                    if pool:
                        r = pool.pop(0); reg[tg] = r
                        if tg[0] == "W":
                            subq.extend((w_ins(r, tg[2], tg[3], h), tg) for h in range(2))
                        else:
                            subq.append(("ds_read_b128 %s, v%d offset:%d" % (vr(r), V_PAR, tg[1] * 128 + (64 if tg[0] == "T" else 0)), tg))
                        todo.remove(tg)
                    elif any(t2[0] == "X" for t2 in todo[:8]):
                        continue
                    break
        if subq:
            ins, tg = subq.pop(0)
            em(ins, 4)
            q.issue(tg, now)
            return True
        return False

    def need(tags, j):
        for tg in tags:
            while tg in todo or any(t2 == tg for _, t2 in subq):
                print("; tail: forced load of", tg, file=sys.stderr)
                assert try_load(j - 1), tg
            for t2, t_ in q.q:
                if t2 == tg and now - t_ < 120:
                    print("; tail: short latency", tg, now - t_, file=sys.stderr)
        n = q.need(set(tags), now, 150)
        if n is not None:
            em("s_waitcnt lgkmcnt(%d)" % n, 4)

    for j, it_ in enumerate(skel):
        kind = it_[0]
        if kind == "m":
            _, s_, tau, i, k = it_
            need([("W", s_, tau, k), ("X", s_, i, k)], j)
            ac = ACC(tau, i)
            nxt = skel[j + 1][0]
            em("v_mfma_f32_16x16x32_bf16 %s, %s, %s, %s" % (vr(ac), vr(reg[("W", s_, tau, k)]), vr(XR(i, k)), vr(ac)), 12 if nxt == "m" else 8)
            acc_w[ac] = count
            if res_last[("W", s_, tau, k)] == j:
                pool.append(reg[("W", s_, tau, k)])
            if not try_load(j) and nxt == "m":
                now += 4
            elif nxt != "m" and opt.ld2 and subq:
                try_load(j)
        elif kind == "fma":
            _, r, tau, h = it_
            need([("S", tau), ("T", tau)], j)
            d = count - acc_w.get(r & ~3, -100)
            if d < 9:
                em("s_nop %d" % (8 - d), 4 * (9 - d), 9 - d)
            S_, T_ = reg[("S", tau)] + 2 * h, reg[("T", tau)] + 2 * h
            em("v_pk_fma_f32 v[%d:%d], v[%d:%d], v[%d:%d], v[%d:%d]" % (r, r + 1, r, r + 1, S_, S_ + 1, T_, T_ + 1), 4)
            if res_last[("S", tau)] == j:
                pool.extend([reg[("S", tau)], reg[("T", tau)]])
        elif kind == "t":
            assert not any(tg[0] == "X" for tg in todo) and not any(tg[0] == "X" for _, tg in subq)
            em(it_[1], 8)
        elif kind == "free":
            pool.append(it_[1])
        elif kind == "mend":
            if opt.stamp:
                a("s_waitcnt lgkmcnt(0)")
                q.q = []
            stampc(6)
            stamp(3)
        elif kind == "stamp":
            a("s_waitcnt lgkmcnt(0)")
            a(it_[1])
            a("s_waitcnt lgkmcnt(0)")
            q.q = []
        else:
            em(it_[1], 4)
    assert not todo and not subq
    probe("end", 40)
    if opt.stamp:
        a("s_waitcnt vmcnt(0)")
        stamp(4)
        a("s_waitcnt lgkmcnt(0)")
        a("s_mov_b32 s32, s18")
        a("s_and_b32 s33, s19, 0xffff")
        a("s_mov_b32 s34, 0x100000")
        a("s_mov_b32 s35, 0x20000")
        a("s_lshl_b32 s36, s2, 3")
        a("s_add_u32 s36, s36, s%d" % S_J)
        a("s_lshl_b32 s36, s36, 6")
        a("s_getreg_b32 s84, hwreg(HW_REG_HW_ID)")
        a("s_getreg_b32 s85, hwreg(HW_REG_XCC_ID)")
        for k in range(16):
            a("v_mov_b32 v%d, s%d" % (k, 70 + k))
        a("v_mov_b32 v16, 0")
        a("s_mov_b64 exec, 1")
        for k in range(4):
            a("buffer_store_dwordx4 v[%d:%d], v16, s[32:35], s36 offen offset:%d" % (4 * k, 4 * k + 3, 16 * k))
        a("s_memtime s[98:99]")
        a("s_waitcnt lgkmcnt(0)")
        a("v_mov_b32 v20, s82")
        for k in range(7):
            a("v_mov_b32 v%d, s%d" % (21 + k, 86 + 2 * k))
        a("s_add_u32 s36, s36, 0x80000")
        for k in range(2):
            a("buffer_store_dwordx4 v[%d:%d], v16, s[32:35], s36 offen offset:%d" % (20 + 4 * k, 23 + 4 * k, 16 * k))
    a.label("L_last")
    a("s_endpgm")

    if opt.touch:
        insert_nodes(a, dict([(k, "R_N_%d" % k if opt.t0 == 0 else "L_t0ret") for k in range(1, 5)] + [(k, "L_tret" if opt.contig else "L_lwait") for k in range(5, 12)]))
    else:
        resolve_pads(a)
    out = HEADER
    out += "; @launch grid=(256,1,1) block=(512,1,1) lds=%d\n" % LDS_BYTES
    out += '.amdgcn_target "amdgcn-amd-amdhsa--gfx950"\n.text\n.globl %s\n.p2align 12\n.p2align 8\n.type %s,@function\n' % (KNAME, KNAME)
    out += a.text()
    out += """.section .rodata,"a"
.p2align 6
.amdhsa_kernel %s
  .amdhsa_next_free_vgpr 256
  .amdhsa_next_free_sgpr 102
  .amdhsa_accum_offset 256
  .amdhsa_group_segment_fixed_size 0
  .amdhsa_kernarg_size 72
  .amdhsa_user_sgpr_count 2
  .amdhsa_user_sgpr_kernarg_segment_ptr 1
  .amdhsa_system_sgpr_workgroup_id_x 1
  .amdhsa_float_denorm_mode_32 3
.end_amdhsa_kernel
""" % KNAME
    return out


if __name__ == "__main__":
    ap = argparse.ArgumentParser()
    ap.add_argument("-o", default="standalone__batchnorm__sampling.s")
    ap.add_argument("--prio", type=int, default=3)
    ap.add_argument("--stamp", action="store_true")
    ap.add_argument("--stflag", default="sc1")
    ap.add_argument("--bp", type=int, default=20)
    ap.add_argument("--marg", type=int, default=9)
    ap.add_argument("--quiet", type=int, default=7)
    ap.add_argument("--told", type=int, default=10)
    ap.add_argument("--lead", type=int, default=2)
    ap.add_argument("--weave", type=int, default=1)
    ap.add_argument("--probe", default="")
    ap.add_argument("--lalign", type=int, default=16)
    ap.add_argument("--rot", type=int, default=0)
    ap.add_argument("--lpad", type=int, default=0)
    ap.add_argument("--lprio", type=int, default=3)
    ap.add_argument("--p3", type=int, default=1)
    ap.add_argument("--ld2", type=int, default=0)
    ap.add_argument("--contig", type=int, default=1)
    ap.add_argument("--swap", type=int, default=0)
    ap.add_argument("--t0", type=int, default=1)
    ap.add_argument("--l2c", type=int, default=0)
    ap.add_argument("--xg", type=lambda x: [int(c) for c in x], default=[0, 2, 3, 4])
    ap.add_argument("--touch", type=int, default=1)
    ap.add_argument("--lnodes", default="0,16,33,50")
    ap.add_argument("--enodes", default="1,5,9,13,16")
    ap.add_argument("--eorder", type=int, default=0)
    ap.add_argument("--nwt", type=int, default=18)
    ap.add_argument("--early", type=int, default=0)
    ap.add_argument("--estart", type=int, default=60)
    ap.add_argument("--align", type=int, default=0)
    opt = ap.parse_args()
    open(opt.o, "w").write(gen(opt))
```

```python
import sys
import argparse

KNAME = "standalone__batchnorm__sampling_kernel"

HEADER = """; Kernarg layout for this problem (72 bytes, ptrs only, base s[0:1]):
"""

DOC = """; ---------------------------------------------------------------------------------------------
; ---------------------------------------------------------------------------------------------
"""

XBYTES = 1024 * 16 * 576 * 2
WBYTES = 3 * 576 * 576 * 2
ROWB = 1152
TAPB = 576 * 1152

XBLK = 17 * 128
XBUFB = 16 * XBLK
WRING = 2 * XBUFB + 128
WKS = 10240
WSTAGE = 3 * WKS
PARAM = WRING + 3 * WSTAGE
LDS_BYTES = PARAM + 1280

LOG2E = 0x3FB8AA3B


class Asm:
    def __init__(self):
        self.lines = []

    def __call__(self, s):
        self.lines.append("    " + s)

    def label(self, l):
        self.lines.append(l + ":")

    def c(self, s):
        self.lines.append("    ; " + s)

    def text(self):
        return "\n".join(self.lines) + "\n"


class LdsQ:
    def __init__(self):
        self.q = []

    def issue(self, tag):
        self.q.append(tag)

    def wait(self, tag):
        idx = [i for i, t in enumerate(self.q) if t == tag]
        if not idx:
            return None
        n = min(len(self.q) - 1 - idx[-1], 15)
        self.q = self.q[len(self.q) - n:] if n else []
        return n

    def drain(self):
        had = bool(self.q)
        self.q = []
        return had


def vr(b, n=4):
    return "v[%d:%d]" % (b, b + n - 1)


def sizes_of(lines):
    import subprocess, re, os
    src = '.amdgcn_target "amdgcn-amd-amdhsa--gfx950"\n.text\n' + "\n".join(lines) + "\n" + "".join("N_%d:\n" % k for k in range(1, 14))
    open("_sz.s", "w").write(src)
    r = subprocess.run(["clang", "-x", "assembler", "-target", "amdgcn-amd-amdhsa", "-mcpu=gfx950", "-c", "_sz.s", "-o", "_sz.o"], capture_output=True, text=True)
    assert r.returncode == 0, r.stderr
    d = subprocess.run(["llvm-objdump", "-d", "--mcpu=gfx950", "_sz.o"], capture_output=True, text=True).stdout
    sz = [len(m.group(1).split()) * 4 for m in re.finditer(r"// [0-9A-F]{12}: ((?:[0-9A-F]{8} ?)+)", d)]
    out = []
    k = 0
    for l in lines:
        t = l.strip()
        if not t or t.startswith(";") or t.endswith(":"):
            out.append(0)
        else:
            assert not t.startswith("."), t
            out.append(sz[k])
            k += 1
    assert k == len(sz)
    return out


def resolve_pads(a):
    lines = [l for l in a.lines]
    sz = sizes_of([l if not l.startswith("@") else "" for l in lines])
    out = []
    addr = 0
    epi = None
    for l, n in zip(lines, sz):
        if l.startswith("@PAD "):
            tgt = int(l.split()[1])
            if addr > tgt:
                tgt = (addr + 63) // 64 * 64
            a.base1 = tgt
        elif l == "@NODE1":
            continue
        elif l == "@PADEPI":
            addr_n = addr + 16
            tgt = (addr_n + 4095) // 4096 * 4096 - 16
            epi = tgt + 16
        else:
            out.append(l); addr += n
            continue
        while addr < tgt:
            out.append("    s_endpgm"); addr += 4
    a.lines = out
    return epi


def insert_nodes(a, rets):
    epi = resolve_pads(a)
    target = {k: a.base1 + 1024 * (k - 1) for k in range(1, 5)}
    sz = sizes_of(a.lines)
    L = a.lines
    new = []
    addr = 0
    k = 1
    i = 0
    while i < len(L) and addr < epi:
        if k <= 4 and addr >= target[k] and sz[i]:
            cand = []
            ad, j = addr, i
            while j < len(L) and ad <= target[k] + 60:
                if sz[j]:
                    cand.append(j)
                ad += sz[j]
                j += 1
            pick = cand[0]
            for j in (cand if k > 1 else []):
                prev = [x for x in range(j - 1, -1, -1) if sz[x]][:1]
                if "v_mfma" in L[j] and "v_mfma" in L[prev[0]]:
                    pick = j
                    break
            while i < pick:
                new.append(L[i]); addr += sz[i]; i += 1
            if k == 1:
                assert new[-1] == "L_cgo:"
                dist = 0
                jj = i
                while L[jj] != "L_loop:":
                    dist += sz[jj]; jj += 1
                npad = 0
                if LALIGN >= 0:
                    npad = ((LALIGN - (addr + 4 + dist)) % 64) // 4
                new[-1:] = ["N_1:", "    s_branch %s" % rets[k]] + ["    s_endpgm"] * npad + ["L_cgo:"]
                addr += 4 * npad
                drop = npad
            else:
                new.append("N_%d:" % k)
                new.append("    s_cbranch_execz %s" % rets[k])
            addr += 4
            k += 1
            continue
        new.append(L[i]); addr += sz[i]; i += 1
    while L[i] != "L_epi:":
        assert L[i].strip() == "s_endpgm", L[i]
        i += 1
    assert k == 5 and addr == epi, (k, addr, epi)
    if CONTIG:
        new.append("N_5:")
        new.append("    s_branch %s" % rets[5])
        addr += 4
        k = 6
        while i < len(L):
            tg = epi + 1024 * (k - 5)
            if k in rets and addr >= tg and sz[i]:
                cand = []
                ad, j = addr, i
                while j < len(L) and ad <= tg + 60:
                    if sz[j]:
                        cand.append(j)
                    ad += sz[j]
                    j += 1
                pick, repl = cand[0], False
                for j in cand:
                    prev = [x for x in range(j - 1, -1, -1) if sz[x]][0]
                    if L[j].strip() == "s_nop 0" and "cvt_pk" in L[prev]:
                        pick, repl = j, True
                        break
                else:
                    for j in cand:
                        prev = [x for x in range(j - 1, -1, -1) if sz[x]][0]
                        if "v_exp" in L[prev] or "v_rcp" in L[prev]:
                            pick = j
                            break
                while i < pick:
                    new.append(L[i]); addr += sz[i]; i += 1
                new.append("N_%d:" % k)
                new.append("    s_cbranch_execz %s" % rets[k])
                addr += 4
                if repl:
                    i += 1
                k += 1
                continue
            new.append(L[i]); addr += sz[i]; i += 1
        if addr > epi + 1024 * (k - 5):
            print("; WARNING: code past the last touch window", file=sys.stderr)
        for kk in range(k, max(rets) + 1):
            new = [l.replace(" N_%d" % kk, " " + rets[kk]) if l.endswith(" N_%d" % kk) else l for l in new]
        a.lines = new
        return
    seg = epi
    new.append("N_5:")
    new.append("    s_branch %s" % rets[5])
    addr += 4
    k = 6
    while i < len(L):
        ad, j = addr, i
        best_s = best_m = None
        while j < len(L) and ad + sz[j] + 4 <= seg + 1024:
            ad += sz[j]
            if "buffer_store" in L[j]:
                best_s = (j + 1, ad)
            if "v_mfma" in L[j]:
                best_m = (j + 1, ad)
            j += 1
        if j == len(L):
            new += L[i:]
            addr = ad
            break
        cut = best_s if best_s and (not best_m or best_s[1] > best_m[1] - 200) else best_m
        if k not in rets:
            print("; WARNING: code past the last touch node", file=sys.stderr)
            new += L[i:]
            break
        new += L[i:cut[0]]
        i, addr = cut
        new.append("    s_branch L_seg%d" % k)
        addr += 4
        seg = seg + 1344 if (seg % 4096) < 2688 else (seg // 4096 + 1) * 4096
        while addr < seg:
            new.append("    s_endpgm"); addr += 4
        new.append("N_%d:" % k)
        new.append("    s_branch %s" % rets[k])
        new.append("L_seg%d:" % k)
        addr += 4
        k += 1
    for kk in range(k, max(rets) + 1):
        new = [l.replace(" N_%d" % kk, " " + rets[kk]) if l.endswith(" N_%d" % kk) else l for l in new]
    a.lines = new
    a.end_addr = addr
    a.last_seg = seg


opt_tight = False
CONTIG = False
LALIGN = -1


def gen(opt):
    global CONTIG, LALIGN
    CONTIG = bool(opt.contig)
    LALIGN = opt.lalign
    a = Asm()

    def ACC(tau, i):
        return (tau * 4 + i) * 4 if tau < 8 else 128 + ((tau - 8) * 2 + i) * 4

    XR0 = 144
    WR = 192
    V_WE, V_WO, V_WLE, V_WLO = 240, 241, 242, 243
    V_XA = 244
    V_PAR, V_OUT, V_LANE, V_XD = 250, 251, 252, 253
    V_T0, V_T1, V_T2, V_T3 = 148, 149, 150, 151
    V_WA, V_W4, V_ST = 10, 11, 40

    S_WAVE, S_ROW, S_COL, S_ODD = 48, 49, 50, 57
    S_J, S_XB, S_T2 = 51, 52, 53
    S_WS, S_CNT, S_SOFF = 54, 55, 56
    S_L2E = 58
    S_XT = 63
    S_OUT = 64
    S_WL, S_WG, S_WL0, S_WL1 = 36, 37, 38, 39
    S_EAL, S_EAG, S_EBL, S_EBG = 40, 41, 42, 43
    S_S = 44

    def stamp(idx):
        if opt.stamp:
            a("s_memrealtime s[%d:%d]" % (70 + 2 * idx, 71 + 2 * idx))

    def stampc(idx):
        if opt.stamp:
            a("s_memtime s[%d:%d]" % (70 + 2 * idx, 71 + 2 * idx))

    def lstamp():
        if opt.stamp:
            a("s_memtime s[90:91]")
            a("s_memrealtime s[92:93]")
            a("s_waitcnt lgkmcnt(0)")
            a("s_mov_b32 m0, s94")
            a("s_nop 0")
            a("v_writelane_b32 v%d, s90, m0" % V_ST)
            a("v_writelane_b32 v%d, s92, m0" % (V_ST + 1))
            a("s_add_u32 s94, s94, 1")

    def probe(name, t):
        if opt.probe == name:
            a("s_waitcnt lgkmcnt(0)")
            a("s_add_u32 s72, s70, %d" % (t * 100))
            a.label("L_sp")
            a("s_memrealtime s[74:75]")
            a("s_waitcnt lgkmcnt(0)")
            a("s_sub_u32 s73, s72, s74")
            a("s_cmp_gt_i32 s73, 0")
            a("s_cbranch_scc1 L_sp")

    a.label(KNAME)
    if opt.probe:
        a("s_memrealtime s[70:71]")
    stamp(0)
    a("s_load_dwordx8 s[4:11], s[0:1], 0")
    a("s_load_dwordx4 s[12:15], s[0:1], 32")
    a("s_load_dwordx2 s[16:17], s[0:1], 48")
    if opt.stamp:
        a("s_load_dwordx2 s[18:19], s[0:1], 64")
    a("v_lshrrev_b32 v1, 6, v0")
    a("v_and_b32 v%d, 63, v0" % V_LANE)
    a("s_cmp_ge_u32 s2, 256")
    a("s_cbranch_scc1 L_end")
    a("v_readfirstlane_b32 s%d, v1" % S_WAVE)
    a("s_and_b32 s%d, s2, 7" % S_ROW)
    a("s_lshr_b32 s%d, s2, 5" % S_T2)
    a("s_lshl3_add_u32 s%d, s%d, s%d" % (S_ROW, S_ROW, S_T2))
    a("s_bfe_u32 s%d, s2, 0x20003" % S_COL)
    a("s_and_b32 s%d, s%d, 1" % (S_ODD, S_COL))
    a("s_mulk_i32 s%d, 288" % S_COL)
    a("s_lshl_b32 s%d, s%d, 5" % (S_T2, S_ODD))
    a("s_sub_u32 s%d, s%d, s%d" % (S_COL, S_COL, S_T2))
    a("s_and_b32 s%d, s%d, 3" % (S_J, S_WAVE))
    a("s_lshl2_add_u32 s%d, s%d, s%d" % (S_SOFF, S_ROW, S_J))
    a("s_mul_i32 s%d, s%d, %d" % (S_SOFF, S_SOFF, 64 * ROWB))
    a("s_mul_i32 s%d, s%d, %d" % (S_XB, S_J, 4 * XBLK))
    a("s_mov_b32 s22, %d" % XBYTES)
    a("s_mov_b32 s23, 0x20000")
    a("v_lshrrev_b32 v%d, 3, v%d" % (V_T0, V_LANE))
    a("v_and_b32 v%d, 7, v%d" % (V_T1, V_LANE))
    a("v_and_b32 v%d, 6, v%d" % (V_T2, V_T0))
    a("v_xor_b32 v%d, v%d, v%d" % (V_T2, V_T1, V_T2))
    a("v_mul_u32_u24 v%d, %d, v%d" % (V_XD, ROWB, V_T0))
    a("v_lshl_add_u32 v%d, v%d, 4, v%d" % (V_XD, V_T2, V_XD))
    a(("s_cmp_lt_u32 s%d, 4" if opt.swap else "s_cmp_ge_u32 s%d, 4") % S_WAVE)
    a("s_cbranch_scc1 L_loader")

    def touch(nodes, ret, ex=True):
        if ex:
            a("s_mov_b64 exec, 0")
        for k, nd in enumerate(nodes[:-1]):
            a("s_cmp_eq_u32 s%d, %d" % (S_J, k))
            a("s_cbranch_scc1 %s" % nd)
        a("s_branch %s" % nodes[-1])
        if ret:
            a.label(ret)
            if ex:
                a("s_mov_b64 exec, -1")

    NODE_RET = {}

    def x4(sg):
        for n in range(4):
            a("buffer_load_dwordx4 v%d, s[20:23], s%d offen lds" % (V_XD, sg))
            if n < 3:
                a("s_addk_i32 m0, %d" % (1024 if n % 2 == 0 else XBLK - 1024))
                a("s_addk_i32 s%d, %d" % (sg, 8 * ROWB))

    def touch1(j, node, ex=True):
        if not opt.touch:
            return
        a("s_cmp_lg_u32 s%d, %d" % (S_J, j))
        a("s_cbranch_scc1 R2_%s" % node)
        if ex:
            a("s_mov_b64 exec, 0")
        a("s_branch %s" % node)
        a.label("R_%s" % node)
        if ex:
            a("s_mov_b64 exec, -1")
        a.label("R2_%s" % node)

    a("s_setprio 2")
    if opt.t0 == 0:
        touch1(0, "N_4")
    elif opt.touch:
        touch(["N_4", "N_3", "N_2", "N_1"], "L_t0ret")
    a.c("compute wave: DMA own X rows, chunk 0 (logical row tiles 0,1 = physical 2*odd.., then the other two)")
    a("s_mul_i32 s60, s%d, %d" % (S_ODD, 32 * ROWB))
    a("s_xor_b32 s62, s60, %d" % (32 * ROWB))
    a("s_add_u32 s%d, s%d, s62" % (S_T2, S_SOFF))
    a("s_add_u32 m0, s%d, %d" % (S_XB, 128 + 2 * XBLK))
    a("s_waitcnt lgkmcnt(0)")
    a("s_mov_b64 s[20:21], s[4:5]")
    x4(S_T2)
    a("s_addk_i32 m0, %d" % (-(3 * XBLK + 1024)))
    a("s_add_u32 s61, s%d, s60" % S_SOFF)
    x4(61)
    a("s_branch L_csetup")

    a.label("L_loader")
    a.c("loader j: sub-piece j of each 16-row unit of W (+ share of sub-piece 4), X rows of compute wave j")
    a("s_setprio %d" % opt.lprio)
    a("s_mov_b32 s26, %d" % WBYTES)
    a("s_mov_b32 s27, 0x20000")
    a("s_movk_i32 s60, 0x34")
    a("s_movk_i32 s61, %d" % ROWB)
    a("s_lshl_b32 s62, s%d, 2" % S_ODD)
    a("s_lshl_b32 s%d, s%d, 6" % (S_T2, S_J))
    for dst, first in ((V_WA, True), (V_W4, False)):
        if first:
            a("v_add_u32 v1, s%d, v%d" % (S_T2, V_LANE))
        else:
            a("v_add_u32 v1, 256, v%d" % V_LANE)
        a("v_mul_u32_u24 v3, 3277, v1")
        a("v_lshrrev_b32 v3, 16, v3")
        a("v_mul_u32_u24 v4, 20, v3")
        a("v_sub_u32 v4, v1, v4")
        a("v_lshrrev_b32 v5, 1, v3")
        a("v_and_b32 v2, 2, v5")
        a("v_xor_b32 v4, v2, v4")
        a("v_add_u32 v4, s62, v4")
        a("v_subrev_u32 v2, 20, v4")
        a("v_min_u32 v4, v4, v2")
        a("v_and_b32 v5, 6, v5")
        a("v_bfe_i32 v5, s60, v5, 2")
        a("v_lshl_add_u32 v3, v5, 2, v3")
        a("v_lshlrev_b32 v4, 4, v4")
        a("v_mad_u32_u24 v%d, v3, s61, v4" % dst)
    a("s_lshl_b32 s62, s%d, 10" % S_J)
    a("s_add_u32 s%d, s62, %d" % (S_WL0, WRING))
    a("s_add_u32 s%d, s%d, %d" % (S_WL1, S_WL0, 3 * WSTAGE))
    a("s_mov_b32 s%d, s%d" % (S_WL, S_WL0))
    a("s_mov_b32 s%d, s%d" % (S_WG, S_COL))
    a("s_lshl_b32 s%d, s%d, 12" % (S_EAL, S_J))
    a("s_addk_i32 s%d, 4096" % S_EAL)
    a("s_and_b32 s%d, s%d, 1" % (S_T2, S_J))
    a("s_mul_i32 s%d, s%d, %d" % (S_EBG, S_T2, 16 * ROWB))
    a("s_lshr_b32 s%d, s%d, 1" % (S_EAG, S_J))
    a("s_mul_i32 s%d, s%d, %d" % (S_EAG, S_EAG, TAPB))
    a("s_add_u32 s%d, s%d, s%d" % (S_EAG, S_EAG, S_EBG))
    a("s_add_u32 s%d, s%d, %d" % (S_EBG, S_EBG, 2 * TAPB))
    a("s_mulk_i32 s%d, 5120" % S_T2)
    a("s_addk_i32 s%d, %d" % (S_T2, 4 * 5120 + 4096))
    a("s_sub_u32 s%d, s%d, s62" % (S_EBL, S_T2))
    a("s_mov_b32 s%d, -2" % S_S)
    a("s_cmp_lt_u32 s%d, 2" % S_J)
    a("s_cselect_b64 s[46:47], -1, 1")
    a("s_waitcnt lgkmcnt(0)")
    a("s_mov_b64 s[24:25], s[6:7]")
    a("s_mov_b64 s[20:21], s[4:5]")
    if opt.stamp:
        a("v_mov_b32 v%d, 0" % V_ST)
        a("v_mov_b32 v%d, s70" % (V_ST + 1))
        a("s_mov_b32 s94, 3")
    a.label("L_lw")
    for u in range(6):
        if u == 0:
            a("s_mov_b32 m0, s%d" % S_WL)
            a("s_mov_b32 s%d, s%d" % (S_T2, S_WG))
        else:
            a("s_addk_i32 m0, 5120")
            if u & 1:
                a("s_addk_i32 s%d, %d" % (S_T2, 16 * ROWB))
            else:
                a("s_add_u32 s%d, s%d, %d" % (S_T2, S_T2, TAPB - 16 * ROWB))
        a("buffer_load_dwordx4 v%d, s[24:27], s%d offen lds" % (V_WA, S_T2))
    for el, eg in ((S_EAL, S_EAG), (S_EBL, S_EBG)):
        if el == S_EBL:
            a("s_mov_b64 exec, s[46:47]")
        a("s_add_u32 m0, s%d, s%d" % (S_WL, el))
        a("s_add_u32 s%d, s%d, s%d" % (S_T2, S_WG, eg))
        a("buffer_load_dwordx4 v%d, s[24:27], s%d offen lds" % (V_W4, S_T2))
    a("s_mov_b64 exec, -1")
    a("s_setprio 0")
    a("s_addk_i32 s%d, %d" % (S_WL, WSTAGE))
    a("s_cmp_eq_u32 s%d, s%d" % (S_WL, S_WL1))
    a("s_cselect_b32 s%d, s%d, s%d" % (S_WL, S_WL0, S_WL))
    a("s_add_u32 s%d, s%d, %d" % (S_WG, S_WG, 32 * ROWB))
    a("s_add_i32 s%d, s%d, 1" % (S_S, S_S))
    a("s_cmp_lt_i32 s%d, 0" % S_S)
    a("s_cbranch_scc1 L_lw")
    a("s_bitcmp1_b32 0x15554, s%d" % S_S)
    a("s_cbranch_scc1 L_ltouch1")
    a.label("L_lwait")
    a("s_waitcnt vmcnt(8)")
    lstamp()
    a("s_barrier")
    lstamp()
    a("s_cmp_eq_u32 s%d, 16" % S_S)
    a("s_cbranch_scc1 L_ltail")
    a("s_and_b32 s60, s%d, 1" % S_S)
    a("s_lshr_b32 s61, s%d, 1" % S_S)
    a("s_add_u32 s61, s61, 1")
    a("s_mul_i32 s62, s60, %d" % (2 * XBLK))
    a("s_add_u32 s62, s62, s%d" % S_XB)
    a("s_addk_i32 s62, 128")
    a("s_bitcmp1_b32 s61, 0")
    a("s_cselect_b32 s63, %d, 0" % XBUFB)
    a("s_add_u32 m0, s62, s63")
    a("s_xor_b32 s60, s60, s%d" % S_ODD)
    a("s_mul_i32 s60, s60, %d" % (32 * ROWB))
    a("s_lshl_b32 s61, s61, 7")
    a("s_add_u32 s60, s60, s61")
    a("s_add_u32 s60, s60, s%d" % S_SOFF)
    x4(60)
    a("s_branch L_lw")

    a.lines.append("@PAD 1344")
    a.label("L_ltouch1")
    if opt.touch:
        a.c("one instruction-cache touch per stage (each node branches straight back to L_lwait)")
        if opt.contig:
            a("s_mov_b64 exec, 0")
        for k in range(1, 8):
            a("s_cmp_eq_u32 s%d, %d" % (S_S, 2 + 2 * k))
            a("s_cbranch_scc1 N_%d" % ((12 - k) if opt.contig else (4 + k)))
        if opt.contig:
            a.label("L_tret")
            a("s_mov_b64 exec, -1")
    a("s_cmp_lg_u32 s%d, 2" % S_S)
    a("s_cbranch_scc1 L_lwait")
    a.c("BN parameter loads: logical idx = 64j + lane (<160); physical = (idx + 32*odd) mod 160")
    a("s_lshl_b32 s%d, s%d, 6" % (S_T2, S_J))
    a("v_add_u32 v60, s%d, v%d" % (S_T2, V_LANE))
    a("s_lshl_b32 s%d, s%d, 5" % (S_T2, S_ODD))
    a("v_add_u32 v61, s%d, v60" % S_T2)
    a("v_subrev_u32 v62, 160, v61")
    a("v_min_u32 v61, v61, v62")
    a("v_lshlrev_b32 v61, 1, v61")
    PS = [28, 32, 64, 96]
    for k in range(4):
        a("s_mov_b32 s%d, s%d" % (PS[k], 8 + 2 * k))
        a("s_and_b32 s%d, s%d, 0xffff" % (PS[k] + 1, 9 + 2 * k))
        a("s_movk_i32 s%d, 1152" % (PS[k] + 2))
        a("s_mov_b32 s%d, 0x20000" % (PS[k] + 3))
        a("buffer_load_ushort v%d, v61, s[%d:%d], s%d offen" % (64 + k, PS[k], PS[k] + 3, S_COL))
    a("s_branch L_lwait")

    a.label("L_ltail")
    if opt.l2c:
        a.c("refresh the tail code in L2 (one dword per 128-B line)")
        a("s_getpc_b64 s[60:61]")
        a.label("L_pc3")
        a("s_lshl_b32 s62, s%d, 13" % S_J)
        a("v_lshl_add_u32 v12, v%d, 7, s62" % V_LANE)
        a("v_min_u32 v12, L_last-L_epi, v12")
        a("s_add_u32 s60, s60, L_epi-L_pc3")
        a("s_addc_u32 s61, s61, 0")
        a("v_mov_b32 v13, s61")
        a("v_add_co_u32 v12, vcc, s60, v12")
        a("s_nop 1")
        a("v_addc_co_u32 v13, vcc, 0, v13, vcc")
        a("global_load_dword v14, v[12:13], off")
    a.c("BN parameters: v64=mean v65=var v66=g v67=b (bf16 bits); roundings follow the bf16 reference")
    for k in range(4):
        a("v_lshlrev_b32 v%d, 16, v%d" % (64 + k, 64 + k))
    a("v_add_f32 v65, 0x3727c5ac, v65")
    a("v_cvt_pk_bf16_f32 v65, v65, v65")
    a("v_lshlrev_b32 v65, 16, v65")
    a("v_sqrt_f32 v65, v65")
    a("v_lshrrev_b32 v61, 4, v60")
    a("v_cvt_pk_bf16_f32 v65, v65, v65")
    a("v_lshlrev_b32 v65, 16, v65")
    a("v_rcp_f32 v65, v65")
    a("v_lshlrev_b32 v61, 7, v61")
    a("v_cvt_pk_bf16_f32 v65, v65, v65")
    a("v_lshlrev_b32 v65, 16, v65")
    a("v_mul_f32 v65, v66, v65")
    a("v_cvt_pk_bf16_f32 v65, v65, v65")
    a("v_lshlrev_b32 v65, 16, v65")
    a("v_fma_f32 v67, -v64, v65, v67")
    a("v_mul_f32 v65, 0x%x, v65" % LOG2E)
    a("v_mul_f32 v67, 0x%x, v67" % LOG2E)
    a("v_and_b32 v62, 15, v60")
    a("v_lshl_add_u32 v61, v62, 2, v61")
    a("v_add_u32 v61, %d, v61" % PARAM)
    a("v_cmp_gt_u32 vcc, 160, v60")
    a("s_and_saveexec_b64 s[46:47], vcc")
    a("ds_write_b32 v61, v65")
    a("ds_write_b32 v61, v67 offset:64")
    a("s_mov_b64 exec, s[46:47]")
    a("s_waitcnt vmcnt(0) lgkmcnt(0)")
    lstamp()
    a("s_barrier")
    lstamp()
    if opt.stamp:
        a("s_mov_b32 s32, s18")
        a("s_and_b32 s33, s19, 0xffff")
        a("s_mov_b32 s34, 0x1000000")
        a("s_mov_b32 s35, 0x20000")
        a("s_lshl_b32 s36, s2, 3")
        a("s_add_u32 s36, s36, s%d" % S_J)
        a("s_add_u32 s36, s36, 4")
        a("s_lshl_b32 s36, s36, 9")
        a("s_add_u32 s36, s36, 0x100000")
        a("v_lshlrev_b32 v42, 3, v%d" % V_LANE)
        a("buffer_store_dwordx2 v[%d:%d], v42, s[32:35], s36 offen" % (V_ST, V_ST + 1))
    a.label("L_end")
    a("s_endpgm")

    a.lines.append("@PAD 4096")
    main_lines = a.lines
    a.lines = []
    a.label("L_csetup")
    if opt.t0 == 0:
        touch1(1, "N_3")
    a.c("zero rows: r = 8w + (l>>3), and row 32")
    a("s_lshl_b32 s%d, s%d, 3" % (S_T2, S_J))
    a("v_add_u32 v1, s%d, v%d" % (S_T2, V_T0))
    a("v_mul_u32_u24 v1, %d, v1" % XBLK)
    a("v_lshl_add_u32 v1, v%d, 4, v1" % V_T1)
    a("v_mov_b64 v[4:5], 0")
    a("v_mov_b64 v[6:7], 0")
    a("ds_write_b128 v1, v[4:7]")
    a("v_lshlrev_b32 v2, 4, v%d" % V_T1)
    a("v_add_u32 v2, %d, v2" % (32 * XBLK))
    a("ds_write_b128 v2, v[4:7]")
    a("s_mov_b32 s28, s16")
    a("s_and_b32 s29, s17, 0xffff")
    a("s_mov_b32 s30, s22")
    a("s_mov_b32 s31, 0x20000")
    a("s_mov_b32 s%d, 0x%x" % (S_L2E, LOG2E))
    a("s_mov_b32 s%d, s%d" % (S_L2E + 1, S_L2E))
    a("s_mov_b32 s%d, %d" % (S_XT, XBUFB))
    a("v_lshrrev_b32 v%d, 4, v%d" % (V_T3, V_LANE))
    a("v_and_b32 v%d, 15, v%d" % (V_T2, V_LANE))
    for tap in range(3):
        va = V_XA + tap
        a("v_add_u32 v%d, %d, v%d" % (V_T0, tap + 15, V_T2))
        a("v_and_b32 v%d, 6, v%d" % (V_T0, V_T0))
        a("v_xor_b32 v%d, v%d, v%d" % (V_T0, V_T0, V_T3))
        a("v_lshlrev_b32 v%d, 4, v%d" % (V_T0, V_T0))
        a("v_lshl_add_u32 v%d, v%d, 7, v%d" % (V_T0, V_T2, V_T0))
        if tap:
            a("s_addk_i32 s%d, 128" % S_XB)
        a("v_add_u32 v%d, s%d, v%d" % (va, S_XB, V_T0))
        a("v_xor_b32 v%d, 64, v%d" % (va + 3, va))
    if opt.t0 == 0:
        touch1(2, "N_2")
    a("v_mul_u32_u24 v%d, %d, v%d" % (V_OUT, ROWB, V_T2))
    a("v_lshrrev_b32 v%d, 1, v%d" % (V_T0, V_T3))
    a("v_lshl_add_u32 v%d, v%d, 4, v%d" % (V_OUT, V_T0, V_OUT))
    a("v_and_b32 v%d, 1, v%d" % (V_T1, V_T3))
    a("v_lshl_add_u32 v%d, v%d, 5, v%d" % (V_OUT, V_T1, V_OUT))
    a("v_lshlrev_b32 v%d, 4, v%d" % (V_PAR, V_T3))
    a("v_add_u32 v%d, %d, v%d" % (V_PAR, PARAM, V_PAR))
    a("v_lshlrev_b32 v%d, 4, v%d" % (V_T0, V_T0))
    a("v_lshl_add_u32 v%d, v%d, 2, v%d" % (V_T0, V_T1, V_T0))
    a("v_bfe_u32 v%d, v%d, 2, 2" % (V_T2, V_LANE))
    a("v_add_u32 v%d, v%d, v%d" % (V_T0, V_T0, V_T2))
    a("v_mul_u32_u24 v%d, 320, v%d" % (V_T0, V_T0))
    a("v_and_b32 v%d, 3, v%d" % (V_T2, V_LANE))
    a("v_lshl_add_u32 v%d, v%d, 3, v%d" % (V_T0, V_T2, V_T0))
    a("v_lshlrev_b32 v%d, 5, v%d" % (V_T1, V_T1))
    a("v_add_u32 v%d, v%d, v%d" % (V_WLE, V_T0, V_T1))
    a("v_sub_u32 v%d, v%d, v%d" % (V_WLO, V_T0, V_T1))
    a("s_mov_b32 s%d, %d" % (S_WS, WRING))
    a("v_add_u32 v%d, s%d, v%d" % (V_WE, S_WS, V_WLE))
    a("v_add_u32 v%d, s%d, v%d" % (V_WO, S_WS, V_WLO))
    a("s_add_u32 s%d, s%d, s%d" % (S_SOFF, S_SOFF, S_COL))
    a("s_mul_i32 s60, s%d, %d" % (S_ODD, 32 * ROWB))
    a("s_add_u32 s61, s%d, s60" % S_SOFF)
    a("s_xor_b32 s60, s60, %d" % (32 * ROWB))
    a("s_add_u32 s62, s%d, s60" % S_SOFF)
    a("s_lshl_b32 s60, s%d, 6" % S_ODD)
    a("s_add_u32 s%d, s61, s60" % S_OUT)
    a("s_add_u32 s%d, s%d, %d" % (S_OUT + 1, S_OUT, 16 * ROWB))
    a("s_add_u32 s%d, s62, s60" % (S_OUT + 2))
    a("s_add_u32 s%d, s%d, %d" % (S_OUT + 3, S_OUT + 2, 16 * ROWB))
    a("s_lshl_b32 s60, s%d, 8" % S_ODD)
    a("s_sub_u32 s%d, s61, s60" % (S_OUT + 4))
    a("s_addk_i32 s%d, 256" % (S_OUT + 4))
    a("s_add_u32 s%d, s%d, %d" % (S_OUT + 5, S_OUT + 4, 16 * ROWB))
    for r in range(0, 144, 2):
        if r == 24 and opt.t0 == 0:
            touch1(3, "N_1", False)
        a("v_mov_b64 v[%d:%d], 0" % (r, r + 1))
    a("s_mov_b32 s%d, %d" % (S_CNT, 9))
    a("s_branch L_cgo")
    csetup_lines = a.lines
    a.lines = main_lines
    a.lines.append("@NODE1")
    a.label("L_cgo")
    a("s_waitcnt lgkmcnt(0)" if opt.p3 else "s_waitcnt vmcnt(0) lgkmcnt(0)")
    stamp(1)
    probe("b0", 12)
    a("s_barrier")
    stamp(2)
    stampc(5)
    if opt.stamp:
        a("s_waitcnt lgkmcnt(0)")

    UNITS = [(0, 2), (0, 3), (1, 3), (1, 2), (1, 1), (1, 0), (0, 0), (0, 1), (2, 1), (2, 0), (2, 2), (2, 3)]
    for tau in range(3, 8):
        UNITS += [(tau, i) for i in ((3, 2, 1, 0) if tau % 2 else (0, 1, 2, 3))]
    UNITS += [(8, 0), (8, 1), (9, 1), (9, 0)]

    def expand(units):
        r = []
        for u, (tau, i) in enumerate(units):
            r += [(tau, i, k) for k in ((0, 1, 2) if u % 2 == 0 else (2, 1, 0))]
        return r

    MF = expand(UNITS)
    assert len(MF) == 108
    BP, MARG, QUIET, TOLD = opt.bp, opt.marg, opt.quiet, opt.told
    XR = lambda i, k: XR0 + (i * 3 + k) * 4
    wslot = lambda s, tau, k: WR + ((s * 30 + tau * 3 + k) % 12) * 4
    gbar = lambda s: 108 * s - BP - 1

    def w_ins(reg, tau, k, h):
        return "ds_read_b64_tr_b16 v[%d:%d], v%d offset:%d" % (reg + 2 * h, reg + 2 * h + 1, V_WE if tau % 2 == 0 else V_WO, k * WKS + h * 2560 + tau * 32)

    def x_ins(s, i, k):
        return "ds_read_b128 %s, v%d offset:%d" % (vr(XR(i, k)), V_XA + (s % 2) * 3 + k, i * XBLK)

    wfirst, wlast, xfirst, xlast = {}, {}, {}, {}
    for idx, (tau, i, k) in enumerate(MF):
        wfirst.setdefault((tau, k), idx); wlast[(tau, k)] = idx
        xfirst.setdefault((i, k), idx); xlast[(i, k)] = idx
    NS = 8
    ops = []
    for s_ in range(1, NS):
        for tau in range(10):
            for k in range(3):
                n = s_ * 30 + tau * 3 + k - 12
                ps, pt, pk_ = n // 30, (n % 30) // 3, n % 3
                e = max(gbar(s_) + 1, 108 * ps + wlast[(pt, pk_)])
                d = min(108 * s_ + wfirst[(tau, k)] - MARG, gbar(s_ + 1) - QUIET)
                for h in range(2):
                    ops.append([e, d, w_ins(wslot(s_, tau, k), tau, k, h), ("W", s_, tau, k)])
        for i in range(4):
            for k in range(3):
                e = max(gbar(s_) + 1, 108 * (s_ - 1) + xlast[(i, k)])
                d = 108 * s_ + xfirst[(i, k)] - MARG
                ops.append([e, d, x_ins(s_, i, k), ("X", s_, i, k)])
    gap = {}
    bars = {gbar(s_) for s_ in range(1, NS + 1)}
    pend = sorted(ops, key=lambda o: (o[1], o[0]))
    late = 0
    lastw, lastx = {}, {}
    for p in range(gbar(1), 108 * NS):
        if p in bars:
            continue
        for o in pend:
            if o[0] <= p:
                gap.setdefault(p, []).append(("l", o[2], o[3]))
                late = max(late, p - o[1])
                (lastw if o[3][0] == "W" else lastx)[o[3][1]] = p
                pend.remove(o)
                break
    assert not pend
    if late > 0:
        print("; worst deadline miss: %d gaps" % late, file=sys.stderr)

    def place(seq, lo, hi):
        free = [p for p in range(lo, hi + 1) if p not in bars and not gap.get(p)]
        slots = [p for p in free for _ in range(2)]
        if len(slots) < len(seq):
            slots = sorted(slots + [p for p in range(lo, hi + 1) if p not in bars and gap.get(p)])
        assert len(slots) >= len(seq), (lo, hi)
        for ins, p in zip(seq, slots):
            gap.setdefault(p, []).append(("i", ins))

    for s_ in range(1, NS - 1):
        assert lastw[s_] < gbar(s_ + 1) - 3
        seq = ["s_addk_i32 s%d, %d" % (S_WS, WSTAGE),
               "s_cmp_eq_u32 s%d, %d" % (S_WS, WRING + 3 * WSTAGE),
               "s_cselect_b32 s%d, %d, s%d" % (S_WS, WRING, S_WS),
               "v_add_u32 v%d, s%d, v%d" % (V_WE, S_WS, V_WLE),
               "v_add_u32 v%d, s%d, v%d" % (V_WO, S_WS, V_WLO)]
        if s_ % 2 == 0:
            seq += ["s_sub_u32 s%d, s%d, 1" % (S_CNT, S_CNT), "s_cmp_eq_u32 s%d, 0" % S_CNT]
        place(seq, lastw[s_] + 1, gbar(s_ + 1) - 1)
        seq = ["v_add_u32 v%d, s%d, v%d" % (V_XA + (s_ % 2) * 3 + k, S_XT, V_XA + (s_ % 2) * 3 + k) for k in range(3)]
        if s_ % 2 == 1:
            seq.append("s_sub_u32 s%d, 0, s%d" % (S_XT, S_XT))
        place(seq, max(lastx[s_] + 1, 108 * s_), lastw[s_] - 1)

    class Q2:
        def __init__(self):
            self.q = []
        def issue(self, tag, t):
            self.q.append((tag, t))
        def need(self, tags, now, told):
            idx = [n for n, (tg, _) in enumerate(self.q) if tg in tags]
            if not idx:
                return None
            n = len(self.q) - 1 - idx[-1]
            young = sum(1 for _, t in self.q if now - t < told)
            n = min(n, young, 15)
            self.q = self.q[len(self.q) - n:] if n else []
            return n

    q = Q2()
    text = {}
    for p in range(gbar(1) + 1, 108 * (NS - 1)):
        out = []
        s_, idx = p // 108, p % 108
        tau, i, k = MF[idx]
        n = q.need({("W", s_, tau, k), ("X", s_, i, k)}, p, TOLD)
        if n is not None:
            out.append("    s_waitcnt lgkmcnt(%d)" % n)
        ac = vr(ACC(tau, i))
        out.append("    v_mfma_f32_16x16x32_bf16 %s, %s, %s, %s" % (ac, vr(wslot(s_, tau, k)), vr(XR(i, k)), ac))
        if p in bars:
            if q.q:
                out.append("    s_waitcnt lgkmcnt(0)")
                q.q = []
            out.append("    s_barrier")
            if (s_ % 2) == 0:
                out.append("    s_cbranch_scc1 L_epi")
        for it_ in gap.get(p, []):
            out.append("    " + it_[1])
            if it_[0] == "l":
                q.issue(it_[2], p)
        text[p] = out
    b1 = [l for p in range(216, 432) for l in text[p]]
    b2 = [l for p in range(432, 648) for l in text[p]]
    assert b1 == b2
    seen = set()
    for p in range(gbar(2) + 1, 216):
        for it_ in gap.get(p, []):
            assert it_[0] == "l" and it_[2][1] == 2, it_
            if opt.p3 and it_[2][0] == "X":
                nv = {2: 6, 3: 4, 0: 2, 1: 0}[it_[2][2]]
                if not seen or nv < min(seen):
                    a("s_waitcnt vmcnt(%d)" % nv)
                seen.add(nv)
            a(it_[1])
    if opt.p3:
        assert 0 in seen
    if opt.rot:
        R_ = opt.rot
        assert len(text[216 + R_ - 1]) == 1 and len(text[216 + R_]) == 1, (text[216 + R_ - 1], text[216 + R_])
        a("s_branch L_entry")
        for _ in range(opt.lpad):
            a("s_nop 0")
        a.label("L_loop")
        a.lines += [l for p in range(216 + R_, 432) for l in text[p]]
        a.label("L_entry")
        a.lines += [l for p in range(216, 216 + R_) for l in text[p]]
    else:
        a.label("L_loop")
        a.lines += b1
    a("s_branch L_loop")
    a.lines += csetup_lines
    a.lines.append("@PADEPI")

    a.label("L_epi")
    probe("epi", 30)
    a.c("rest of stage 16, then stage 17 pair by pair with the epilogue of finished tiles interleaved")
    E = 242
    SL, SN = 2, 3
    PORD = [(0, 2), (0, 3), (0, 1), (0, 0)] + [(p, i) for p in (1, 2, 3) for i in ((0, 1, 2, 3) if p % 2 else (3, 2, 1, 0))] + [(4, 1), (4, 0)]
    un = []
    for n, (p, i) in enumerate(PORD):
        t2 = [(2 * p, i), (2 * p + 1, i)]
        un += t2 if n % 2 == 0 else t2[::-1]
    M17 = expand(un)
    LEAD = opt.lead
    skel = [("m", SL) + MF[idx] for idx in range(108 - BP, 108)]
    skel += [("m", SN) + m for m in M17[:6 * LEAD]]
    carry = ([], [])
    for n, (p, i) in enumerate(PORD):
        ms = [("m", SN) + m for m in M17[6 * (n + LEAD):6 * (n + LEAD + 1)]]
        A_, B_ = ACC(2 * p, i), ACC(2 * p + 1, i)
        v = []
        for acc, tau in ((A_, 2 * p), (B_, 2 * p + 1)):
            for h in range(2):
                v.append(("fma", acc + 2 * h, tau, h))
        ex = [("t", "v_exp_f32_e64 v%d, -v%d" % (E + 4 * k + r, acc + r)) for k, acc in enumerate((A_, B_)) for r in range(4)]
        den = [("v", "v_pk_fma_f32 v[%d:%d], v[%d:%d], s[%d:%d], s[%d:%d]" % (
            E + 2 * k, E + 2 * k + 1, E + 2 * k, E + 2 * k + 1, S_L2E, S_L2E + 1, S_L2E, S_L2E + 1)) for k in range(4)]
        rc = [("t", "v_rcp_f32 v%d, v%d" % (E + k, E + k)) for k in range(8)]
        mul = [("v", "v_pk_mul_f32 v[%d:%d], v[%d:%d], v[%d:%d]" % (
            E + 4 * k + 2 * h, E + 4 * k + 2 * h + 1, acc + 2 * h, acc + 2 * h + 1, E + 4 * k + 2 * h, E + 4 * k + 2 * h + 1))
            for k, acc in enumerate((A_, B_)) for h in range(2)]
        so, imm = (S_OUT + i, 64 * p) if p < 4 else (S_OUT + 4 + i, 0)
        fin = [("v", "v_cvt_pk_bf16_f32 v%d, v%d, v%d" % (A_ + 0, E + 0, E + 1)),
               ("v", "v_cvt_pk_bf16_f32 v%d, v%d, v%d" % (A_ + 2, E + 4, E + 5)),
               ("v", "v_cvt_pk_bf16_f32 v%d, v%d, v%d" % (A_ + 1, E + 2, E + 3)),
               ("v", "v_cvt_pk_bf16_f32 v%d, v%d, v%d" % (A_ + 3, E + 6, E + 7)),
               ("v", "s_nop 0"),
               ("v", "v_permlane16_swap_b32 v%d, v%d" % (A_ + 0, A_ + 2)),
               ("v", "v_permlane16_swap_b32 v%d, v%d" % (A_ + 1, A_ + 3))]
        if opt.stamp and n in (0, 2, 6, 10, 14, 17):
            k_ = (0, 2, 6, 10, 14, 17).index(n)
            fin.append(("stamp", "s_memtime s[%d:%d]" % (86 + 2 * k_, 87 + 2 * k_)))
        fin.append(("v", "buffer_store_dwordx4 %s, v%d, s[28:31], s%d offen offset:%d %s" % (vr(A_), V_OUT, so, imm, opt.stflag if n < opt.nwt else "")))

        def weave(tr, mm):
            r = []
            pos = [0, 3, 6][:len(mm)] if opt.weave == 0 else [0, 2, 4][:len(mm)]
            for j, t_ in enumerate(tr):
                if j in pos:
                    r.append(mm[pos.index(j)])
                r.append(t_)
            return r
        if opt.swp:
            body_ = weave(ex, ms[:3])
            pp, ps = carry
            if body_[0][0] == "m":
                body_ = [body_[0] + ("nold",)] + ps + body_[1:] if ps else body_
            else:
                body_ = ps + body_
            skel += v + pp + body_ + den + weave(rc, ms[3:]) + mul + [("free", B_)] + fin[:4]
            carry = (fin[5:7], fin[7:])
            if n == len(PORD) - 1:
                skel += fin[4:]
        else:
            skel += v + weave(ex, ms[:3]) + den + weave(rc, ms[3:]) + mul + [("free", B_)] + fin
        if n + LEAD == 17:
            skel.append(("mend",))
    res_first, res_last = {}, {}
    for j, it_ in enumerate(skel):
        tags = []
        if it_[0] == "m":
            tags = [("W", it_[1], it_[2], it_[4]), ("X", it_[1], it_[3], it_[4])]
        elif it_[0] == "fma":
            tags = [("S", it_[2]), ("T", it_[2])]
        for tg in tags:
            res_first.setdefault(tg, j); res_last[tg] = j
    reg = {}
    busy = set()
    for tg in res_first:
        if tg[0] == "W" and tg[1] == SL:
            reg[tg] = wslot(SL, tg[2], tg[3]); busy.add(reg[tg])
    pool = [r for r in range(WR, WR + 48, 4) if r not in busy] + [252]
    todo = sorted([tg for tg in res_first if not (tg[0] in "WX" and tg[1] == SL)], key=lambda tg: res_first[tg])
    subq = []
    q = Q2()
    now = 0
    count = 0
    acc_w = {}

    def em(ins, cyc, ws=1):
        nonlocal now, count
        a(ins); now += cyc; count += ws

    def try_load(j):
        if not subq:
            for tg in todo[:8]:
                if tg[0] == "X":
                    if res_last.get(("X", SL, tg[2], tg[3]), -1) <= j:
                        subq.append((x_ins(SN, tg[2], tg[3]), tg)); todo.remove(tg); break
                else:
                    if pool:
                        r = pool.pop(0); reg[tg] = r
                        if tg[0] == "W":
                            subq.extend((w_ins(r, tg[2], tg[3], h), tg) for h in range(2))
                        else:
                            subq.append(("ds_read_b128 %s, v%d offset:%d" % (vr(r), V_PAR, tg[1] * 128 + (64 if tg[0] == "T" else 0)), tg))
                        todo.remove(tg)
                    elif any(t2[0] == "X" for t2 in todo[:8]):
                        continue
                    break
        if subq:
            ins, tg = subq.pop(0)
            em(ins, 4)
            q.issue(tg, now)
            return True
        return False

    def need(tags, j):
        for tg in tags:
            while tg in todo or any(t2 == tg for _, t2 in subq):
                print("; tail: forced load of", tg, file=sys.stderr)
                assert try_load(j - 1), tg
            for t2, t_ in q.q:
                if t2 == tg and now - t_ < 120:
                    print("; tail: short latency", tg, now - t_, file=sys.stderr)
        n = q.need(set(tags), now, 150)
        if n is not None:
            em("s_waitcnt lgkmcnt(%d)" % n, 4)

    for j, it_ in enumerate(skel):
        kind = it_[0]
        if kind == "m":
            _, s_, tau, i, k = it_[:5]
            need([("W", s_, tau, k), ("X", s_, i, k)], j)
            ac = ACC(tau, i)
            nxt = skel[j + 1][0]
            em("v_mfma_f32_16x16x32_bf16 %s, %s, %s, %s" % (vr(ac), vr(reg[("W", s_, tau, k)]), vr(XR(i, k)), vr(ac)), 12 if nxt == "m" else 8)
            acc_w[ac] = count
            if res_last[("W", s_, tau, k)] == j:
                pool.append(reg[("W", s_, tau, k)])
            if len(it_) > 5:
                pass
            elif not try_load(j) and nxt == "m":
                now += 4
            elif nxt != "m" and opt.ld2 and subq:
                try_load(j)
        elif kind == "fma":
            _, r, tau, h = it_
            need([("S", tau), ("T", tau)], j)
            d = count - acc_w.get(r & ~3, -100)
            if d < 9:
                em("s_nop %d" % (8 - d), 4 * (9 - d), 9 - d)
            S_, T_ = reg[("S", tau)] + 2 * h, reg[("T", tau)] + 2 * h
            em("v_pk_fma_f32 v[%d:%d], v[%d:%d], v[%d:%d], v[%d:%d]" % (r, r + 1, r, r + 1, S_, S_ + 1, T_, T_ + 1), 4)
            if res_last[("S", tau)] == j:
                pool.extend([reg[("S", tau)], reg[("T", tau)]])
        elif kind == "t":
            assert not any(tg[0] == "X" for tg in todo) and not any(tg[0] == "X" for _, tg in subq)
            em(it_[1], 8)
        elif kind == "free":
            pool.append(it_[1])
        elif kind == "mend":
            if opt.stamp:
                a("s_waitcnt lgkmcnt(0)")
                q.q = []
            stampc(6)
            stamp(3)
        elif kind == "stamp":
            a("s_waitcnt lgkmcnt(0)")
            a(it_[1])
            a("s_waitcnt lgkmcnt(0)")
            q.q = []
        else:
            em(it_[1], 4)
    assert not todo and not subq
    probe("end", 40)
    if opt.stamp:
        a("s_waitcnt vmcnt(0)")
        stamp(4)
        a("s_waitcnt lgkmcnt(0)")
        a("s_mov_b32 s32, s18")
        a("s_and_b32 s33, s19, 0xffff")
        a("s_mov_b32 s34, 0x100000")
        a("s_mov_b32 s35, 0x20000")
        a("s_lshl_b32 s36, s2, 3")
        a("s_add_u32 s36, s36, s%d" % S_J)
        a("s_lshl_b32 s36, s36, 6")
        a("s_getreg_b32 s84, hwreg(HW_REG_HW_ID)")
        a("s_getreg_b32 s85, hwreg(HW_REG_XCC_ID)")
        for k in range(16):
            a("v_mov_b32 v%d, s%d" % (k, 70 + k))
        a("v_mov_b32 v16, 0")
        a("s_mov_b64 exec, 1")
        for k in range(4):
            a("buffer_store_dwordx4 v[%d:%d], v16, s[32:35], s36 offen offset:%d" % (4 * k, 4 * k + 3, 16 * k))
        a("s_memtime s[98:99]")
        a("s_waitcnt lgkmcnt(0)")
        a("v_mov_b32 v20, s82")
        for k in range(7):
            a("v_mov_b32 v%d, s%d" % (21 + k, 86 + 2 * k))
        a("s_add_u32 s36, s36, 0x80000")
        for k in range(2):
            a("buffer_store_dwordx4 v[%d:%d], v16, s[32:35], s36 offen offset:%d" % (20 + 4 * k, 23 + 4 * k, 16 * k))
    a.label("L_last")
    a("s_endpgm")

    if opt.touch:
        insert_nodes(a, dict([(k, "R_N_%d" % k if opt.t0 == 0 else "L_t0ret") for k in range(1, 5)] + [(k, "L_tret" if opt.contig else "L_lwait") for k in range(5, 12)]))
    else:
        resolve_pads(a)
    out = HEADER + DOC
    out += "; @launch grid=(256,1,1) block=(512,1,1) lds=%d\n" % LDS_BYTES
    out += '.amdgcn_target "amdgcn-amd-amdhsa--gfx950"\n.text\n.globl %s\n.p2align 12\n.p2align 8\n.type %s,@function\n' % (KNAME, KNAME)
    out += a.text()
    out += """.section .rodata,"a"
.p2align 6
.amdhsa_kernel %s
  .amdhsa_next_free_vgpr 256
  .amdhsa_next_free_sgpr 102
  .amdhsa_accum_offset 256
  .amdhsa_group_segment_fixed_size 0
  .amdhsa_kernarg_size 72
  .amdhsa_user_sgpr_count 2
  .amdhsa_user_sgpr_kernarg_segment_ptr 1
  .amdhsa_system_sgpr_workgroup_id_x 1
  .amdhsa_float_denorm_mode_32 3
.end_amdhsa_kernel
""" % KNAME
    return out


if __name__ == "__main__":
    ap = argparse.ArgumentParser()
    ap.add_argument("-o", default="standalone__batchnorm__sampling.s")
    ap.add_argument("--prio", type=int, default=3)
    ap.add_argument("--stamp", action="store_true")
    ap.add_argument("--stflag", default="sc1")
    ap.add_argument("--bp", type=int, default=20)
    ap.add_argument("--marg", type=int, default=9)
    ap.add_argument("--quiet", type=int, default=7)
    ap.add_argument("--told", type=int, default=10)
    ap.add_argument("--lead", type=int, default=2)
    ap.add_argument("--weave", type=int, default=1)
    ap.add_argument("--probe", default="")
    ap.add_argument("--swp", type=int, default=1)
    ap.add_argument("--lalign", type=int, default=16)
    ap.add_argument("--rot", type=int, default=0)
    ap.add_argument("--lpad", type=int, default=0)
    ap.add_argument("--lprio", type=int, default=3)
    ap.add_argument("--p3", type=int, default=1)
    ap.add_argument("--ld2", type=int, default=0)
    ap.add_argument("--contig", type=int, default=1)
    ap.add_argument("--swap", type=int, default=0)
    ap.add_argument("--t0", type=int, default=1)
    ap.add_argument("--l2c", type=int, default=0)
    ap.add_argument("--xg", type=lambda x: [int(c) for c in x], default=[0, 2, 3, 4])
    ap.add_argument("--touch", type=int, default=1)
    ap.add_argument("--lnodes", default="0,16,33,50")
    ap.add_argument("--enodes", default="1,5,9,13,16")
    ap.add_argument("--eorder", type=int, default=0)
    ap.add_argument("--nwt", type=int, default=18)
    ap.add_argument("--early", type=int, default=0)
    ap.add_argument("--estart", type=int, default=60)
    ap.add_argument("--align", type=int, default=0)
    opt = ap.parse_args()
    open(opt.o, "w").write(gen(opt))
```

```python
import sys
import argparse

KNAME = "standalone__batchnorm__sampling_kernel"

HEADER = """; Kernarg layout for this problem (72 bytes, ptrs only, base s[0:1]):
"""

DOC = """; ---------------------------------------------------------------------------------------------
; ---------------------------------------------------------------------------------------------
"""

XBYTES = 1024 * 16 * 576 * 2
WBYTES = 3 * 576 * 576 * 2
ROWB = 1152
TAPB = 576 * 1152

XBLK = 17 * 128
XBUFB = 16 * XBLK
WRING = 2 * XBUFB + 128
WKS = 10240
WSTAGE = 3 * WKS
PARAM = WRING + 3 * WSTAGE
LDS_BYTES = PARAM + 1280

LOG2E = 0x3FB8AA3B


class Asm:
    def __init__(self):
        self.lines = []

    def __call__(self, s):
        self.lines.append("    " + s)

    def label(self, l):
        self.lines.append(l + ":")

    def c(self, s):
        self.lines.append("    ; " + s)

    def text(self):
        return "\n".join(self.lines) + "\n"


class LdsQ:
    def __init__(self):
        self.q = []

    def issue(self, tag):
        self.q.append(tag)

    def wait(self, tag):
        idx = [i for i, t in enumerate(self.q) if t == tag]
        if not idx:
            return None
        n = min(len(self.q) - 1 - idx[-1], 15)
        self.q = self.q[len(self.q) - n:] if n else []
        return n

    def drain(self):
        had = bool(self.q)
        self.q = []
        return had


def vr(b, n=4):
    return "v[%d:%d]" % (b, b + n - 1)


def sizes_of(lines):
    import subprocess, re, os
    src = '.amdgcn_target "amdgcn-amd-amdhsa--gfx950"\n.text\n' + "\n".join(lines) + "\n" + "".join("N_%d:\n" % k for k in range(1, 14))
    open("_sz.s", "w").write(src)
    r = subprocess.run(["clang", "-x", "assembler", "-target", "amdgcn-amd-amdhsa", "-mcpu=gfx950", "-c", "_sz.s", "-o", "_sz.o"], capture_output=True, text=True)
    assert r.returncode == 0, r.stderr
    d = subprocess.run(["llvm-objdump", "-d", "--mcpu=gfx950", "_sz.o"], capture_output=True, text=True).stdout
    sz = [len(m.group(1).split()) * 4 for m in re.finditer(r"// [0-9A-F]{12}: ((?:[0-9A-F]{8} ?)+)", d)]
    out = []
    k = 0
    for l in lines:
        t = l.strip()
        if not t or t.startswith(";") or t.endswith(":"):
            out.append(0)
        else:
            assert not t.startswith("."), t
            out.append(sz[k])
            k += 1
    assert k == len(sz)
    return out


def resolve_pads(a):
    lines = [l for l in a.lines]
    sz = sizes_of([l if not l.startswith("@") else "" for l in lines])
    out = []
    addr = 0
    epi = None
    for l, n in zip(lines, sz):
        if l.startswith("@PAD "):
            tgt = int(l.split()[1])
            if addr > tgt:
                tgt = (addr + 63) // 64 * 64
            a.base1 = tgt
        elif l == "@NODE1":
            continue
        elif l == "@PADEPI":
            addr_n = addr + 16
            tgt = (addr_n + 4095) // 4096 * 4096 - 16
            epi = tgt + 16
        else:
            out.append(l); addr += n
            continue
        while addr < tgt:
            out.append("    s_endpgm"); addr += 4
    a.lines = out
    return epi


def insert_nodes(a, rets):
    epi = resolve_pads(a)
    target = {k: a.base1 + 1024 * (k - 1) for k in range(1, 5)}
    sz = sizes_of(a.lines)
    L = a.lines
    new = []
    addr = 0
    k = 1
    i = 0
    while i < len(L) and addr < epi:
        if k <= 4 and addr >= target[k] and sz[i]:
            cand = []
            ad, j = addr, i
            while j < len(L) and ad <= target[k] + 60:
                if sz[j]:
                    cand.append(j)
                ad += sz[j]
                j += 1
            pick = cand[0]
            for j in (cand if k > 1 else []):
                prev = [x for x in range(j - 1, -1, -1) if sz[x]][:1]
                if "v_mfma" in L[j] and "v_mfma" in L[prev[0]]:
                    pick = j
                    break
            while i < pick:
                new.append(L[i]); addr += sz[i]; i += 1
            if k == 1:
                assert new[-1] == "L_cgo:"
                dist = 0
                jj = i
                while L[jj] != "L_loop:":
                    dist += sz[jj]; jj += 1
                npad = 0
                if LALIGN >= 0:
                    npad = ((LALIGN - (addr + 4 + dist)) % 64) // 4
                new[-1:] = ["N_1:", "    s_branch %s" % rets[k]] + ["    s_endpgm"] * npad + ["L_cgo:"]
                addr += 4 * npad
                drop = npad
            else:
                new.append("N_%d:" % k)
                new.append("    s_cbranch_execz %s" % rets[k])
            addr += 4
            k += 1
            continue
        new.append(L[i]); addr += sz[i]; i += 1
    while L[i] != "L_epi:":
        assert L[i].strip() == "s_endpgm", L[i]
        i += 1
    assert k == 5 and addr == epi, (k, addr, epi)
    if CONTIG:
        new.append("N_5:")
        new.append("    s_branch %s" % rets[5])
        addr += 4
        k = 6
        while i < len(L):
            tg = epi + 1024 * (k - 5)
            if k in rets and addr >= tg and sz[i]:
                cand = []
                ad, j = addr, i
                while j < len(L) and ad <= tg + 60:
                    if sz[j]:
                        cand.append(j)
                    ad += sz[j]
                    j += 1
                pick, repl = cand[0], False
                for j in cand:
                    prev = [x for x in range(j - 1, -1, -1) if sz[x]][0]
                    if L[j].strip() == "s_nop 0" and "cvt_pk" in L[prev]:
                        pick, repl = j, True
                        break
                else:
                    for j in cand:
                        prev = [x for x in range(j - 1, -1, -1) if sz[x]][0]
                        if "v_exp" in L[prev] or "v_rcp" in L[prev]:
                            pick = j
                            break
                while i < pick:
                    new.append(L[i]); addr += sz[i]; i += 1
                new.append("N_%d:" % k)
                new.append("    s_cbranch_execz %s" % rets[k])
                addr += 4
                if repl:
                    i += 1
                k += 1
                continue
            new.append(L[i]); addr += sz[i]; i += 1
        if addr > epi + 1024 * (k - 5):
            print("; WARNING: code past the last touch window", file=sys.stderr)
        for kk in range(k, max(rets) + 1):
            new = [l.replace(" N_%d" % kk, " " + rets[kk]) if l.endswith(" N_%d" % kk) else l for l in new]
        a.lines = new
        return
    seg = epi
    new.append("N_5:")
    new.append("    s_branch %s" % rets[5])
    addr += 4
    k = 6
    while i < len(L):
        ad, j = addr, i
        best_s = best_m = None
        while j < len(L) and ad + sz[j] + 4 <= seg + 1024:
            ad += sz[j]
            if "buffer_store" in L[j]:
                best_s = (j + 1, ad)
            if "v_mfma" in L[j]:
                best_m = (j + 1, ad)
            j += 1
        if j == len(L):
            new += L[i:]
            addr = ad
            break
        cut = best_s if best_s and (not best_m or best_s[1] > best_m[1] - 200) else best_m
        if k not in rets:
            print("; WARNING: code past the last touch node", file=sys.stderr)
            new += L[i:]
            break
        new += L[i:cut[0]]
        i, addr = cut
        new.append("    s_branch L_seg%d" % k)
        addr += 4
        seg = seg + 1344 if (seg % 4096) < 2688 else (seg // 4096 + 1) * 4096
        while addr < seg:
            new.append("    s_endpgm"); addr += 4
        new.append("N_%d:" % k)
        new.append("    s_branch %s" % rets[k])
        new.append("L_seg%d:" % k)
        addr += 4
        k += 1
    for kk in range(k, max(rets) + 1):
        new = [l.replace(" N_%d" % kk, " " + rets[kk]) if l.endswith(" N_%d" % kk) else l for l in new]
    a.lines = new
    a.end_addr = addr
    a.last_seg = seg


opt_tight = False
CONTIG = False
LALIGN = -1


def gen(opt):
    global CONTIG, LALIGN
    CONTIG = bool(opt.contig)
    LALIGN = opt.lalign
    a = Asm()

    def ACC(tau, i):
        return (tau * 4 + i) * 4 if tau < 8 else 128 + ((tau - 8) * 2 + i) * 4

    XR0 = 144
    WR = 192
    V_WE, V_WO, V_WLE, V_WLO = 240, 241, 242, 243
    V_XA = 244
    V_PAR, V_OUT, V_LANE, V_XD = 250, 251, 252, 253
    V_T0, V_T1, V_T2, V_T3 = 148, 149, 150, 151
    V_WA, V_W4, V_ST = 10, 11, 40

    S_WAVE, S_ROW, S_COL, S_ODD = 48, 49, 50, 57
    S_J, S_XB, S_T2 = 51, 52, 53
    S_WS, S_CNT, S_SOFF = 54, 55, 56
    S_L2E = 58
    S_XT = 63
    S_OUT = 64
    S_WL, S_WG, S_WL0, S_WL1 = 36, 37, 38, 39
    S_EAL, S_EAG, S_EBL, S_EBG = 40, 41, 42, 43
    S_S = 44

    def stamp(idx):
        if opt.stamp:
            a("s_memrealtime s[%d:%d]" % (70 + 2 * idx, 71 + 2 * idx))

    def stampc(idx):
        if opt.stamp:
            a("s_memtime s[%d:%d]" % (70 + 2 * idx, 71 + 2 * idx))

    def lstamp():
        if opt.stamp:
            a("s_memtime s[90:91]")
            a("s_memrealtime s[92:93]")
            a("s_waitcnt lgkmcnt(0)")
            a("s_mov_b32 m0, s94")
            a("s_nop 0")
            a("v_writelane_b32 v%d, s90, m0" % V_ST)
            a("v_writelane_b32 v%d, s92, m0" % (V_ST + 1))
            a("s_add_u32 s94, s94, 1")

    def probe(name, t):
        if opt.probe == name:
            a("s_waitcnt lgkmcnt(0)")
            a("s_add_u32 s72, s70, %d" % (t * 100))
            a.label("L_sp")
            a("s_memrealtime s[74:75]")
            a("s_waitcnt lgkmcnt(0)")
            a("s_sub_u32 s73, s72, s74")
            a("s_cmp_gt_i32 s73, 0")
            a("s_cbranch_scc1 L_sp")

    a.label(KNAME)
    if opt.probe:
        a("s_memrealtime s[70:71]")
    stamp(0)
    a("s_load_dwordx8 s[4:11], s[0:1], 0")
    a("s_load_dwordx4 s[12:15], s[0:1], 32")
    a("s_load_dwordx2 s[16:17], s[0:1], 48")
    if opt.stamp:
        a("s_load_dwordx2 s[18:19], s[0:1], 64")
    a("v_lshrrev_b32 v1, 6, v0")
    a("v_and_b32 v%d, 63, v0" % V_LANE)
    a("s_cmp_ge_u32 s2, 256")
    a("s_cbranch_scc1 L_end")
    a("v_readfirstlane_b32 s%d, v1" % S_WAVE)
    a("s_and_b32 s%d, s2, 7" % S_ROW)
    a("s_lshr_b32 s%d, s2, 5" % S_T2)
    a("s_lshl3_add_u32 s%d, s%d, s%d" % (S_ROW, S_ROW, S_T2))
    a("s_bfe_u32 s%d, s2, 0x20003" % S_COL)
    a("s_and_b32 s%d, s%d, 1" % (S_ODD, S_COL))
    a("s_mulk_i32 s%d, 288" % S_COL)
    a("s_lshl_b32 s%d, s%d, 5" % (S_T2, S_ODD))
    a("s_sub_u32 s%d, s%d, s%d" % (S_COL, S_COL, S_T2))
    a("s_and_b32 s%d, s%d, 3" % (S_J, S_WAVE))
    a("s_lshl2_add_u32 s%d, s%d, s%d" % (S_SOFF, S_ROW, S_J))
    a("s_mul_i32 s%d, s%d, %d" % (S_SOFF, S_SOFF, 64 * ROWB))
    a("s_mul_i32 s%d, s%d, %d" % (S_XB, S_J, 4 * XBLK))
    a("s_mov_b32 s22, %d" % XBYTES)
    a("s_mov_b32 s23, 0x20000")
    a("v_lshrrev_b32 v%d, 3, v%d" % (V_T0, V_LANE))
    a("v_and_b32 v%d, 7, v%d" % (V_T1, V_LANE))
    a("v_and_b32 v%d, 6, v%d" % (V_T2, V_T0))
    a("v_xor_b32 v%d, v%d, v%d" % (V_T2, V_T1, V_T2))
    a("v_mul_u32_u24 v%d, %d, v%d" % (V_XD, ROWB, V_T0))
    a("v_lshl_add_u32 v%d, v%d, 4, v%d" % (V_XD, V_T2, V_XD))
    a(("s_cmp_lt_u32 s%d, 4" if opt.swap else "s_cmp_ge_u32 s%d, 4") % S_WAVE)
    a("s_cbranch_scc1 L_loader")

    def touch(nodes, ret, ex=True):
        if ex:
            a("s_mov_b64 exec, 0")
        for k, nd in enumerate(nodes[:-1]):
            a("s_cmp_eq_u32 s%d, %d" % (S_J, k))
            a("s_cbranch_scc1 %s" % nd)
        a("s_branch %s" % nodes[-1])
        if ret:
            a.label(ret)
            if ex:
                a("s_mov_b64 exec, -1")

    NODE_RET = {}

    def x4(sg):
        for n in range(4):
            a("buffer_load_dwordx4 v%d, s[20:23], s%d offen lds" % (V_XD, sg))
            if n < 3:
                a("s_addk_i32 m0, %d" % (1024 if n % 2 == 0 else XBLK - 1024))
                a("s_addk_i32 s%d, %d" % (sg, 8 * ROWB))

    def touch1(j, node, ex=True):
        if not opt.touch:
            return
        a("s_cmp_lg_u32 s%d, %d" % (S_J, j))
        a("s_cbranch_scc1 R2_%s" % node)
        if ex:
            a("s_mov_b64 exec, 0")
        a("s_branch %s" % node)
        a.label("R_%s" % node)
        if ex:
            a("s_mov_b64 exec, -1")
        a.label("R2_%s" % node)

    a("s_setprio 2")
    if opt.t0 == 0:
        touch1(0, "N_4")
    elif opt.touch:
        touch(["N_4", "N_3", "N_2", "N_1"], "L_t0ret")
    a.c("compute wave: DMA own X rows, chunk 0 (logical row tiles 0,1 = physical 2*odd.., then the other two)")
    a("s_mul_i32 s60, s%d, %d" % (S_ODD, 32 * ROWB))
    a("s_xor_b32 s62, s60, %d" % (32 * ROWB))
    a("s_add_u32 s%d, s%d, s62" % (S_T2, S_SOFF))
    a("s_add_u32 m0, s%d, %d" % (S_XB, 128 + 2 * XBLK))
    a("s_waitcnt lgkmcnt(0)")
    a("s_mov_b64 s[20:21], s[4:5]")
    x4(S_T2)
    a("s_addk_i32 m0, %d" % (-(3 * XBLK + 1024)))
    a("s_add_u32 s61, s%d, s60" % S_SOFF)
    x4(61)
    a("s_branch L_csetup")

    a.label("L_loader")
    a.c("loader j: sub-piece j of each 16-row unit of W (+ share of sub-piece 4), X rows of compute wave j")
    a("s_setprio %d" % opt.lprio)
    a("s_mov_b32 s26, %d" % WBYTES)
    a("s_mov_b32 s27, 0x20000")
    a("s_movk_i32 s60, 0x34")
    a("s_movk_i32 s61, %d" % ROWB)
    a("s_lshl_b32 s62, s%d, 2" % S_ODD)
    a("s_lshl_b32 s%d, s%d, 6" % (S_T2, S_J))
    for dst, first in ((V_WA, True), (V_W4, False)):
        if first:
            a("v_add_u32 v1, s%d, v%d" % (S_T2, V_LANE))
        else:
            a("v_add_u32 v1, 256, v%d" % V_LANE)
        a("v_mul_u32_u24 v3, 3277, v1")
        a("v_lshrrev_b32 v3, 16, v3")
        a("v_mul_u32_u24 v4, 20, v3")
        a("v_sub_u32 v4, v1, v4")
        a("v_lshrrev_b32 v5, 1, v3")
        a("v_and_b32 v2, 2, v5")
        a("v_xor_b32 v4, v2, v4")
        a("v_add_u32 v4, s62, v4")
        a("v_subrev_u32 v2, 20, v4")
        a("v_min_u32 v4, v4, v2")
        a("v_and_b32 v5, 6, v5")
        a("v_bfe_i32 v5, s60, v5, 2")
        a("v_lshl_add_u32 v3, v5, 2, v3")
        a("v_lshlrev_b32 v4, 4, v4")
        a("v_mad_u32_u24 v%d, v3, s61, v4" % dst)
    a("s_lshl_b32 s62, s%d, 10" % S_J)
    a("s_add_u32 s%d, s62, %d" % (S_WL0, WRING))
    a("s_add_u32 s%d, s%d, %d" % (S_WL1, S_WL0, 3 * WSTAGE))
    a("s_mov_b32 s%d, s%d" % (S_WL, S_WL0))
    a("s_mov_b32 s%d, s%d" % (S_WG, S_COL))
    a("s_lshl_b32 s%d, s%d, 12" % (S_EAL, S_J))
    a("s_addk_i32 s%d, 4096" % S_EAL)
    a("s_and_b32 s%d, s%d, 1" % (S_T2, S_J))
    a("s_mul_i32 s%d, s%d, %d" % (S_EBG, S_T2, 16 * ROWB))
    a("s_lshr_b32 s%d, s%d, 1" % (S_EAG, S_J))
    a("s_mul_i32 s%d, s%d, %d" % (S_EAG, S_EAG, TAPB))
    a("s_add_u32 s%d, s%d, s%d" % (S_EAG, S_EAG, S_EBG))
    a("s_add_u32 s%d, s%d, %d" % (S_EBG, S_EBG, 2 * TAPB))
    a("s_mulk_i32 s%d, 5120" % S_T2)
    a("s_addk_i32 s%d, %d" % (S_T2, 4 * 5120 + 4096))
    a("s_sub_u32 s%d, s%d, s62" % (S_EBL, S_T2))
    a("s_mov_b32 s%d, -2" % S_S)
    a("s_cmp_lt_u32 s%d, 2" % S_J)
    a("s_cselect_b64 s[46:47], -1, 1")
    a("s_waitcnt lgkmcnt(0)")
    a("s_mov_b64 s[24:25], s[6:7]")
    a("s_mov_b64 s[20:21], s[4:5]")
    if opt.stamp:
        a("v_mov_b32 v%d, 0" % V_ST)
        a("v_mov_b32 v%d, s70" % (V_ST + 1))
        a("s_mov_b32 s94, 3")
    a.label("L_lw")
    for u in range(6):
        if u == 0:
            a("s_mov_b32 m0, s%d" % S_WL)
            a("s_mov_b32 s%d, s%d" % (S_T2, S_WG))
        else:
            a("s_addk_i32 m0, 5120")
            if u & 1:
                a("s_addk_i32 s%d, %d" % (S_T2, 16 * ROWB))
            else:
                a("s_add_u32 s%d, s%d, %d" % (S_T2, S_T2, TAPB - 16 * ROWB))
        a("buffer_load_dwordx4 v%d, s[24:27], s%d offen lds" % (V_WA, S_T2))
    for el, eg in ((S_EAL, S_EAG), (S_EBL, S_EBG)):
        if el == S_EBL:
            a("s_mov_b64 exec, s[46:47]")
        a("s_add_u32 m0, s%d, s%d" % (S_WL, el))
        a("s_add_u32 s%d, s%d, s%d" % (S_T2, S_WG, eg))
        a("buffer_load_dwordx4 v%d, s[24:27], s%d offen lds" % (V_W4, S_T2))
    a("s_mov_b64 exec, -1")
    a("s_setprio 0")
    a("s_addk_i32 s%d, %d" % (S_WL, WSTAGE))
    a("s_cmp_eq_u32 s%d, s%d" % (S_WL, S_WL1))
    a("s_cselect_b32 s%d, s%d, s%d" % (S_WL, S_WL0, S_WL))
    a("s_add_u32 s%d, s%d, %d" % (S_WG, S_WG, 32 * ROWB))
    a("s_add_i32 s%d, s%d, 1" % (S_S, S_S))
    a("s_cmp_lt_i32 s%d, 0" % S_S)
    a("s_cbranch_scc1 L_lw")
    a("s_bitcmp1_b32 0x15554, s%d" % S_S)
    a("s_cbranch_scc1 L_ltouch1")
    a("s_bitcmp1_b32 s%d, 0" % S_S)
    a("s_cbranch_scc1 L_lw12")
    a.label("L_lwait")
    a("s_waitcnt vmcnt(8)")
    a.label("L_lw12")
    a("s_waitcnt vmcnt(12)")
    lstamp()
    a("s_barrier")
    lstamp()
    a("s_cmp_eq_u32 s%d, 16" % S_S)
    a("s_cbranch_scc1 L_ltail")
    a("s_and_b32 s60, s%d, 1" % S_S)
    a("s_lshr_b32 s61, s%d, 1" % S_S)
    a("s_add_u32 s61, s61, 1")
    a("s_mul_i32 s62, s60, %d" % (2 * XBLK))
    a("s_add_u32 s62, s62, s%d" % S_XB)
    a("s_addk_i32 s62, 128")
    a("s_bitcmp1_b32 s61, 0")
    a("s_cselect_b32 s63, %d, 0" % XBUFB)
    a("s_add_u32 m0, s62, s63")
    a("s_xor_b32 s60, s60, s%d" % S_ODD)
    a("s_mul_i32 s60, s60, %d" % (32 * ROWB))
    a("s_lshl_b32 s61, s61, 7")
    a("s_add_u32 s60, s60, s61")
    a("s_add_u32 s60, s60, s%d" % S_SOFF)
    x4(60)
    a("s_branch L_lw")

    a.lines.append("@PAD 1344")
    a.label("L_ltouch1")
    if opt.touch:
        a.c("one instruction-cache touch per stage (each node branches straight back to L_lwait)")
        if opt.contig:
            a("s_mov_b64 exec, 0")
        for k in range(1, 8):
            a("s_cmp_eq_u32 s%d, %d" % (S_S, 2 + 2 * k))
            a("s_cbranch_scc1 N_%d" % ((12 - k) if opt.contig else (4 + k)))
        if opt.contig:
            a.label("L_tret")
            a("s_mov_b64 exec, -1")
    a("s_cmp_lg_u32 s%d, 2" % S_S)
    a("s_cbranch_scc1 L_lwait")
    a.c("BN parameter loads: logical idx = 64j + lane (<160); physical = (idx + 32*odd) mod 160")
    a("s_lshl_b32 s%d, s%d, 6" % (S_T2, S_J))
    a("v_add_u32 v60, s%d, v%d" % (S_T2, V_LANE))
    a("s_lshl_b32 s%d, s%d, 5" % (S_T2, S_ODD))
    a("v_add_u32 v61, s%d, v60" % S_T2)
    a("v_subrev_u32 v62, 160, v61")
    a("v_min_u32 v61, v61, v62")
    a("v_lshlrev_b32 v61, 1, v61")
    PS = [28, 32, 64, 96]
    for k in range(4):
        a("s_mov_b32 s%d, s%d" % (PS[k], 8 + 2 * k))
        a("s_and_b32 s%d, s%d, 0xffff" % (PS[k] + 1, 9 + 2 * k))
        a("s_movk_i32 s%d, 1152" % (PS[k] + 2))
        a("s_mov_b32 s%d, 0x20000" % (PS[k] + 3))
        a("buffer_load_ushort v%d, v61, s[%d:%d], s%d offen" % (64 + k, PS[k], PS[k] + 3, S_COL))
    a("s_branch L_lwait")

    a.label("L_ltail")
    if opt.l2c:
        a.c("refresh the tail code in L2 (one dword per 128-B line)")
        a("s_getpc_b64 s[60:61]")
        a.label("L_pc3")
        a("s_lshl_b32 s62, s%d, 13" % S_J)
        a("v_lshl_add_u32 v12, v%d, 7, s62" % V_LANE)
        a("v_min_u32 v12, L_last-L_epi, v12")
        a("s_add_u32 s60, s60, L_epi-L_pc3")
        a("s_addc_u32 s61, s61, 0")
        a("v_mov_b32 v13, s61")
        a("v_add_co_u32 v12, vcc, s60, v12")
        a("s_nop 1")
        a("v_addc_co_u32 v13, vcc, 0, v13, vcc")
        a("global_load_dword v14, v[12:13], off")
    a.c("BN parameters: v64=mean v65=var v66=g v67=b (bf16 bits); roundings follow the bf16 reference")
    for k in range(4):
        a("v_lshlrev_b32 v%d, 16, v%d" % (64 + k, 64 + k))
    a("v_add_f32 v65, 0x3727c5ac, v65")
    a("v_cvt_pk_bf16_f32 v65, v65, v65")
    a("v_lshlrev_b32 v65, 16, v65")
    a("v_sqrt_f32 v65, v65")
    a("v_lshrrev_b32 v61, 4, v60")
    a("v_cvt_pk_bf16_f32 v65, v65, v65")
    a("v_lshlrev_b32 v65, 16, v65")
    a("v_rcp_f32 v65, v65")
    a("v_lshlrev_b32 v61, 7, v61")
    a("v_cvt_pk_bf16_f32 v65, v65, v65")
    a("v_lshlrev_b32 v65, 16, v65")
    a("v_mul_f32 v65, v66, v65")
    a("v_cvt_pk_bf16_f32 v65, v65, v65")
    a("v_lshlrev_b32 v65, 16, v65")
    a("v_fma_f32 v67, -v64, v65, v67")
    a("v_mul_f32 v65, 0x%x, v65" % LOG2E)
    a("v_mul_f32 v67, 0x%x, v67" % LOG2E)
    a("v_and_b32 v62, 15, v60")
    a("v_lshl_add_u32 v61, v62, 2, v61")
    a("v_add_u32 v61, %d, v61" % PARAM)
    a("v_cmp_gt_u32 vcc, 160, v60")
    a("s_and_saveexec_b64 s[46:47], vcc")
    a("ds_write_b32 v61, v65")
    a("ds_write_b32 v61, v67 offset:64")
    a("s_mov_b64 exec, s[46:47]")
    a("s_waitcnt vmcnt(0) lgkmcnt(0)")
    lstamp()
    a("s_barrier")
    lstamp()
    if opt.stamp:
        a("s_mov_b32 s32, s18")
        a("s_and_b32 s33, s19, 0xffff")
        a("s_mov_b32 s34, 0x1000000")
        a("s_mov_b32 s35, 0x20000")
        a("s_lshl_b32 s36, s2, 3")
        a("s_add_u32 s36, s36, s%d" % S_J)
        a("s_add_u32 s36, s36, 4")
        a("s_lshl_b32 s36, s36, 9")
        a("s_add_u32 s36, s36, 0x100000")
        a("v_lshlrev_b32 v42, 3, v%d" % V_LANE)
        a("buffer_store_dwordx2 v[%d:%d], v42, s[32:35], s36 offen" % (V_ST, V_ST + 1))
    a.label("L_end")
    a("s_endpgm")

    a.lines.append("@PAD 4096")
    main_lines = a.lines
    a.lines = []
    a.label("L_csetup")
    if opt.t0 == 0:
        touch1(1, "N_3")
    a.c("zero rows: r = 8w + (l>>3), and row 32")
    a("s_lshl_b32 s%d, s%d, 3" % (S_T2, S_J))
    a("v_add_u32 v1, s%d, v%d" % (S_T2, V_T0))
    a("v_mul_u32_u24 v1, %d, v1" % XBLK)
    a("v_lshl_add_u32 v1, v%d, 4, v1" % V_T1)
    a("v_mov_b64 v[4:5], 0")
    a("v_mov_b64 v[6:7], 0")
    a("ds_write_b128 v1, v[4:7]")
    a("v_lshlrev_b32 v2, 4, v%d" % V_T1)
    a("v_add_u32 v2, %d, v2" % (32 * XBLK))
    a("ds_write_b128 v2, v[4:7]")
    a("s_mov_b32 s28, s16")
    a("s_and_b32 s29, s17, 0xffff")
    a("s_mov_b32 s30, s22")
    a("s_mov_b32 s31, 0x20000")
    a("s_mov_b32 s%d, 0x%x" % (S_L2E, LOG2E))
    a("s_mov_b32 s%d, s%d" % (S_L2E + 1, S_L2E))
    a("s_mov_b32 s%d, %d" % (S_XT, XBUFB))
    a("v_lshrrev_b32 v%d, 4, v%d" % (V_T3, V_LANE))
    a("v_and_b32 v%d, 15, v%d" % (V_T2, V_LANE))
    for tap in range(3):
        va = V_XA + tap
        a("v_add_u32 v%d, %d, v%d" % (V_T0, tap + 15, V_T2))
        a("v_and_b32 v%d, 6, v%d" % (V_T0, V_T0))
        a("v_xor_b32 v%d, v%d, v%d" % (V_T0, V_T0, V_T3))
        a("v_lshlrev_b32 v%d, 4, v%d" % (V_T0, V_T0))
        a("v_lshl_add_u32 v%d, v%d, 7, v%d" % (V_T0, V_T2, V_T0))
        if tap:
            a("s_addk_i32 s%d, 128" % S_XB)
        a("v_add_u32 v%d, s%d, v%d" % (va, S_XB, V_T0))
        a("v_xor_b32 v%d, 64, v%d" % (va + 3, va))
    if opt.t0 == 0:
        touch1(2, "N_2")
    a("v_mul_u32_u24 v%d, %d, v%d" % (V_OUT, ROWB, V_T2))
    a("v_lshrrev_b32 v%d, 1, v%d" % (V_T0, V_T3))
    a("v_lshl_add_u32 v%d, v%d, 4, v%d" % (V_OUT, V_T0, V_OUT))
    a("v_and_b32 v%d, 1, v%d" % (V_T1, V_T3))
    a("v_lshl_add_u32 v%d, v%d, 5, v%d" % (V_OUT, V_T1, V_OUT))
    a("v_lshlrev_b32 v%d, 4, v%d" % (V_PAR, V_T3))
    a("v_add_u32 v%d, %d, v%d" % (V_PAR, PARAM, V_PAR))
    a("v_lshlrev_b32 v%d, 4, v%d" % (V_T0, V_T0))
    a("v_lshl_add_u32 v%d, v%d, 2, v%d" % (V_T0, V_T1, V_T0))
    a("v_bfe_u32 v%d, v%d, 2, 2" % (V_T2, V_LANE))
    a("v_add_u32 v%d, v%d, v%d" % (V_T0, V_T0, V_T2))
    a("v_mul_u32_u24 v%d, 320, v%d" % (V_T0, V_T0))
    a("v_and_b32 v%d, 3, v%d" % (V_T2, V_LANE))
    a("v_lshl_add_u32 v%d, v%d, 3, v%d" % (V_T0, V_T2, V_T0))
    a("v_lshlrev_b32 v%d, 5, v%d" % (V_T1, V_T1))
    a("v_add_u32 v%d, v%d, v%d" % (V_WLE, V_T0, V_T1))
    a("v_sub_u32 v%d, v%d, v%d" % (V_WLO, V_T0, V_T1))
    a("s_mov_b32 s%d, %d" % (S_WS, WRING))
    a("v_add_u32 v%d, s%d, v%d" % (V_WE, S_WS, V_WLE))
    a("v_add_u32 v%d, s%d, v%d" % (V_WO, S_WS, V_WLO))
    a("s_add_u32 s%d, s%d, s%d" % (S_SOFF, S_SOFF, S_COL))
    a("s_mul_i32 s60, s%d, %d" % (S_ODD, 32 * ROWB))
    a("s_add_u32 s61, s%d, s60" % S_SOFF)
    a("s_xor_b32 s60, s60, %d" % (32 * ROWB))
    a("s_add_u32 s62, s%d, s60" % S_SOFF)
    a("s_lshl_b32 s60, s%d, 6" % S_ODD)
    a("s_add_u32 s%d, s61, s60" % S_OUT)
    a("s_add_u32 s%d, s%d, %d" % (S_OUT + 1, S_OUT, 16 * ROWB))
    a("s_add_u32 s%d, s62, s60" % (S_OUT + 2))
    a("s_add_u32 s%d, s%d, %d" % (S_OUT + 3, S_OUT + 2, 16 * ROWB))
    a("s_lshl_b32 s60, s%d, 8" % S_ODD)
    a("s_sub_u32 s%d, s61, s60" % (S_OUT + 4))
    a("s_addk_i32 s%d, 256" % (S_OUT + 4))
    a("s_add_u32 s%d, s%d, %d" % (S_OUT + 5, S_OUT + 4, 16 * ROWB))
    if not opt.mz:
        for r in range(0, 144, 2):
            if r == 24 and opt.t0 == 0:
                touch1(3, "N_1", False)
            a("v_mov_b64 v[%d:%d], 0" % (r, r + 1))
    a("s_mov_b32 s%d, %d" % (S_CNT, 9))
    a("s_branch L_cgo")
    if opt.mz:
        body_ = a.lines
        ins_idx = [n for n, l in enumerate(body_) if l.startswith("    ") and not l.strip().startswith(";")]
        first = [n for n in ins_idx if "ds_write_b128 v2" in body_[n]][0] + 1
        cand = [n for n in ins_idx if n >= first][:-1]
        step = len(cand) // 9
        pos = {cand[k * step]: k for k in range(9)}
        out_ = []
        for n, l in enumerate(body_):
            if n in pos:
                k = 8 - pos[n]
                out_.append("    v_mfma_f32_32x32x16_bf16 v[%d:%d], v[192:195], v[192:195], 0" % (16 * k, 16 * k + 15))
            out_.append(l)
        one = [n for n, l in enumerate(out_) if l == "L_csetup:"][0]
        out_[one + 1:one + 1] = ["    v_mov_b64 v[192:193], 0", "    v_mov_b64 v[194:195], 0"]
        a.lines = out_
    csetup_lines = a.lines
    a.lines = main_lines
    a.lines.append("@NODE1")
    a.label("L_cgo")
    a("s_waitcnt lgkmcnt(0)" if opt.p3 else "s_waitcnt vmcnt(0) lgkmcnt(0)")
    stamp(1)
    probe("b0", 12)
    a("s_barrier")
    stamp(2)
    stampc(5)
    if opt.stamp:
        a("s_waitcnt lgkmcnt(0)")

    UNITS = [(0, 2), (0, 3), (1, 3), (1, 2), (1, 1), (1, 0), (0, 0), (0, 1), (2, 1), (2, 0), (2, 2), (2, 3)]
    for tau in range(3, 8):
        UNITS += [(tau, i) for i in ((3, 2, 1, 0) if tau % 2 else (0, 1, 2, 3))]
    UNITS += [(8, 0), (8, 1), (9, 1), (9, 0)]

    def expand(units):
        r = []
        for u, (tau, i) in enumerate(units):
            r += [(tau, i, k) for k in ((0, 1, 2) if u % 2 == 0 else (2, 1, 0))]
        return r

    MF = expand(UNITS)
    assert len(MF) == 108
    BP, MARG, QUIET, TOLD = opt.bp, opt.marg, opt.quiet, opt.told
    XR = lambda i, k: XR0 + (i * 3 + k) * 4
    wslot = lambda s, tau, k: WR + ((s * 30 + tau * 3 + k) % 12) * 4
    gbar = lambda s: 108 * s - BP - 1

    def w_ins(reg, tau, k, h):
        return "ds_read_b64_tr_b16 v[%d:%d], v%d offset:%d" % (reg + 2 * h, reg + 2 * h + 1, V_WE if tau % 2 == 0 else V_WO, k * WKS + h * 2560 + tau * 32)

    def x_ins(s, i, k):
        return "ds_read_b128 %s, v%d offset:%d" % (vr(XR(i, k)), V_XA + (s % 2) * 3 + k, i * XBLK)

    wfirst, wlast, xfirst, xlast = {}, {}, {}, {}
    for idx, (tau, i, k) in enumerate(MF):
        wfirst.setdefault((tau, k), idx); wlast[(tau, k)] = idx
        xfirst.setdefault((i, k), idx); xlast[(i, k)] = idx
    NS = 8
    ops = []
    for s_ in range(1, NS):
        for tau in range(10):
            for k in range(3):
                n = s_ * 30 + tau * 3 + k - 12
                ps, pt, pk_ = n // 30, (n % 30) // 3, n % 3
                e = max(gbar(s_) + 1, 108 * ps + wlast[(pt, pk_)])
                d = min(108 * s_ + wfirst[(tau, k)] - MARG, gbar(s_ + 1) - QUIET)
                for h in range(2):
                    ops.append([e, d, w_ins(wslot(s_, tau, k), tau, k, h), ("W", s_, tau, k)])
        for i in range(4):
            for k in range(3):
                e = max(gbar(s_) + 1, 108 * (s_ - 1) + xlast[(i, k)])
                d = 108 * s_ + xfirst[(i, k)] - MARG
                ops.append([e, d, x_ins(s_, i, k), ("X", s_, i, k)])
    gap = {}
    bars = {gbar(s_) for s_ in range(1, NS + 1)}
    pend = sorted(ops, key=lambda o: (o[1], o[0]))
    late = 0
    lastw, lastx = {}, {}
    for p in range(gbar(1), 108 * NS):
        if p in bars:
            continue
        for o in pend:
            if o[0] <= p:
                gap.setdefault(p, []).append(("l", o[2], o[3]))
                late = max(late, p - o[1])
                (lastw if o[3][0] == "W" else lastx)[o[3][1]] = p
                pend.remove(o)
                break
    assert not pend
    if late > 0:
        print("; worst deadline miss: %d gaps" % late, file=sys.stderr)

    def place(seq, lo, hi):
        free = [p for p in range(lo, hi + 1) if p not in bars and not gap.get(p)]
        slots = [p for p in free for _ in range(2)]
        if len(slots) < len(seq):
            slots = sorted(slots + [p for p in range(lo, hi + 1) if p not in bars and gap.get(p)])
        assert len(slots) >= len(seq), (lo, hi)
        for ins, p in zip(seq, slots):
            gap.setdefault(p, []).append(("i", ins))

    for s_ in range(1, NS - 1):
        assert lastw[s_] < gbar(s_ + 1) - 3
        seq = ["s_addk_i32 s%d, %d" % (S_WS, WSTAGE),
               "s_cmp_eq_u32 s%d, %d" % (S_WS, WRING + 3 * WSTAGE),
               "s_cselect_b32 s%d, %d, s%d" % (S_WS, WRING, S_WS),
               "v_add_u32 v%d, s%d, v%d" % (V_WE, S_WS, V_WLE),
               "v_add_u32 v%d, s%d, v%d" % (V_WO, S_WS, V_WLO)]
        if s_ % 2 == 0:
            seq += ["s_sub_u32 s%d, s%d, 1" % (S_CNT, S_CNT), "s_cmp_eq_u32 s%d, 0" % S_CNT]
        place(seq, lastw[s_] + 1, gbar(s_ + 1) - 1)
        seq = ["v_add_u32 v%d, s%d, v%d" % (V_XA + (s_ % 2) * 3 + k, S_XT, V_XA + (s_ % 2) * 3 + k) for k in range(3)]
        if s_ % 2 == 1:
            seq.append("s_sub_u32 s%d, 0, s%d" % (S_XT, S_XT))
        place(seq, max(lastx[s_] + 1, 108 * s_), lastw[s_] - 1)

    class Q2:
        def __init__(self):
            self.q = []
        def issue(self, tag, t):
            self.q.append((tag, t))
        def need(self, tags, now, told):
            idx = [n for n, (tg, _) in enumerate(self.q) if tg in tags]
            if not idx:
                return None
            n = len(self.q) - 1 - idx[-1]
            young = sum(1 for _, t in self.q if now - t < told)
            n = min(n, young, 15)
            self.q = self.q[len(self.q) - n:] if n else []
            return n

    q = Q2()
    text = {}
    for p in range(gbar(1) + 1, 108 * (NS - 1)):
        out = []
        s_, idx = p // 108, p % 108
        tau, i, k = MF[idx]
        n = q.need({("W", s_, tau, k), ("X", s_, i, k)}, p, TOLD)
        if n is not None:
            out.append("    s_waitcnt lgkmcnt(%d)" % n)
        ac = vr(ACC(tau, i))
        out.append("    v_mfma_f32_16x16x32_bf16 %s, %s, %s, %s" % (ac, vr(wslot(s_, tau, k)), vr(XR(i, k)), ac))
        if p in bars:
            if q.q:
                out.append("    s_waitcnt lgkmcnt(0)")
                q.q = []
            out.append("    s_barrier")
            if (s_ % 2) == 0:
                out.append("    s_cbranch_scc1 L_epi")
        for it_ in gap.get(p, []):
            out.append("    " + it_[1])
            if it_[0] == "l":
                q.issue(it_[2], p)
        text[p] = out
    b1 = [l for p in range(216, 432) for l in text[p]]
    b2 = [l for p in range(432, 648) for l in text[p]]
    assert b1 == b2
    seen = set()
    for p in range(gbar(2) + 1, 216):
        for it_ in gap.get(p, []):
            assert it_[0] == "l" and it_[2][1] == 2, it_
            if opt.p3 and it_[2][0] == "X":
                nv = {2: 6, 3: 4, 0: 2, 1: 0}[it_[2][2]]
                if not seen or nv < min(seen):
                    a("s_waitcnt vmcnt(%d)" % nv)
                seen.add(nv)
            a(it_[1])
    if opt.p3:
        assert 0 in seen
    if opt.rot:
        R_ = opt.rot
        assert len(text[216 + R_ - 1]) == 1 and len(text[216 + R_]) == 1, (text[216 + R_ - 1], text[216 + R_])
        a("s_branch L_entry")
        for _ in range(opt.lpad):
            a("s_nop 0")
        a.label("L_loop")
        a.lines += [l for p in range(216 + R_, 432) for l in text[p]]
        a.label("L_entry")
        a.lines += [l for p in range(216, 216 + R_) for l in text[p]]
    else:
        a.label("L_loop")
        a.lines += b1
    a("s_branch L_loop")
    a.lines += csetup_lines
    a.lines.append("@PADEPI")

    a.label("L_epi")
    probe("epi", 30)
    a.c("rest of stage 16, then stage 17 pair by pair with the epilogue of finished tiles interleaved")
    E = 242
    SL, SN = 2, 3
    PORD = [(0, 2), (0, 3), (0, 1), (0, 0)] + [(p, i) for p in (1, 2, 3) for i in ((0, 1, 2, 3) if p % 2 else (3, 2, 1, 0))] + [(4, 1), (4, 0)]
    un = []
    for n, (p, i) in enumerate(PORD):
        t2 = [(2 * p, i), (2 * p + 1, i)]
        un += t2 if n % 2 == 0 else t2[::-1]
    M17 = expand(un)
    LEAD = opt.lead
    skel = [("m", SL) + MF[idx] for idx in range(108 - BP, 108)]
    skel += [("m", SN) + m for m in M17[:6 * LEAD]]
    carry = ([], [])
    for n, (p, i) in enumerate(PORD):
        ms = [("m", SN) + m for m in M17[6 * (n + LEAD):6 * (n + LEAD + 1)]]
        A_, B_ = ACC(2 * p, i), ACC(2 * p + 1, i)
        v = []
        for acc, tau in ((A_, 2 * p), (B_, 2 * p + 1)):
            for h in range(2):
                v.append(("fma", acc + 2 * h, tau, h))
        ex = [("t", "v_exp_f32_e64 v%d, -v%d" % (E + 4 * k + r, acc + r)) for k, acc in enumerate((A_, B_)) for r in range(4)]
        den = [("v", "v_pk_fma_f32 v[%d:%d], v[%d:%d], s[%d:%d], s[%d:%d]" % (
            E + 2 * k, E + 2 * k + 1, E + 2 * k, E + 2 * k + 1, S_L2E, S_L2E + 1, S_L2E, S_L2E + 1)) for k in range(4)]
        rc = [("t", "v_rcp_f32 v%d, v%d" % (E + k, E + k)) for k in range(8)]
        mul = [("v", "v_pk_mul_f32 v[%d:%d], v[%d:%d], v[%d:%d]" % (
            E + 4 * k + 2 * h, E + 4 * k + 2 * h + 1, acc + 2 * h, acc + 2 * h + 1, E + 4 * k + 2 * h, E + 4 * k + 2 * h + 1))
            for k, acc in enumerate((A_, B_)) for h in range(2)]
        so, imm = (S_OUT + i, 64 * p) if p < 4 else (S_OUT + 4 + i, 0)
        fin = [("v", "v_cvt_pk_bf16_f32 v%d, v%d, v%d" % (A_ + 0, E + 0, E + 1)),
               ("v", "v_cvt_pk_bf16_f32 v%d, v%d, v%d" % (A_ + 2, E + 4, E + 5)),
               ("v", "v_cvt_pk_bf16_f32 v%d, v%d, v%d" % (A_ + 1, E + 2, E + 3)),
               ("v", "v_cvt_pk_bf16_f32 v%d, v%d, v%d" % (A_ + 3, E + 6, E + 7)),
               ("v", "s_nop 0"),
               ("v", "v_permlane16_swap_b32 v%d, v%d" % (A_ + 0, A_ + 2)),
               ("v", "v_permlane16_swap_b32 v%d, v%d" % (A_ + 1, A_ + 3))]
        if opt.stamp and n in (0, 2, 6, 10, 14, 17):
            k_ = (0, 2, 6, 10, 14, 17).index(n)
            fin.append(("stamp", "s_memtime s[%d:%d]" % (86 + 2 * k_, 87 + 2 * k_)))
        fin.append(("v", "buffer_store_dwordx4 %s, v%d, s[28:31], s%d offen offset:%d %s" % (vr(A_), V_OUT, so, imm, opt.stflag if n < opt.nwt else "")))

        def weave(tr, mm):
            r = []
            pos = [0, 3, 6][:len(mm)] if opt.weave == 0 else [0, 2, 4][:len(mm)]
            for j, t_ in enumerate(tr):
                if j in pos:
                    r.append(mm[pos.index(j)])
                r.append(t_)
            return r
        if opt.swp:
            body_ = weave(ex, ms[:3])
            pp, ps = carry
            if body_[0][0] == "m":
                body_ = [body_[0] + ("nold",)] + ps + body_[1:] if ps else body_
            else:
                body_ = ps + body_
            skel += v + pp + body_ + den + weave(rc, ms[3:]) + mul + [("free", B_)] + fin[:4]
            carry = (fin[5:7], fin[7:])
            if n == len(PORD) - 1:
                skel += fin[4:]
        else:
            skel += v + weave(ex, ms[:3]) + den + weave(rc, ms[3:]) + mul + [("free", B_)] + fin
        if n + LEAD == 17:
            skel.append(("mend",))
    res_first, res_last = {}, {}
    for j, it_ in enumerate(skel):
        tags = []
        if it_[0] == "m":
            tags = [("W", it_[1], it_[2], it_[4]), ("X", it_[1], it_[3], it_[4])]
        elif it_[0] == "fma":
            tags = [("S", it_[2]), ("T", it_[2])]
        for tg in tags:
            res_first.setdefault(tg, j); res_last[tg] = j
    reg = {}
    busy = set()
    for tg in res_first:
        if tg[0] == "W" and tg[1] == SL:
            reg[tg] = wslot(SL, tg[2], tg[3]); busy.add(reg[tg])
    pool = [r for r in range(WR, WR + 48, 4) if r not in busy] + [252]
    todo = sorted([tg for tg in res_first if not (tg[0] in "WX" and tg[1] == SL)], key=lambda tg: res_first[tg])
    subq = []
    q = Q2()
    now = 0
    count = 0
    acc_w = {}

    def em(ins, cyc, ws=1):
        nonlocal now, count
        a(ins); now += cyc; count += ws

    def try_load(j):
        if not subq:
            for tg in todo[:8]:
                if tg[0] == "X":
                    if res_last.get(("X", SL, tg[2], tg[3]), -1) <= j:
                        subq.append((x_ins(SN, tg[2], tg[3]), tg)); todo.remove(tg); break
                else:
                    if pool:
                        r = pool.pop(0); reg[tg] = r
                        if tg[0] == "W":
                            subq.extend((w_ins(r, tg[2], tg[3], h), tg) for h in range(2))
                        else:
                            subq.append(("ds_read_b128 %s, v%d offset:%d" % (vr(r), V_PAR, tg[1] * 128 + (64 if tg[0] == "T" else 0)), tg))
                        todo.remove(tg)
                    elif any(t2[0] == "X" for t2 in todo[:8]):
                        continue
                    break
        if subq:
            ins, tg = subq.pop(0)
            em(ins, 4)
            q.issue(tg, now)
            return True
        return False

    def need(tags, j):
        for tg in tags:
            while tg in todo or any(t2 == tg for _, t2 in subq):
                print("; tail: forced load of", tg, file=sys.stderr)
                assert try_load(j - 1), tg
            for t2, t_ in q.q:
                if t2 == tg and now - t_ < 120:
                    print("; tail: short latency", tg, now - t_, file=sys.stderr)
        n = q.need(set(tags), now, 150)
        if n is not None:
            em("s_waitcnt lgkmcnt(%d)" % n, 4)

    for j, it_ in enumerate(skel):
        kind = it_[0]
        if kind == "m":
            _, s_, tau, i, k = it_[:5]
            need([("W", s_, tau, k), ("X", s_, i, k)], j)
            ac = ACC(tau, i)
            nxt = skel[j + 1][0]
            em("v_mfma_f32_16x16x32_bf16 %s, %s, %s, %s" % (vr(ac), vr(reg[("W", s_, tau, k)]), vr(XR(i, k)), vr(ac)), 12 if nxt == "m" else 8)
            acc_w[ac] = count
            if res_last[("W", s_, tau, k)] == j:
                pool.append(reg[("W", s_, tau, k)])
            if len(it_) > 5:
                pass
            elif not try_load(j) and nxt == "m":
                now += 4
            elif nxt != "m" and opt.ld2 and subq:
                try_load(j)
        elif kind == "fma":
            _, r, tau, h = it_
            need([("S", tau), ("T", tau)], j)
            d = count - acc_w.get(r & ~3, -100)
            if d < 9:
                em("s_nop %d" % (8 - d), 4 * (9 - d), 9 - d)
            S_, T_ = reg[("S", tau)] + 2 * h, reg[("T", tau)] + 2 * h
            em("v_pk_fma_f32 v[%d:%d], v[%d:%d], v[%d:%d], v[%d:%d]" % (r, r + 1, r, r + 1, S_, S_ + 1, T_, T_ + 1), 4)
            if res_last[("S", tau)] == j:
                pool.extend([reg[("S", tau)], reg[("T", tau)]])
        elif kind == "t":
            assert not any(tg[0] == "X" for tg in todo) and not any(tg[0] == "X" for _, tg in subq)
            em(it_[1], 8)
        elif kind == "free":
            pool.append(it_[1])
        elif kind == "mend":
            if opt.stamp:
                a("s_waitcnt lgkmcnt(0)")
                q.q = []
            stampc(6)
            stamp(3)
        elif kind == "stamp":
            a("s_waitcnt lgkmcnt(0)")
            a(it_[1])
            a("s_waitcnt lgkmcnt(0)")
            q.q = []
        else:
            em(it_[1], 4)
    assert not todo and not subq
    probe("end", 40)
    if opt.stamp:
        a("s_waitcnt vmcnt(0)")
        stamp(4)
        a("s_waitcnt lgkmcnt(0)")
        a("s_mov_b32 s32, s18")
        a("s_and_b32 s33, s19, 0xffff")
        a("s_mov_b32 s34, 0x100000")
        a("s_mov_b32 s35, 0x20000")
        a("s_lshl_b32 s36, s2, 3")
        a("s_add_u32 s36, s36, s%d" % S_J)
        a("s_lshl_b32 s36, s36, 6")
        a("s_getreg_b32 s84, hwreg(HW_REG_HW_ID)")
        a("s_getreg_b32 s85, hwreg(HW_REG_XCC_ID)")
        for k in range(16):
            a("v_mov_b32 v%d, s%d" % (k, 70 + k))
        a("v_mov_b32 v16, 0")
        a("s_mov_b64 exec, 1")
        for k in range(4):
            a("buffer_store_dwordx4 v[%d:%d], v16, s[32:35], s36 offen offset:%d" % (4 * k, 4 * k + 3, 16 * k))
        a("s_memtime s[98:99]")
        a("s_waitcnt lgkmcnt(0)")
        a("v_mov_b32 v20, s82")
        for k in range(7):
            a("v_mov_b32 v%d, s%d" % (21 + k, 86 + 2 * k))
        a("s_add_u32 s36, s36, 0x80000")
        for k in range(2):
            a("buffer_store_dwordx4 v[%d:%d], v16, s[32:35], s36 offen offset:%d" % (20 + 4 * k, 23 + 4 * k, 16 * k))
    a.label("L_last")
    a("s_endpgm")

    if opt.touch:
        insert_nodes(a, dict([(k, "R_N_%d" % k if opt.t0 == 0 else "L_t0ret") for k in range(1, 5)] + [(k, "L_tret" if opt.contig else "L_lwait") for k in range(5, 12)]))
    else:
        resolve_pads(a)
    out = HEADER + DOC
    out += "; @launch grid=(256,1,1) block=(512,1,1) lds=%d\n" % LDS_BYTES
    out += '.amdgcn_target "amdgcn-amd-amdhsa--gfx950"\n.text\n.globl %s\n.p2align 12\n.p2align 8\n.type %s,@function\n' % (KNAME, KNAME)
    out += a.text()
    out += """.section .rodata,"a"
.p2align 6
.amdhsa_kernel %s
  .amdhsa_next_free_vgpr 256
  .amdhsa_next_free_sgpr 102
  .amdhsa_accum_offset 256
  .amdhsa_group_segment_fixed_size 0
  .amdhsa_kernarg_size 72
  .amdhsa_user_sgpr_count 2
  .amdhsa_user_sgpr_kernarg_segment_ptr 1
  .amdhsa_system_sgpr_workgroup_id_x 1
  .amdhsa_float_denorm_mode_32 3
.end_amdhsa_kernel
""" % KNAME
    return out


if __name__ == "__main__":
    ap = argparse.ArgumentParser()
    ap.add_argument("-o", default="standalone__batchnorm__sampling.s")
    ap.add_argument("--prio", type=int, default=3)
    ap.add_argument("--stamp", action="store_true")
    ap.add_argument("--stflag", default="sc1")
    ap.add_argument("--bp", type=int, default=20)
    ap.add_argument("--marg", type=int, default=9)
    ap.add_argument("--quiet", type=int, default=7)
    ap.add_argument("--told", type=int, default=10)
    ap.add_argument("--lead", type=int, default=2)
    ap.add_argument("--weave", type=int, default=1)
    ap.add_argument("--probe", default="")
    ap.add_argument("--mz", type=int, default=0)
    ap.add_argument("--swp", type=int, default=1)
    ap.add_argument("--lalign", type=int, default=16)
    ap.add_argument("--rot", type=int, default=0)
    ap.add_argument("--lpad", type=int, default=0)
    ap.add_argument("--lprio", type=int, default=3)
    ap.add_argument("--p3", type=int, default=1)
    ap.add_argument("--ld2", type=int, default=0)
    ap.add_argument("--contig", type=int, default=1)
    ap.add_argument("--swap", type=int, default=0)
    ap.add_argument("--t0", type=int, default=1)
    ap.add_argument("--l2c", type=int, default=0)
    ap.add_argument("--xg", type=lambda x: [int(c) for c in x], default=[0, 2, 3, 4])
    ap.add_argument("--touch", type=int, default=1)
    ap.add_argument("--lnodes", default="0,16,33,50")
    ap.add_argument("--enodes", default="1,5,9,13,16")
    ap.add_argument("--eorder", type=int, default=0)
    ap.add_argument("--nwt", type=int, default=18)
    ap.add_argument("--early", type=int, default=0)
    ap.add_argument("--estart", type=int, default=60)
    ap.add_argument("--align", type=int, default=0)
    opt = ap.parse_args()
    open(opt.o, "w").write(gen(opt))
```

```python
import sys
import argparse

KNAME = "standalone__batchnorm__sampling_kernel"

HEADER = """; Kernarg layout for this problem (72 bytes, ptrs only, base s[0:1]):
"""

DOC = """; ---------------------------------------------------------------------------------------------
; ---------------------------------------------------------------------------------------------
"""

XBYTES = 1024 * 16 * 576 * 2
WBYTES = 3 * 576 * 576 * 2
ROWB = 1152
TAPB = 576 * 1152

XBLK = 17 * 128
XBUFB = 16 * XBLK
WRING = 2 * XBUFB + 128
WKS = 10240
WSTAGE = 3 * WKS
PARAM = WRING + 3 * WSTAGE
LDS_BYTES = PARAM + 1280

LOG2E = 0x3FB8AA3B


class Asm:
    def __init__(self):
        self.lines = []

    def __call__(self, s):
        self.lines.append("    " + s)

    def label(self, l):
        self.lines.append(l + ":")

    def c(self, s):
        self.lines.append("    ; " + s)

    def text(self):
        return "\n".join(self.lines) + "\n"


class LdsQ:
    def __init__(self):
        self.q = []

    def issue(self, tag):
        self.q.append(tag)

    def wait(self, tag):
        idx = [i for i, t in enumerate(self.q) if t == tag]
        if not idx:
            return None
        n = min(len(self.q) - 1 - idx[-1], 15)
        self.q = self.q[len(self.q) - n:] if n else []
        return n

    def drain(self):
        had = bool(self.q)
        self.q = []
        return had


def vr(b, n=4):
    return "v[%d:%d]" % (b, b + n - 1)


def sizes_of(lines):
    import subprocess, re, os
    src = '.amdgcn_target "amdgcn-amd-amdhsa--gfx950"\n.text\n' + "\n".join(lines) + "\n" + "".join("N_%d:\n" % k for k in range(1, 14))
    open("_sz.s", "w").write(src)
    r = subprocess.run(["clang", "-x", "assembler", "-target", "amdgcn-amd-amdhsa", "-mcpu=gfx950", "-c", "_sz.s", "-o", "_sz.o"], capture_output=True, text=True)
    assert r.returncode == 0, r.stderr
    d = subprocess.run(["llvm-objdump", "-d", "--mcpu=gfx950", "_sz.o"], capture_output=True, text=True).stdout
    sz = [len(m.group(1).split()) * 4 for m in re.finditer(r"// [0-9A-F]{12}: ((?:[0-9A-F]{8} ?)+)", d)]
    out = []
    k = 0
    for l in lines:
        t = l.strip()
        if not t or t.startswith(";") or t.endswith(":"):
            out.append(0)
        else:
            assert not t.startswith("."), t
            out.append(sz[k])
            k += 1
    assert k == len(sz)
    return out


def resolve_pads(a):
    lines = [l for l in a.lines]
    sz = sizes_of([l if not l.startswith("@") else "" for l in lines])
    out = []
    addr = 0
    epi = None
    for l, n in zip(lines, sz):
        if l.startswith("@PAD "):
            tgt = int(l.split()[1])
            if addr > tgt:
                tgt = (addr + 63) // 64 * 64
            a.base1 = tgt
        elif l == "@NODE1":
            continue
        elif l == "@PADEPI":
            addr_n = addr + 16
            tgt = (addr_n + 4095) // 4096 * 4096 - 16
            epi = tgt + 16
        else:
            out.append(l); addr += n
            continue
        while addr < tgt:
            out.append("    s_endpgm"); addr += 4
    a.lines = out
    return epi


def insert_nodes(a, rets):
    epi = resolve_pads(a)
    target = {k: a.base1 + 1024 * (k - 1) for k in range(1, 5)}
    sz = sizes_of(a.lines)
    L = a.lines
    new = []
    addr = 0
    k = 1
    i = 0
    while i < len(L) and addr < epi:
        if k <= 4 and addr >= target[k] and sz[i]:
            cand = []
            ad, j = addr, i
            while j < len(L) and ad <= target[k] + 60:
                if sz[j]:
                    cand.append(j)
                ad += sz[j]
                j += 1
            pick = cand[0]
            for j in (cand if k > 1 else []):
                prev = [x for x in range(j - 1, -1, -1) if sz[x]][:1]
                if "v_mfma" in L[j] and "v_mfma" in L[prev[0]]:
                    pick = j
                    break
            while i < pick:
                new.append(L[i]); addr += sz[i]; i += 1
            if k == 1:
                assert new[-1] == "L_cgo:"
                dist = 0
                jj = i
                while L[jj] != "L_loop:":
                    dist += sz[jj]; jj += 1
                npad = 0
                if LALIGN >= 0:
                    npad = ((LALIGN - (addr + 4 + dist)) % 64) // 4
                new[-1:] = ["N_1:", "    s_branch %s" % rets[k]] + ["    s_endpgm"] * npad + ["L_cgo:"]
                addr += 4 * npad
                drop = npad
            else:
                new.append("N_%d:" % k)
                new.append("    s_cbranch_execz %s" % rets[k])
            addr += 4
            k += 1
            continue
        new.append(L[i]); addr += sz[i]; i += 1
    while L[i] != "L_epi:":
        assert L[i].strip() == "s_endpgm", L[i]
        i += 1
    assert k == 5 and addr == epi, (k, addr, epi)
    if CONTIG:
        new.append("N_5:")
        new.append("    s_branch %s" % rets[5])
        addr += 4
        k = 6
        while i < len(L):
            tg = epi + 1024 * (k - 5)
            if k in rets and addr >= tg and sz[i]:
                cand = []
                ad, j = addr, i
                while j < len(L) and ad <= tg + 60:
                    if sz[j]:
                        cand.append(j)
                    ad += sz[j]
                    j += 1
                pick, repl = cand[0], False
                for j in cand:
                    prev = [x for x in range(j - 1, -1, -1) if sz[x]][0]
                    if L[j].strip() == "s_nop 0" and "cvt_pk" in L[prev]:
                        pick, repl = j, True
                        break
                else:
                    for j in cand:
                        prev = [x for x in range(j - 1, -1, -1) if sz[x]][0]
                        if "v_exp" in L[prev] or "v_rcp" in L[prev]:
                            pick = j
                            break
                while i < pick:
                    new.append(L[i]); addr += sz[i]; i += 1
                new.append("N_%d:" % k)
                new.append("    s_cbranch_execz %s" % rets[k])
                addr += 4
                if repl:
                    i += 1
                k += 1
                continue
            new.append(L[i]); addr += sz[i]; i += 1
        if addr > epi + 1024 * (k - 5):
            print("; WARNING: code past the last touch window", file=sys.stderr)
        for kk in range(k, max(rets) + 1):
            new = [l.replace(" N_%d" % kk, " " + rets[kk]) if l.endswith(" N_%d" % kk) else l for l in new]
        a.lines = new
        return
    seg = epi
    new.append("N_5:")
    new.append("    s_branch %s" % rets[5])
    addr += 4
    k = 6
    while i < len(L):
        ad, j = addr, i
        best_s = best_m = None
        while j < len(L) and ad + sz[j] + 4 <= seg + 1024:
            ad += sz[j]
            if "buffer_store" in L[j]:
                best_s = (j + 1, ad)
            if "v_mfma" in L[j]:
                best_m = (j + 1, ad)
            j += 1
        if j == len(L):
            new += L[i:]
            addr = ad
            break
        cut = best_s if best_s and (not best_m or best_s[1] > best_m[1] - 200) else best_m
        if k not in rets:
            print("; WARNING: code past the last touch node", file=sys.stderr)
            new += L[i:]
            break
        new += L[i:cut[0]]
        i, addr = cut
        new.append("    s_branch L_seg%d" % k)
        addr += 4
        seg = seg + 1344 if (seg % 4096) < 2688 else (seg // 4096 + 1) * 4096
        while addr < seg:
            new.append("    s_endpgm"); addr += 4
        new.append("N_%d:" % k)
        new.append("    s_branch %s" % rets[k])
        new.append("L_seg%d:" % k)
        addr += 4
        k += 1
    for kk in range(k, max(rets) + 1):
        new = [l.replace(" N_%d" % kk, " " + rets[kk]) if l.endswith(" N_%d" % kk) else l for l in new]
    a.lines = new
    a.end_addr = addr
    a.last_seg = seg


opt_tight = False
CONTIG = False
LALIGN = -1


def gen(opt):
    global CONTIG, LALIGN
    CONTIG = bool(opt.contig)
    LALIGN = opt.lalign
    a = Asm()

    def ACC(tau, i):
        return (tau * 4 + i) * 4 if tau < 8 else 128 + ((tau - 8) * 2 + i) * 4

    XR0 = 144
    WR = 192
    V_WE, V_WO, V_WLE, V_WLO = 240, 241, 242, 243
    V_XA = 244
    V_PAR, V_OUT, V_LANE, V_XD = 250, 251, 252, 253
    V_T0, V_T1, V_T2, V_T3 = 148, 149, 150, 151
    V_WA, V_W4, V_ST = 10, 11, 40

    S_WAVE, S_ROW, S_COL, S_ODD = 48, 49, 50, 57
    S_J, S_XB, S_T2 = 51, 52, 53
    S_WS, S_CNT, S_SOFF = 54, 55, 56
    S_L2E = 58
    S_XT = 63
    S_OUT = 64
    S_WL, S_WG, S_WL0, S_WL1 = 36, 37, 38, 39
    S_EAL, S_EAG, S_EBL, S_EBG = 40, 41, 42, 43
    S_S = 44

    def stamp(idx):
        if opt.stamp:
            a("s_memrealtime s[%d:%d]" % (70 + 2 * idx, 71 + 2 * idx))

    def stampc(idx):
        if opt.stamp:
            a("s_memtime s[%d:%d]" % (70 + 2 * idx, 71 + 2 * idx))

    def lstamp():
        if opt.stamp:
            a("s_memtime s[90:91]")
            a("s_memrealtime s[92:93]")
            a("s_waitcnt lgkmcnt(0)")
            a("s_mov_b32 m0, s94")
            a("s_nop 0")
            a("v_writelane_b32 v%d, s90, m0" % V_ST)
            a("v_writelane_b32 v%d, s92, m0" % (V_ST + 1))
            a("s_add_u32 s94, s94, 1")

    def probe(name, t):
        if opt.probe == name:
            a("s_waitcnt lgkmcnt(0)")
            a("s_add_u32 s72, s70, %d" % (t * 100))
            a.label("L_sp")
            a("s_memrealtime s[74:75]")
            a("s_waitcnt lgkmcnt(0)")
            a("s_sub_u32 s73, s72, s74")
            a("s_cmp_gt_i32 s73, 0")
            a("s_cbranch_scc1 L_sp")

    a.label(KNAME)
    if opt.probe:
        a("s_memrealtime s[70:71]")
    stamp(0)
    a("s_load_dwordx8 s[4:11], s[0:1], 0")
    a("s_load_dwordx4 s[12:15], s[0:1], 32")
    a("s_load_dwordx2 s[16:17], s[0:1], 48")
    if opt.stamp:
        a("s_load_dwordx2 s[18:19], s[0:1], 64")
    a("v_lshrrev_b32 v1, 6, v0")
    a("v_and_b32 v%d, 63, v0" % V_LANE)
    a("s_cmp_ge_u32 s2, 256")
    a("s_cbranch_scc1 L_end")
    a("v_readfirstlane_b32 s%d, v1" % S_WAVE)
    a("s_and_b32 s%d, s2, 7" % S_ROW)
    a("s_lshr_b32 s%d, s2, 5" % S_T2)
    a("s_lshl3_add_u32 s%d, s%d, s%d" % (S_ROW, S_ROW, S_T2))
    a("s_bfe_u32 s%d, s2, 0x20003" % S_COL)
    a("s_and_b32 s%d, s%d, 1" % (S_ODD, S_COL))
    a("s_mulk_i32 s%d, 288" % S_COL)
    a("s_lshl_b32 s%d, s%d, 5" % (S_T2, S_ODD))
    a("s_sub_u32 s%d, s%d, s%d" % (S_COL, S_COL, S_T2))
    a("s_and_b32 s%d, s%d, 3" % (S_J, S_WAVE))
    a("s_lshl2_add_u32 s%d, s%d, s%d" % (S_SOFF, S_ROW, S_J))
    a("s_mul_i32 s%d, s%d, %d" % (S_SOFF, S_SOFF, 64 * ROWB))
    a("s_mul_i32 s%d, s%d, %d" % (S_XB, S_J, 4 * XBLK))
    a("s_mov_b32 s22, %d" % XBYTES)
    a("s_mov_b32 s23, 0x20000")
    a("v_lshrrev_b32 v%d, 3, v%d" % (V_T0, V_LANE))
    a("v_and_b32 v%d, 7, v%d" % (V_T1, V_LANE))
    a("v_and_b32 v%d, 6, v%d" % (V_T2, V_T0))
    a("v_xor_b32 v%d, v%d, v%d" % (V_T2, V_T1, V_T2))
    a("v_mul_u32_u24 v%d, %d, v%d" % (V_XD, ROWB, V_T0))
    a("v_lshl_add_u32 v%d, v%d, 4, v%d" % (V_XD, V_T2, V_XD))
    a(("s_cmp_lt_u32 s%d, 4" if opt.swap else "s_cmp_ge_u32 s%d, 4") % S_WAVE)
    a("s_cbranch_scc1 L_loader")

    def touch(nodes, ret, ex=True):
        if ex:
            a("s_mov_b64 exec, 0")
        for k, nd in enumerate(nodes[:-1]):
            a("s_cmp_eq_u32 s%d, %d" % (S_J, k))
            a("s_cbranch_scc1 %s" % nd)
        a("s_branch %s" % nodes[-1])
        if ret:
            a.label(ret)
            if ex:
                a("s_mov_b64 exec, -1")

    NODE_RET = {}

    def x4(sg):
        for n in range(4):
            a("buffer_load_dwordx4 v%d, s[20:23], s%d offen lds" % (V_XD, sg))
            if n < 3:
                a("s_addk_i32 m0, %d" % (1024 if n % 2 == 0 else XBLK - 1024))
                a("s_addk_i32 s%d, %d" % (sg, 8 * ROWB))

    def touch1(j, node, ex=True):
        if not opt.touch:
            return
        a("s_cmp_lg_u32 s%d, %d" % (S_J, j))
        a("s_cbranch_scc1 R2_%s" % node)
        if ex:
            a("s_mov_b64 exec, 0")
        a("s_branch %s" % node)
        a.label("R_%s" % node)
        if ex:
            a("s_mov_b64 exec, -1")
        a.label("R2_%s" % node)

    a("s_setprio 2")
    if opt.t0 == 0:
        touch1(0, "N_4")
    elif opt.touch:
        touch(["N_4", "N_3", "N_2", "N_1"], "L_t0ret")
    a.c("compute wave: DMA own X rows, chunk 0 (logical row tiles 0,1 = physical 2*odd.., then the other two)")
    a("s_mul_i32 s60, s%d, %d" % (S_ODD, 32 * ROWB))
    a("s_xor_b32 s62, s60, %d" % (32 * ROWB))
    a("s_add_u32 s%d, s%d, s62" % (S_T2, S_SOFF))
    a("s_add_u32 m0, s%d, %d" % (S_XB, 128 + 2 * XBLK))
    a("s_waitcnt lgkmcnt(0)")
    a("s_mov_b64 s[20:21], s[4:5]")
    x4(S_T2)
    a("s_addk_i32 m0, %d" % (-(3 * XBLK + 1024)))
    a("s_add_u32 s61, s%d, s60" % S_SOFF)
    x4(61)
    a("s_branch L_csetup")

    a.label("L_loader")
    a.c("loader j: sub-piece j of each 16-row unit of W (+ share of sub-piece 4), X rows of compute wave j")
    a("s_setprio %d" % opt.lprio)
    a("s_mov_b32 s26, %d" % WBYTES)
    a("s_mov_b32 s27, 0x20000")
    a("s_movk_i32 s60, 0x34")
    a("s_movk_i32 s61, %d" % ROWB)
    a("s_lshl_b32 s62, s%d, 2" % S_ODD)
    a("s_lshl_b32 s%d, s%d, 6" % (S_T2, S_J))
    for dst, first in ((V_WA, True), (V_W4, False)):
        if first:
            a("v_add_u32 v1, s%d, v%d" % (S_T2, V_LANE))
        else:
            a("v_add_u32 v1, 256, v%d" % V_LANE)
        a("v_mul_u32_u24 v3, 3277, v1")
        a("v_lshrrev_b32 v3, 16, v3")
        a("v_mul_u32_u24 v4, 20, v3")
        a("v_sub_u32 v4, v1, v4")
        a("v_lshrrev_b32 v5, 1, v3")
        a("v_and_b32 v2, 2, v5")
        a("v_xor_b32 v4, v2, v4")
        a("v_add_u32 v4, s62, v4")
        a("v_subrev_u32 v2, 20, v4")
        a("v_min_u32 v4, v4, v2")
        a("v_and_b32 v5, 6, v5")
        a("v_bfe_i32 v5, s60, v5, 2")
        a("v_lshl_add_u32 v3, v5, 2, v3")
        a("v_lshlrev_b32 v4, 4, v4")
        a("v_mad_u32_u24 v%d, v3, s61, v4" % dst)
    a("s_lshl_b32 s62, s%d, 10" % S_J)
    a("s_add_u32 s%d, s62, %d" % (S_WL0, WRING))
    a("s_add_u32 s%d, s%d, %d" % (S_WL1, S_WL0, 3 * WSTAGE))
    a("s_mov_b32 s%d, s%d" % (S_WL, S_WL0))
    a("s_mov_b32 s%d, s%d" % (S_WG, S_COL))
    a("s_lshl_b32 s%d, s%d, 12" % (S_EAL, S_J))
    a("s_addk_i32 s%d, 4096" % S_EAL)
    a("s_and_b32 s%d, s%d, 1" % (S_T2, S_J))
    a("s_mul_i32 s%d, s%d, %d" % (S_EBG, S_T2, 16 * ROWB))
    a("s_lshr_b32 s%d, s%d, 1" % (S_EAG, S_J))
    a("s_mul_i32 s%d, s%d, %d" % (S_EAG, S_EAG, TAPB))
    a("s_add_u32 s%d, s%d, s%d" % (S_EAG, S_EAG, S_EBG))
    a("s_add_u32 s%d, s%d, %d" % (S_EBG, S_EBG, 2 * TAPB))
    a("s_mulk_i32 s%d, 5120" % S_T2)
    a("s_addk_i32 s%d, %d" % (S_T2, 4 * 5120 + 4096))
    a("s_sub_u32 s%d, s%d, s62" % (S_EBL, S_T2))
    a("s_mov_b32 s%d, -2" % S_S)
    a("s_cmp_lt_u32 s%d, 2" % S_J)
    a("s_cselect_b64 s[46:47], -1, 1")
    a("s_waitcnt lgkmcnt(0)")
    a("s_mov_b64 s[24:25], s[6:7]")
    a("s_mov_b64 s[20:21], s[4:5]")
    if opt.stamp:
        a("v_mov_b32 v%d, 0" % V_ST)
        a("v_mov_b32 v%d, s70" % (V_ST + 1))
        a("s_mov_b32 s94, 3")
    a.label("L_lw")
    for u in range(6):
        if u == 0:
            a("s_mov_b32 m0, s%d" % S_WL)
            a("s_mov_b32 s%d, s%d" % (S_T2, S_WG))
        else:
            a("s_addk_i32 m0, 5120")
            if u & 1:
                a("s_addk_i32 s%d, %d" % (S_T2, 16 * ROWB))
            else:
                a("s_add_u32 s%d, s%d, %d" % (S_T2, S_T2, TAPB - 16 * ROWB))
        a("buffer_load_dwordx4 v%d, s[24:27], s%d offen lds" % (V_WA, S_T2))
    for el, eg in ((S_EAL, S_EAG), (S_EBL, S_EBG)):
        if el == S_EBL:
            a("s_mov_b64 exec, s[46:47]")
        a("s_add_u32 m0, s%d, s%d" % (S_WL, el))
        a("s_add_u32 s%d, s%d, s%d" % (S_T2, S_WG, eg))
        a("buffer_load_dwordx4 v%d, s[24:27], s%d offen lds" % (V_W4, S_T2))
    a("s_mov_b64 exec, -1")
    a("s_setprio 0")
    a("s_addk_i32 s%d, %d" % (S_WL, WSTAGE))
    a("s_cmp_eq_u32 s%d, s%d" % (S_WL, S_WL1))
    a("s_cselect_b32 s%d, s%d, s%d" % (S_WL, S_WL0, S_WL))
    a("s_add_u32 s%d, s%d, %d" % (S_WG, S_WG, 32 * ROWB))
    a("s_add_i32 s%d, s%d, 1" % (S_S, S_S))
    a("s_cmp_lt_i32 s%d, 0" % S_S)
    a("s_cbranch_scc1 L_lw")
    a("s_bitcmp1_b32 0x15554, s%d" % S_S)
    a("s_cbranch_scc1 L_ltouch1")
    a("s_bitcmp1_b32 s%d, 0" % S_S)
    a("s_cbranch_scc1 L_lw12")
    a.label("L_lwait")
    a("s_waitcnt vmcnt(8)")
    a.label("L_lw12")
    a("s_waitcnt vmcnt(12)")
    lstamp()
    a("s_barrier")
    lstamp()
    a("s_cmp_eq_u32 s%d, 16" % S_S)
    a("s_cbranch_scc1 L_ltail")
    a("s_and_b32 s60, s%d, 1" % S_S)
    a("s_lshr_b32 s61, s%d, 1" % S_S)
    a("s_add_u32 s61, s61, 1")
    a("s_mul_i32 s62, s60, %d" % (2 * XBLK))
    a("s_add_u32 s62, s62, s%d" % S_XB)
    a("s_addk_i32 s62, 128")
    a("s_bitcmp1_b32 s61, 0")
    a("s_cselect_b32 s63, %d, 0" % XBUFB)
    a("s_add_u32 m0, s62, s63")
    a("s_xor_b32 s60, s60, s%d" % S_ODD)
    a("s_mul_i32 s60, s60, %d" % (32 * ROWB))
    a("s_lshl_b32 s61, s61, 7")
    a("s_add_u32 s60, s60, s61")
    a("s_add_u32 s60, s60, s%d" % S_SOFF)
    x4(60)
    a("s_branch L_lw")

    a.lines.append("@PAD 1344")
    a.label("L_ltouch1")
    if opt.touch:
        a.c("one instruction-cache touch per stage (each node branches straight back to L_lwait)")
        if opt.contig:
            a("s_mov_b64 exec, 0")
        for k in range(1, 8):
            a("s_cmp_eq_u32 s%d, %d" % (S_S, 2 + 2 * k))
            a("s_cbranch_scc1 N_%d" % ((12 - k) if opt.contig else (4 + k)))
        if opt.contig:
            a.label("L_tret")
            a("s_mov_b64 exec, -1")
    a("s_cmp_lg_u32 s%d, 2" % S_S)
    a("s_cbranch_scc1 L_lwait")
    a.c("BN parameter loads: logical idx = 64j + lane (<160); physical = (idx + 32*odd) mod 160")
    a("s_lshl_b32 s%d, s%d, 6" % (S_T2, S_J))
    a("v_add_u32 v60, s%d, v%d" % (S_T2, V_LANE))
    a("s_lshl_b32 s%d, s%d, 5" % (S_T2, S_ODD))
    a("v_add_u32 v61, s%d, v60" % S_T2)
    a("v_subrev_u32 v62, 160, v61")
    a("v_min_u32 v61, v61, v62")
    a("v_lshlrev_b32 v61, 1, v61")
    PS = [28, 32, 64, 96]
    for k in range(4):
        a("s_mov_b32 s%d, s%d" % (PS[k], 8 + 2 * k))
        a("s_and_b32 s%d, s%d, 0xffff" % (PS[k] + 1, 9 + 2 * k))
        a("s_movk_i32 s%d, 1152" % (PS[k] + 2))
        a("s_mov_b32 s%d, 0x20000" % (PS[k] + 3))
        a("buffer_load_ushort v%d, v61, s[%d:%d], s%d offen" % (64 + k, PS[k], PS[k] + 3, S_COL))
    a("s_branch L_lwait")

    a.label("L_ltail")
    a.c("BN parameters: v64=mean v65=var v66=g v67=b (bf16 bits); roundings follow the bf16 reference")
    for k in range(4):
        a("v_lshlrev_b32 v%d, 16, v%d" % (64 + k, 64 + k))
    a("v_add_f32 v65, 0x3727c5ac, v65")
    a("v_cvt_pk_bf16_f32 v65, v65, v65")
    a("v_lshlrev_b32 v65, 16, v65")
    a("v_sqrt_f32 v65, v65")
    a("v_lshrrev_b32 v61, 4, v60")
    a("v_cvt_pk_bf16_f32 v65, v65, v65")
    a("v_lshlrev_b32 v65, 16, v65")
    a("v_rcp_f32 v65, v65")
    a("v_lshlrev_b32 v61, 7, v61")
    a("v_cvt_pk_bf16_f32 v65, v65, v65")
    a("v_lshlrev_b32 v65, 16, v65")
    a("v_mul_f32 v65, v66, v65")
    a("v_cvt_pk_bf16_f32 v65, v65, v65")
    a("v_lshlrev_b32 v65, 16, v65")
    a("v_fma_f32 v67, -v64, v65, v67")
    a("v_mul_f32 v65, 0x%x, v65" % LOG2E)
    a("v_mul_f32 v67, 0x%x, v67" % LOG2E)
    a("v_and_b32 v62, 15, v60")
    a("v_lshl_add_u32 v61, v62, 2, v61")
    a("v_add_u32 v61, %d, v61" % PARAM)
    a("v_cmp_gt_u32 vcc, 160, v60")
    a("s_and_saveexec_b64 s[46:47], vcc")
    a("ds_write_b32 v61, v65")
    a("ds_write_b32 v61, v67 offset:64")
    a("s_mov_b64 exec, s[46:47]")
    a("s_waitcnt vmcnt(0) lgkmcnt(0)")
    lstamp()
    a("s_barrier")
    lstamp()
    if opt.l2c:
        a.c("refresh the tail code in L2 (one dword per 128-B line)")
        a("s_getpc_b64 s[60:61]")
        a.label("L_pc3")
        a("s_lshl_b32 s62, s%d, 13" % S_J)
        a("v_lshl_add_u32 v12, v%d, 7, s62" % V_LANE)
        a("v_min_u32 v12, L_last-L_epi, v12")
        a("s_add_u32 s60, s60, L_epi-L_pc3")
        a("s_addc_u32 s61, s61, 0")
        a("v_mov_b32 v13, s61")
        a("v_add_co_u32 v12, vcc, s60, v12")
        a("s_nop 1")
        a("v_addc_co_u32 v13, vcc, 0, v13, vcc")
        a("global_load_dword v14, v[12:13], off")
        a("s_waitcnt vmcnt(0)")
    if opt.stamp:
        a("s_mov_b32 s32, s18")
        a("s_and_b32 s33, s19, 0xffff")
        a("s_mov_b32 s34, 0x1000000")
        a("s_mov_b32 s35, 0x20000")
        a("s_lshl_b32 s36, s2, 3")
        a("s_add_u32 s36, s36, s%d" % S_J)
        a("s_add_u32 s36, s36, 4")
        a("s_lshl_b32 s36, s36, 9")
        a("s_add_u32 s36, s36, 0x100000")
        a("v_lshlrev_b32 v42, 3, v%d" % V_LANE)
        a("buffer_store_dwordx2 v[%d:%d], v42, s[32:35], s36 offen" % (V_ST, V_ST + 1))
    a.label("L_end")
    a("s_endpgm")

    a.lines.append("@PAD 4096")
    main_lines = a.lines
    a.lines = []
    a.label("L_csetup")
    if opt.t0 == 0:
        touch1(1, "N_3")
    a.c("zero rows: r = 8w + (l>>3), and row 32")
    a("s_lshl_b32 s%d, s%d, 3" % (S_T2, S_J))
    a("v_add_u32 v1, s%d, v%d" % (S_T2, V_T0))
    a("v_mul_u32_u24 v1, %d, v1" % XBLK)
    a("v_lshl_add_u32 v1, v%d, 4, v1" % V_T1)
    a("v_mov_b64 v[4:5], 0")
    a("v_mov_b64 v[6:7], 0")
    a("ds_write_b128 v1, v[4:7]")
    a("v_lshlrev_b32 v2, 4, v%d" % V_T1)
    a("v_add_u32 v2, %d, v2" % (32 * XBLK))
    a("ds_write_b128 v2, v[4:7]")
    a("s_mov_b32 s28, s16")
    a("s_and_b32 s29, s17, 0xffff")
    a("s_mov_b32 s30, s22")
    a("s_mov_b32 s31, 0x20000")
    a("s_mov_b32 s%d, 0x%x" % (S_L2E, LOG2E))
    a("s_mov_b32 s%d, s%d" % (S_L2E + 1, S_L2E))
    a("s_mov_b32 s%d, %d" % (S_XT, XBUFB))
    a("v_lshrrev_b32 v%d, 4, v%d" % (V_T3, V_LANE))
    a("v_and_b32 v%d, 15, v%d" % (V_T2, V_LANE))
    for tap in range(3):
        va = V_XA + tap
        a("v_add_u32 v%d, %d, v%d" % (V_T0, tap + 15, V_T2))
        a("v_and_b32 v%d, 6, v%d" % (V_T0, V_T0))
        a("v_xor_b32 v%d, v%d, v%d" % (V_T0, V_T0, V_T3))
        a("v_lshlrev_b32 v%d, 4, v%d" % (V_T0, V_T0))
        a("v_lshl_add_u32 v%d, v%d, 7, v%d" % (V_T0, V_T2, V_T0))
        if tap:
            a("s_addk_i32 s%d, 128" % S_XB)
        a("v_add_u32 v%d, s%d, v%d" % (va, S_XB, V_T0))
        a("v_xor_b32 v%d, 64, v%d" % (va + 3, va))
    if opt.t0 == 0:
        touch1(2, "N_2")
    a("v_mul_u32_u24 v%d, %d, v%d" % (V_OUT, ROWB, V_T2))
    a("v_lshrrev_b32 v%d, 1, v%d" % (V_T0, V_T3))
    a("v_lshl_add_u32 v%d, v%d, 4, v%d" % (V_OUT, V_T0, V_OUT))
    a("v_and_b32 v%d, 1, v%d" % (V_T1, V_T3))
    a("v_lshl_add_u32 v%d, v%d, 5, v%d" % (V_OUT, V_T1, V_OUT))
    a("v_lshlrev_b32 v%d, 4, v%d" % (V_PAR, V_T3))
    a("v_add_u32 v%d, %d, v%d" % (V_PAR, PARAM, V_PAR))
    a("v_lshlrev_b32 v%d, 4, v%d" % (V_T0, V_T0))
    a("v_lshl_add_u32 v%d, v%d, 2, v%d" % (V_T0, V_T1, V_T0))
    a("v_bfe_u32 v%d, v%d, 2, 2" % (V_T2, V_LANE))
    a("v_add_u32 v%d, v%d, v%d" % (V_T0, V_T0, V_T2))
    a("v_mul_u32_u24 v%d, 320, v%d" % (V_T0, V_T0))
    a("v_and_b32 v%d, 3, v%d" % (V_T2, V_LANE))
    a("v_lshl_add_u32 v%d, v%d, 3, v%d" % (V_T0, V_T2, V_T0))
    a("v_lshlrev_b32 v%d, 5, v%d" % (V_T1, V_T1))
    a("v_add_u32 v%d, v%d, v%d" % (V_WLE, V_T0, V_T1))
    a("v_sub_u32 v%d, v%d, v%d" % (V_WLO, V_T0, V_T1))
    a("s_mov_b32 s%d, %d" % (S_WS, WRING))
    a("v_add_u32 v%d, s%d, v%d" % (V_WE, S_WS, V_WLE))
    a("v_add_u32 v%d, s%d, v%d" % (V_WO, S_WS, V_WLO))
    a("s_add_u32 s%d, s%d, s%d" % (S_SOFF, S_SOFF, S_COL))
    a("s_mul_i32 s60, s%d, %d" % (S_ODD, 32 * ROWB))
    a("s_add_u32 s61, s%d, s60" % S_SOFF)
    a("s_xor_b32 s60, s60, %d" % (32 * ROWB))
    a("s_add_u32 s62, s%d, s60" % S_SOFF)
    a("s_lshl_b32 s60, s%d, 6" % S_ODD)
    a("s_add_u32 s%d, s61, s60" % S_OUT)
    a("s_add_u32 s%d, s%d, %d" % (S_OUT + 1, S_OUT, 16 * ROWB))
    a("s_add_u32 s%d, s62, s60" % (S_OUT + 2))
    a("s_add_u32 s%d, s%d, %d" % (S_OUT + 3, S_OUT + 2, 16 * ROWB))
    a("s_lshl_b32 s60, s%d, 8" % S_ODD)
    a("s_sub_u32 s%d, s61, s60" % (S_OUT + 4))
    a("s_addk_i32 s%d, 256" % (S_OUT + 4))
    a("s_add_u32 s%d, s%d, %d" % (S_OUT + 5, S_OUT + 4, 16 * ROWB))
    if not opt.mz:
        for r in range(0, 144, 2):
            if r == 24 and opt.t0 == 0:
                touch1(3, "N_1", False)
            a("v_mov_b64 v[%d:%d], 0" % (r, r + 1))
    a("s_mov_b32 s%d, %d" % (S_CNT, 9))
    a("s_branch L_cgo")
    if opt.mz:
        body_ = a.lines
        ins_idx = [n for n, l in enumerate(body_) if l.startswith("    ") and not l.strip().startswith(";")]
        first = [n for n in ins_idx if "ds_write_b128 v2" in body_[n]][0] + 1
        cand = [n for n in ins_idx if n >= first][:-1]
        step = len(cand) // 9
        pos = {cand[k * step]: k for k in range(9)}
        out_ = []
        for n, l in enumerate(body_):
            if n in pos:
                k = 8 - pos[n]
                out_.append("    v_mfma_f32_32x32x16_bf16 v[%d:%d], v[192:195], v[192:195], 0" % (16 * k, 16 * k + 15))
            out_.append(l)
        one = [n for n, l in enumerate(out_) if l == "L_csetup:"][0]
        out_[one + 1:one + 1] = ["    v_mov_b64 v[192:193], 0", "    v_mov_b64 v[194:195], 0"]
        a.lines = out_
    csetup_lines = a.lines
    a.lines = main_lines
    a.lines.append("@NODE1")
    a.label("L_cgo")
    a("s_waitcnt lgkmcnt(0)" if opt.p3 else "s_waitcnt vmcnt(0) lgkmcnt(0)")
    stamp(1)
    probe("b0", 12)
    a("s_barrier")
    stamp(2)
    stampc(5)
    if opt.stamp:
        a("s_waitcnt lgkmcnt(0)")

    UNITS = [(0, 2), (0, 3), (1, 3), (1, 2), (1, 1), (1, 0), (0, 0), (0, 1), (2, 1), (2, 0), (2, 2), (2, 3)]
    for tau in range(3, 8):
        UNITS += [(tau, i) for i in ((3, 2, 1, 0) if tau % 2 else (0, 1, 2, 3))]
    UNITS += [(8, 0), (8, 1), (9, 1), (9, 0)]

    def expand(units):
        r = []
        for u, (tau, i) in enumerate(units):
            r += [(tau, i, k) for k in ((0, 1, 2) if u % 2 == 0 else (2, 1, 0))]
        return r

    MF = expand(UNITS)
    assert len(MF) == 108
    BP, MARG, QUIET, TOLD = opt.bp, opt.marg, opt.quiet, opt.told
    XR = lambda i, k: XR0 + (i * 3 + k) * 4
    wslot = lambda s, tau, k: WR + ((s * 30 + tau * 3 + k) % 12) * 4
    gbar = lambda s: 108 * s - BP - 1

    def w_ins(reg, tau, k, h):
        return "ds_read_b64_tr_b16 v[%d:%d], v%d offset:%d" % (reg + 2 * h, reg + 2 * h + 1, V_WE if tau % 2 == 0 else V_WO, k * WKS + h * 2560 + tau * 32)

    def x_ins(s, i, k):
        return "ds_read_b128 %s, v%d offset:%d" % (vr(XR(i, k)), V_XA + (s % 2) * 3 + k, i * XBLK)

    wfirst, wlast, xfirst, xlast = {}, {}, {}, {}
    for idx, (tau, i, k) in enumerate(MF):
        wfirst.setdefault((tau, k), idx); wlast[(tau, k)] = idx
        xfirst.setdefault((i, k), idx); xlast[(i, k)] = idx
    NS = 8
    ops = []
    for s_ in range(1, NS):
        for tau in range(10):
            for k in range(3):
                n = s_ * 30 + tau * 3 + k - 12
                ps, pt, pk_ = n // 30, (n % 30) // 3, n % 3
                e = max(gbar(s_) + 1, 108 * ps + wlast[(pt, pk_)])
                d = min(108 * s_ + wfirst[(tau, k)] - MARG, gbar(s_ + 1) - QUIET)
                for h in range(2):
                    ops.append([e, d, w_ins(wslot(s_, tau, k), tau, k, h), ("W", s_, tau, k)])
        for i in range(4):
            for k in range(3):
                e = max(gbar(s_) + 1, 108 * (s_ - 1) + xlast[(i, k)])
                d = 108 * s_ + xfirst[(i, k)] - MARG
                ops.append([e, d, x_ins(s_, i, k), ("X", s_, i, k)])
    gap = {}
    bars = {gbar(s_) for s_ in range(1, NS + 1)}
    pend = sorted(ops, key=lambda o: (o[1], o[0]))
    late = 0
    lastw, lastx = {}, {}
    for p in range(gbar(1), 108 * NS):
        if p in bars:
            continue
        for o in pend:
            if o[0] <= p:
                gap.setdefault(p, []).append(("l", o[2], o[3]))
                late = max(late, p - o[1])
                (lastw if o[3][0] == "W" else lastx)[o[3][1]] = p
                pend.remove(o)
                break
    assert not pend
    if late > 0:
        print("; worst deadline miss: %d gaps" % late, file=sys.stderr)

    def place(seq, lo, hi):
        free = [p for p in range(lo, hi + 1) if p not in bars and not gap.get(p)]
        slots = [p for p in free for _ in range(2)]
        if len(slots) < len(seq):
            slots = sorted(slots + [p for p in range(lo, hi + 1) if p not in bars and gap.get(p)])
        assert len(slots) >= len(seq), (lo, hi)
        for ins, p in zip(seq, slots):
            gap.setdefault(p, []).append(("i", ins))

    for s_ in range(1, NS - 1):
        assert lastw[s_] < gbar(s_ + 1) - 3
        seq = ["s_addk_i32 s%d, %d" % (S_WS, WSTAGE),
               "s_cmp_eq_u32 s%d, %d" % (S_WS, WRING + 3 * WSTAGE),
               "s_cselect_b32 s%d, %d, s%d" % (S_WS, WRING, S_WS),
               "v_add_u32 v%d, s%d, v%d" % (V_WE, S_WS, V_WLE),
               "v_add_u32 v%d, s%d, v%d" % (V_WO, S_WS, V_WLO)]
        if s_ % 2 == 0:
            seq += ["s_sub_u32 s%d, s%d, 1" % (S_CNT, S_CNT), "s_cmp_eq_u32 s%d, 0" % S_CNT]
        place(seq, lastw[s_] + 1, gbar(s_ + 1) - 1)
        seq = ["v_add_u32 v%d, s%d, v%d" % (V_XA + (s_ % 2) * 3 + k, S_XT, V_XA + (s_ % 2) * 3 + k) for k in range(3)]
        if s_ % 2 == 1:
            seq.append("s_sub_u32 s%d, 0, s%d" % (S_XT, S_XT))
        place(seq, max(lastx[s_] + 1, 108 * s_), lastw[s_] - 1)

    class Q2:
        def __init__(self):
            self.q = []
        def issue(self, tag, t):
            self.q.append((tag, t))
        def need(self, tags, now, told):
            idx = [n for n, (tg, _) in enumerate(self.q) if tg in tags]
            if not idx:
                return None
            n = len(self.q) - 1 - idx[-1]
            young = sum(1 for _, t in self.q if now - t < told)
            n = min(n, young, 15)
            self.q = self.q[len(self.q) - n:] if n else []
            return n

    q = Q2()
    text = {}
    for p in range(gbar(1) + 1, 108 * (NS - 1)):
        out = []
        s_, idx = p // 108, p % 108
        tau, i, k = MF[idx]
        n = q.need({("W", s_, tau, k), ("X", s_, i, k)}, p, TOLD)
        if n is not None:
            out.append("    s_waitcnt lgkmcnt(%d)" % n)
        ac = vr(ACC(tau, i))
        out.append("    v_mfma_f32_16x16x32_bf16 %s, %s, %s, %s" % (ac, vr(wslot(s_, tau, k)), vr(XR(i, k)), ac))
        if p in bars:
            if q.q:
                out.append("    s_waitcnt lgkmcnt(0)")
                q.q = []
            out.append("    s_barrier")
            if (s_ % 2) == 0:
                out.append("    s_cbranch_scc1 L_epi")
        for it_ in gap.get(p, []):
            out.append("    " + it_[1])
            if it_[0] == "l":
                q.issue(it_[2], p)
        text[p] = out
    b1 = [l for p in range(216, 432) for l in text[p]]
    b2 = [l for p in range(432, 648) for l in text[p]]
    assert b1 == b2
    seen = set()
    for p in range(gbar(2) + 1, 216):
        for it_ in gap.get(p, []):
            assert it_[0] == "l" and it_[2][1] == 2, it_
            if opt.p3 and it_[2][0] == "X":
                nv = {2: 6, 3: 4, 0: 2, 1: 0}[it_[2][2]]
                if not seen or nv < min(seen):
                    a("s_waitcnt vmcnt(%d)" % nv)
                seen.add(nv)
            a(it_[1])
    if opt.p3:
        assert 0 in seen
    if opt.rot:
        R_ = opt.rot
        assert len(text[216 + R_ - 1]) == 1 and len(text[216 + R_]) == 1, (text[216 + R_ - 1], text[216 + R_])
        a("s_branch L_entry")
        for _ in range(opt.lpad):
            a("s_nop 0")
        a.label("L_loop")
        a.lines += [l for p in range(216 + R_, 432) for l in text[p]]
        a.label("L_entry")
        a.lines += [l for p in range(216, 216 + R_) for l in text[p]]
    else:
        a.label("L_loop")
        a.lines += b1
    a("s_branch L_loop")
    a.lines += csetup_lines
    a.lines.append("@PADEPI")

    a.label("L_epi")
    probe("epi", 30)
    a.c("rest of stage 16, then stage 17 pair by pair with the epilogue of finished tiles interleaved")
    E = 242
    SL, SN = 2, 3
    PORD = [(0, 2), (0, 3), (0, 1), (0, 0)] + [(p, i) for p in (1, 2, 3) for i in ((0, 1, 2, 3) if p % 2 else (3, 2, 1, 0))] + [(4, 1), (4, 0)]
    un = []
    for n, (p, i) in enumerate(PORD):
        t2 = [(2 * p, i), (2 * p + 1, i)]
        un += t2 if n % 2 == 0 else t2[::-1]
    M17 = expand(un)
    LEAD = opt.lead
    skel = [("m", SL) + MF[idx] for idx in range(108 - BP, 108)]
    skel += [("m", SN) + m for m in M17[:6 * LEAD]]
    carry = ([], [])
    for n, (p, i) in enumerate(PORD):
        ms = [("m", SN) + m for m in M17[6 * (n + LEAD):6 * (n + LEAD + 1)]]
        A_, B_ = ACC(2 * p, i), ACC(2 * p + 1, i)
        v = []
        for acc, tau in ((A_, 2 * p), (B_, 2 * p + 1)):
            for h in range(2):
                v.append(("fma", acc + 2 * h, tau, h))
        ex = [("t", "v_exp_f32_e64 v%d, -v%d" % (E + 4 * k + r, acc + r)) for k, acc in enumerate((A_, B_)) for r in range(4)]
        den = [("v", "v_pk_fma_f32 v[%d:%d], v[%d:%d], s[%d:%d], s[%d:%d]" % (
            E + 2 * k, E + 2 * k + 1, E + 2 * k, E + 2 * k + 1, S_L2E, S_L2E + 1, S_L2E, S_L2E + 1)) for k in range(4)]
        rc = [("t", "v_rcp_f32 v%d, v%d" % (E + k, E + k)) for k in range(8)]
        mul = [("v", "v_pk_mul_f32 v[%d:%d], v[%d:%d], v[%d:%d]" % (
            E + 4 * k + 2 * h, E + 4 * k + 2 * h + 1, acc + 2 * h, acc + 2 * h + 1, E + 4 * k + 2 * h, E + 4 * k + 2 * h + 1))
            for k, acc in enumerate((A_, B_)) for h in range(2)]
        so, imm = (S_OUT + i, 64 * p) if p < 4 else (S_OUT + 4 + i, 0)
        fin = [("v", "v_cvt_pk_bf16_f32 v%d, v%d, v%d" % (A_ + 0, E + 0, E + 1)),
               ("v", "v_cvt_pk_bf16_f32 v%d, v%d, v%d" % (A_ + 2, E + 4, E + 5)),
               ("v", "v_cvt_pk_bf16_f32 v%d, v%d, v%d" % (A_ + 1, E + 2, E + 3)),
               ("v", "v_cvt_pk_bf16_f32 v%d, v%d, v%d" % (A_ + 3, E + 6, E + 7)),
               ("v", "s_nop 0"),
               ("v", "v_permlane16_swap_b32 v%d, v%d" % (A_ + 0, A_ + 2)),
               ("v", "v_permlane16_swap_b32 v%d, v%d" % (A_ + 1, A_ + 3))]
        if opt.stamp and n in (0, 2, 6, 10, 14, 17):
            k_ = (0, 2, 6, 10, 14, 17).index(n)
            fin.append(("stamp", "s_memtime s[%d:%d]" % (86 + 2 * k_, 87 + 2 * k_)))
        fin.append(("v", "buffer_store_dwordx4 %s, v%d, s[28:31], s%d offen offset:%d %s" % (vr(A_), V_OUT, so, imm, opt.stflag if n < opt.nwt else "")))

        def weave(tr, mm):
            r = []
            pos = [0, 3, 6][:len(mm)] if opt.weave == 0 else [0, 2, 4][:len(mm)]
            for j, t_ in enumerate(tr):
                if j in pos:
                    r.append(mm[pos.index(j)])
                r.append(t_)
            return r
        if opt.swp:
            body_ = weave(ex, ms[:3])
            pp, ps = carry
            if body_[0][0] == "m":
                body_ = [body_[0] + ("nold",)] + ps + body_[1:] if ps else body_
            else:
                body_ = ps + body_
            skel += v + pp + body_ + den + weave(rc, ms[3:]) + mul + [("free", B_)] + fin[:4]
            carry = (fin[5:7], fin[7:])
            if n == len(PORD) - 1:
                skel += fin[4:]
        else:
            skel += v + weave(ex, ms[:3]) + den + weave(rc, ms[3:]) + mul + [("free", B_)] + fin
        if n + LEAD == 17:
            skel.append(("mend",))
    res_first, res_last = {}, {}
    for j, it_ in enumerate(skel):
        tags = []
        if it_[0] == "m":
            tags = [("W", it_[1], it_[2], it_[4]), ("X", it_[1], it_[3], it_[4])]
        elif it_[0] == "fma":
            tags = [("S", it_[2]), ("T", it_[2])]
        for tg in tags:
            res_first.setdefault(tg, j); res_last[tg] = j
    reg = {}
    busy = set()
    for tg in res_first:
        if tg[0] == "W" and tg[1] == SL:
            reg[tg] = wslot(SL, tg[2], tg[3]); busy.add(reg[tg])
    pool = [r for r in range(WR, WR + 48, 4) if r not in busy] + [252]
    todo = sorted([tg for tg in res_first if not (tg[0] in "WX" and tg[1] == SL)], key=lambda tg: res_first[tg])
    subq = []
    q = Q2()
    now = 0
    count = 0
    acc_w = {}

    def em(ins, cyc, ws=1):
        nonlocal now, count
        a(ins); now += cyc; count += ws

    def try_load(j):
        if not subq:
            for tg in todo[:8]:
                if tg[0] == "X":
                    if res_last.get(("X", SL, tg[2], tg[3]), -1) <= j:
                        subq.append((x_ins(SN, tg[2], tg[3]), tg)); todo.remove(tg); break
                else:
                    if pool:
                        r = pool.pop(0); reg[tg] = r
                        if tg[0] == "W":
                            subq.extend((w_ins(r, tg[2], tg[3], h), tg) for h in range(2))
                        else:
                            subq.append(("ds_read_b128 %s, v%d offset:%d" % (vr(r), V_PAR, tg[1] * 128 + (64 if tg[0] == "T" else 0)), tg))
                        todo.remove(tg)
                    elif any(t2[0] == "X" for t2 in todo[:8]):
                        continue
                    break
        if subq:
            ins, tg = subq.pop(0)
            em(ins, 4)
            q.issue(tg, now)
            return True
        return False

    def need(tags, j):
        for tg in tags:
            while tg in todo or any(t2 == tg for _, t2 in subq):
                print("; tail: forced load of", tg, file=sys.stderr)
                assert try_load(j - 1), tg
            for t2, t_ in q.q:
                if t2 == tg and now - t_ < 120:
                    print("; tail: short latency", tg, now - t_, file=sys.stderr)
        n = q.need(set(tags), now, 150)
        if n is not None:
            em("s_waitcnt lgkmcnt(%d)" % n, 4)

    for j, it_ in enumerate(skel):
        kind = it_[0]
        if kind == "m":
            _, s_, tau, i, k = it_[:5]
            need([("W", s_, tau, k), ("X", s_, i, k)], j)
            ac = ACC(tau, i)
            nxt = skel[j + 1][0]
            em("v_mfma_f32_16x16x32_bf16 %s, %s, %s, %s" % (vr(ac), vr(reg[("W", s_, tau, k)]), vr(XR(i, k)), vr(ac)), 12 if nxt == "m" else 8)
            acc_w[ac] = count
            if res_last[("W", s_, tau, k)] == j:
                pool.append(reg[("W", s_, tau, k)])
            if len(it_) > 5:
                pass
            elif not try_load(j) and nxt == "m":
                now += 4
            elif nxt != "m" and opt.ld2 and subq:
                try_load(j)
        elif kind == "fma":
            _, r, tau, h = it_
            need([("S", tau), ("T", tau)], j)
            d = count - acc_w.get(r & ~3, -100)
            if d < 9:
                em("s_nop %d" % (8 - d), 4 * (9 - d), 9 - d)
            S_, T_ = reg[("S", tau)] + 2 * h, reg[("T", tau)] + 2 * h
            em("v_pk_fma_f32 v[%d:%d], v[%d:%d], v[%d:%d], v[%d:%d]" % (r, r + 1, r, r + 1, S_, S_ + 1, T_, T_ + 1), 4)
            if res_last[("S", tau)] == j:
                pool.extend([reg[("S", tau)], reg[("T", tau)]])
        elif kind == "t":
            assert not any(tg[0] == "X" for tg in todo) and not any(tg[0] == "X" for _, tg in subq)
            em(it_[1], 8)
        elif kind == "free":
            pool.append(it_[1])
        elif kind == "mend":
            if opt.stamp:
                a("s_waitcnt lgkmcnt(0)")
                q.q = []
            stampc(6)
            stamp(3)
        elif kind == "stamp":
            a("s_waitcnt lgkmcnt(0)")
            a(it_[1])
            a("s_waitcnt lgkmcnt(0)")
            q.q = []
        else:
            em(it_[1], 4)
    assert not todo and not subq
    probe("end", 40)
    if opt.stamp:
        a("s_waitcnt vmcnt(0)")
        stamp(4)
        a("s_waitcnt lgkmcnt(0)")
        a("s_mov_b32 s32, s18")
        a("s_and_b32 s33, s19, 0xffff")
        a("s_mov_b32 s34, 0x100000")
        a("s_mov_b32 s35, 0x20000")
        a("s_lshl_b32 s36, s2, 3")
        a("s_add_u32 s36, s36, s%d" % S_J)
        a("s_lshl_b32 s36, s36, 6")
        a("s_getreg_b32 s84, hwreg(HW_REG_HW_ID)")
        a("s_getreg_b32 s85, hwreg(HW_REG_XCC_ID)")
        for k in range(16):
            a("v_mov_b32 v%d, s%d" % (k, 70 + k))
        a("v_mov_b32 v16, 0")
        a("s_mov_b64 exec, 1")
        for k in range(4):
            a("buffer_store_dwordx4 v[%d:%d], v16, s[32:35], s36 offen offset:%d" % (4 * k, 4 * k + 3, 16 * k))
        a("s_memtime s[98:99]")
        a("s_waitcnt lgkmcnt(0)")
        a("v_mov_b32 v20, s82")
        for k in range(7):
            a("v_mov_b32 v%d, s%d" % (21 + k, 86 + 2 * k))
        a("s_add_u32 s36, s36, 0x80000")
        for k in range(2):
            a("buffer_store_dwordx4 v[%d:%d], v16, s[32:35], s36 offen offset:%d" % (20 + 4 * k, 23 + 4 * k, 16 * k))
    a.label("L_last")
    a("s_endpgm")

    if opt.touch:
        insert_nodes(a, dict([(k, "R_N_%d" % k if opt.t0 == 0 else "L_t0ret") for k in range(1, 5)] + [(k, "L_tret" if opt.contig else "L_lwait") for k in range(5, 12)]))
    else:
        resolve_pads(a)
    out = HEADER + DOC
    out += "; @launch grid=(256,1,1) block=(512,1,1) lds=%d\n" % LDS_BYTES
    out += '.amdgcn_target "amdgcn-amd-amdhsa--gfx950"\n.text\n.globl %s\n.p2align 12\n.p2align 8\n.type %s,@function\n' % (KNAME, KNAME)
    out += a.text()
    out += """.section .rodata,"a"
.p2align 6
.amdhsa_kernel %s
  .amdhsa_next_free_vgpr 256
  .amdhsa_next_free_sgpr 102
  .amdhsa_accum_offset 256
  .amdhsa_group_segment_fixed_size 0
  .amdhsa_kernarg_size 72
  .amdhsa_user_sgpr_count 2
  .amdhsa_user_sgpr_kernarg_segment_ptr 1
  .amdhsa_system_sgpr_workgroup_id_x 1
  .amdhsa_float_denorm_mode_32 3
.end_amdhsa_kernel
""" % KNAME
    return out


if __name__ == "__main__":
    ap = argparse.ArgumentParser()
    ap.add_argument("-o", default="standalone__batchnorm__sampling.s")
    ap.add_argument("--prio", type=int, default=3)
    ap.add_argument("--stamp", action="store_true")
    ap.add_argument("--stflag", default="sc1")
    ap.add_argument("--bp", type=int, default=20)
    ap.add_argument("--marg", type=int, default=9)
    ap.add_argument("--quiet", type=int, default=7)
    ap.add_argument("--told", type=int, default=10)
    ap.add_argument("--lead", type=int, default=2)
    ap.add_argument("--weave", type=int, default=1)
    ap.add_argument("--probe", default="")
    ap.add_argument("--mz", type=int, default=0)
    ap.add_argument("--swp", type=int, default=1)
    ap.add_argument("--lalign", type=int, default=16)
    ap.add_argument("--rot", type=int, default=0)
    ap.add_argument("--lpad", type=int, default=0)
    ap.add_argument("--lprio", type=int, default=3)
    ap.add_argument("--p3", type=int, default=1)
    ap.add_argument("--ld2", type=int, default=0)
    ap.add_argument("--contig", type=int, default=1)
    ap.add_argument("--swap", type=int, default=0)
    ap.add_argument("--t0", type=int, default=1)
    ap.add_argument("--l2c", type=int, default=0)
    ap.add_argument("--xg", type=lambda x: [int(c) for c in x], default=[0, 2, 3, 4])
    ap.add_argument("--touch", type=int, default=1)
    ap.add_argument("--lnodes", default="0,16,33,50")
    ap.add_argument("--enodes", default="1,5,9,13,16")
    ap.add_argument("--eorder", type=int, default=0)
    ap.add_argument("--nwt", type=int, default=18)
    ap.add_argument("--early", type=int, default=0)
    ap.add_argument("--estart", type=int, default=60)
    ap.add_argument("--align", type=int, default=0)
    opt = ap.parse_args()
    open(opt.o, "w").write(gen(opt))
```

```python
import sys
import argparse

KNAME = "standalone__batchnorm__sampling_kernel"

HEADER = """; Kernarg layout for this problem (72 bytes, ptrs only, base s[0:1]):
"""

DOC = """; ---------------------------------------------------------------------------------------------
; ---------------------------------------------------------------------------------------------
"""

XBYTES = 1024 * 16 * 576 * 2
WBYTES = 3 * 576 * 576 * 2
ROWB = 1152
TAPB = 576 * 1152

XBLK = 17 * 128
XBUFB = 16 * XBLK
WRING = 2 * XBUFB + 128
WUN = 5128
WKS = 2 * WUN
WSTAGE = 3 * WKS
PARAM = WRING + 3 * WSTAGE
LDS_BYTES = PARAM + 1280

LOG2E = 0x3FB8AA3B


class Asm:
    def __init__(self):
        self.lines = []

    def __call__(self, s):
        self.lines.append("    " + s)

    def label(self, l):
        self.lines.append(l + ":")

    def c(self, s):
        self.lines.append("    ; " + s)

    def text(self):
        return "\n".join(self.lines) + "\n"


class LdsQ:
    def __init__(self):
        self.q = []

    def issue(self, tag):
        self.q.append(tag)

    def wait(self, tag):
        idx = [i for i, t in enumerate(self.q) if t == tag]
        if not idx:
            return None
        n = min(len(self.q) - 1 - idx[-1], 15)
        self.q = self.q[len(self.q) - n:] if n else []
        return n

    def drain(self):
        had = bool(self.q)
        self.q = []
        return had


def vr(b, n=4):
    return "v[%d:%d]" % (b, b + n - 1)


def sizes_of(lines):
    import subprocess, re, os
    src = '.amdgcn_target "amdgcn-amd-amdhsa--gfx950"\n.text\n' + "\n".join(lines) + "\n" + "".join("N_%d:\n" % k for k in range(1, 14))
    open("_sz.s", "w").write(src)
    r = subprocess.run(["clang", "-x", "assembler", "-target", "amdgcn-amd-amdhsa", "-mcpu=gfx950", "-c", "_sz.s", "-o", "_sz.o"], capture_output=True, text=True)
    assert r.returncode == 0, r.stderr
    d = subprocess.run(["llvm-objdump", "-d", "--mcpu=gfx950", "_sz.o"], capture_output=True, text=True).stdout
    sz = [len(m.group(1).split()) * 4 for m in re.finditer(r"// [0-9A-F]{12}: ((?:[0-9A-F]{8} ?)+)", d)]
    out = []
    k = 0
    for l in lines:
        t = l.strip()
        if not t or t.startswith(";") or t.endswith(":"):
            out.append(0)
        else:
            assert not t.startswith("."), t
            out.append(sz[k])
            k += 1
    assert k == len(sz)
    return out


def resolve_pads(a):
    lines = [l for l in a.lines]
    sz = sizes_of([l if not l.startswith("@") else "" for l in lines])
    out = []
    addr = 0
    epi = None
    for l, n in zip(lines, sz):
        if l.startswith("@PAD "):
            tgt = int(l.split()[1])
            if addr > tgt:
                tgt = (addr + 63) // 64 * 64
            a.base1 = tgt
        elif l == "@NODE1":
            continue
        elif l == "@PADEPI":
            addr_n = addr + 16
            tgt = (addr_n + 4095) // 4096 * 4096 - 16
            epi = tgt + 16
        else:
            out.append(l); addr += n
            continue
        while addr < tgt:
            out.append("    s_endpgm"); addr += 4
    a.lines = out
    return epi


def insert_nodes(a, rets):
    epi = resolve_pads(a)
    target = {k: a.base1 + 1024 * (k - 1) for k in range(1, 5)}
    sz = sizes_of(a.lines)
    L = a.lines
    new = []
    addr = 0
    k = 1
    i = 0
    while i < len(L) and addr < epi:
        if k <= 4 and addr >= target[k] and sz[i]:
            cand = []
            ad, j = addr, i
            while j < len(L) and ad <= target[k] + 60:
                if sz[j]:
                    cand.append(j)
                ad += sz[j]
                j += 1
            pick = cand[0]
            for j in (cand if k > 1 else []):
                prev = [x for x in range(j - 1, -1, -1) if sz[x]][:1]
                if "v_mfma" in L[j] and "v_mfma" in L[prev[0]]:
                    pick = j
                    break
            while i < pick:
                new.append(L[i]); addr += sz[i]; i += 1
            if k == 1:
                assert new[-1] == "L_cgo:"
                dist = 0
                jj = i
                while L[jj] != "L_loop:":
                    dist += sz[jj]; jj += 1
                npad = 0
                if LALIGN >= 0:
                    npad = ((LALIGN - (addr + 4 + dist)) % 64) // 4
                new[-1:] = ["N_1:", "    s_branch %s" % rets[k]] + ["    s_endpgm"] * npad + ["L_cgo:"]
                addr += 4 * npad
                drop = npad
            else:
                new.append("N_%d:" % k)
                new.append("    s_cbranch_execz %s" % rets[k])
            addr += 4
            k += 1
            continue
        new.append(L[i]); addr += sz[i]; i += 1
    while L[i] != "L_epi:":
        assert L[i].strip() == "s_endpgm", L[i]
        i += 1
    assert k == 5 and addr == epi, (k, addr, epi)
    if CONTIG:
        new.append("N_5:")
        new.append("    s_branch %s" % rets[5])
        addr += 4
        k = 6
        while i < len(L):
            tg = epi + 1024 * (k - 5)
            if k in rets and addr >= tg and sz[i]:
                cand = []
                ad, j = addr, i
                while j < len(L) and ad <= tg + 60:
                    if sz[j]:
                        cand.append(j)
                    ad += sz[j]
                    j += 1
                pick, repl = cand[0], False
                for j in cand:
                    prev = [x for x in range(j - 1, -1, -1) if sz[x]][0]
                    if L[j].strip() == "s_nop 0" and "cvt_pk" in L[prev]:
                        pick, repl = j, True
                        break
                else:
                    for j in cand:
                        prev = [x for x in range(j - 1, -1, -1) if sz[x]][0]
                        if "v_exp" in L[prev] or "v_rcp" in L[prev]:
                            pick = j
                            break
                while i < pick:
                    new.append(L[i]); addr += sz[i]; i += 1
                new.append("N_%d:" % k)
                new.append("    s_cbranch_execz %s" % rets[k])
                addr += 4
                if repl:
                    i += 1
                k += 1
                continue
            new.append(L[i]); addr += sz[i]; i += 1
        if addr > epi + 1024 * (k - 5):
            print("; WARNING: code past the last touch window", file=sys.stderr)
        for kk in range(k, max(rets) + 1):
            new = [l.replace(" N_%d" % kk, " " + rets[kk]) if l.endswith(" N_%d" % kk) else l for l in new]
        a.lines = new
        return
    seg = epi
    new.append("N_5:")
    new.append("    s_branch %s" % rets[5])
    addr += 4
    k = 6
    while i < len(L):
        ad, j = addr, i
        best_s = best_m = None
        while j < len(L) and ad + sz[j] + 4 <= seg + 1024:
            ad += sz[j]
            if "buffer_store" in L[j]:
                best_s = (j + 1, ad)
            if "v_mfma" in L[j]:
                best_m = (j + 1, ad)
            j += 1
        if j == len(L):
            new += L[i:]
            addr = ad
            break
        cut = best_s if best_s and (not best_m or best_s[1] > best_m[1] - 200) else best_m
        if k not in rets:
            print("; WARNING: code past the last touch node", file=sys.stderr)
            new += L[i:]
            break
        new += L[i:cut[0]]
        i, addr = cut
        new.append("    s_branch L_seg%d" % k)
        addr += 4
        seg = seg + 1344 if (seg % 4096) < 2688 else (seg // 4096 + 1) * 4096
        while addr < seg:
            new.append("    s_endpgm"); addr += 4
        new.append("N_%d:" % k)
        new.append("    s_branch %s" % rets[k])
        new.append("L_seg%d:" % k)
        addr += 4
        k += 1
    for kk in range(k, max(rets) + 1):
        new = [l.replace(" N_%d" % kk, " " + rets[kk]) if l.endswith(" N_%d" % kk) else l for l in new]
    a.lines = new
    a.end_addr = addr
    a.last_seg = seg


opt_tight = False
CONTIG = False
LALIGN = -1


def gen(opt):
    global CONTIG, LALIGN
    CONTIG = bool(opt.contig)
    LALIGN = opt.lalign
    a = Asm()

    def ACC(tau, i):
        return (tau * 4 + i) * 4 if tau < 8 else 128 + ((tau - 8) * 2 + i) * 4

    XR0 = 144
    WR = 192
    V_WE, V_WO, V_WLE, V_WLO = 240, 241, 242, 243
    V_XA = 244
    V_PAR, V_OUT, V_LANE, V_XD = 250, 251, 252, 253
    V_T0, V_T1, V_T2, V_T3 = 148, 149, 150, 151
    V_WA, V_W4, V_ST = 10, 11, 40

    S_WAVE, S_ROW, S_COL, S_ODD = 48, 49, 50, 57
    S_J, S_XB, S_T2 = 51, 52, 53
    S_WS, S_CNT, S_SOFF = 54, 55, 56
    S_L2E = 58
    S_XT = 63
    S_OUT = 64
    S_WL, S_WG, S_WL0, S_WL1 = 36, 37, 38, 39
    S_EAL, S_EAG, S_EBL, S_EBG = 40, 41, 42, 43
    S_S = 44

    def stamp(idx):
        if opt.stamp:
            a("s_memrealtime s[%d:%d]" % (70 + 2 * idx, 71 + 2 * idx))

    def stampc(idx):
        if opt.stamp:
            a("s_memtime s[%d:%d]" % (70 + 2 * idx, 71 + 2 * idx))

    def lstamp():
        if opt.stamp:
            a("s_memtime s[90:91]")
            a("s_memrealtime s[92:93]")
            a("s_waitcnt lgkmcnt(0)")
            a("s_mov_b32 m0, s94")
            a("s_nop 0")
            a("v_writelane_b32 v%d, s90, m0" % V_ST)
            a("v_writelane_b32 v%d, s92, m0" % (V_ST + 1))
            a("s_add_u32 s94, s94, 1")

    def probe(name, t):
        if opt.probe == name:
            a("s_waitcnt lgkmcnt(0)")
            a("s_add_u32 s72, s70, %d" % (t * 100))
            a.label("L_sp")
            a("s_memrealtime s[74:75]")
            a("s_waitcnt lgkmcnt(0)")
            a("s_sub_u32 s73, s72, s74")
            a("s_cmp_gt_i32 s73, 0")
            a("s_cbranch_scc1 L_sp")

    a.label(KNAME)
    if opt.probe:
        a("s_memrealtime s[70:71]")
    stamp(0)
    a("s_load_dwordx8 s[4:11], s[0:1], 0")
    a("s_load_dwordx4 s[12:15], s[0:1], 32")
    a("s_load_dwordx2 s[16:17], s[0:1], 48")
    if opt.stamp:
        a("s_load_dwordx2 s[18:19], s[0:1], 64")
    a("v_lshrrev_b32 v1, 6, v0")
    a("v_and_b32 v%d, 63, v0" % V_LANE)
    a("s_cmp_ge_u32 s2, 256")
    a("s_cbranch_scc1 L_end")
    a("v_readfirstlane_b32 s%d, v1" % S_WAVE)
    a("s_and_b32 s%d, s2, 7" % S_ROW)
    a("s_lshr_b32 s%d, s2, 5" % S_T2)
    a("s_lshl3_add_u32 s%d, s%d, s%d" % (S_ROW, S_ROW, S_T2))
    a("s_bfe_u32 s%d, s2, 0x20003" % S_COL)
    a("s_and_b32 s%d, s%d, 1" % (S_ODD, S_COL))
    a("s_mulk_i32 s%d, 288" % S_COL)
    a("s_lshl_b32 s%d, s%d, 5" % (S_T2, S_ODD))
    a("s_sub_u32 s%d, s%d, s%d" % (S_COL, S_COL, S_T2))
    a("s_and_b32 s%d, s%d, 3" % (S_J, S_WAVE))
    a("s_lshl2_add_u32 s%d, s%d, s%d" % (S_SOFF, S_ROW, S_J))
    a("s_mul_i32 s%d, s%d, %d" % (S_SOFF, S_SOFF, 64 * ROWB))
    a("s_mul_i32 s%d, s%d, %d" % (S_XB, S_J, 4 * XBLK))
    a("s_mov_b32 s22, %d" % XBYTES)
    a("s_mov_b32 s23, 0x20000")
    a("v_lshrrev_b32 v%d, 3, v%d" % (V_T0, V_LANE))
    a("v_and_b32 v%d, 7, v%d" % (V_T1, V_LANE))
    a("v_and_b32 v%d, 6, v%d" % (V_T2, V_T0))
    a("v_xor_b32 v%d, v%d, v%d" % (V_T2, V_T1, V_T2))
    a("v_mul_u32_u24 v%d, %d, v%d" % (V_XD, ROWB, V_T0))
    a("v_lshl_add_u32 v%d, v%d, 4, v%d" % (V_XD, V_T2, V_XD))
    a(("s_cmp_lt_u32 s%d, 4" if opt.swap else "s_cmp_ge_u32 s%d, 4") % S_WAVE)
    a("s_cbranch_scc1 L_loader")

    def touch(nodes, ret, ex=True):
        if ex:
            a("s_mov_b64 exec, 0")
        for k, nd in enumerate(nodes[:-1]):
            a("s_cmp_eq_u32 s%d, %d" % (S_J, k))
            a("s_cbranch_scc1 %s" % nd)
        a("s_branch %s" % nodes[-1])
        if ret:
            a.label(ret)
            if ex:
                a("s_mov_b64 exec, -1")

    NODE_RET = {}

    def x4(sg):
        for n in range(4):
            a("buffer_load_dwordx4 v%d, s[20:23], s%d offen lds" % (V_XD, sg))
            if n < 3:
                a("s_addk_i32 m0, %d" % (1024 if n % 2 == 0 else XBLK - 1024))
                a("s_addk_i32 s%d, %d" % (sg, 8 * ROWB))

    def touch1(j, node, ex=True):
        if not opt.touch:
            return
        a("s_cmp_lg_u32 s%d, %d" % (S_J, j))
        a("s_cbranch_scc1 R2_%s" % node)
        if ex:
            a("s_mov_b64 exec, 0")
        a("s_branch %s" % node)
        a.label("R_%s" % node)
        if ex:
            a("s_mov_b64 exec, -1")
        a.label("R2_%s" % node)

    a("s_setprio 2")
    if opt.t0 == 0:
        touch1(0, "N_4")
    elif opt.touch:
        touch(["N_4", "N_3", "N_2", "N_1"], "L_t0ret")
    a.c("compute wave: DMA own X rows, chunk 0 (logical row tiles 0,1 = physical 2*odd.., then the other two)")
    a("s_mul_i32 s60, s%d, %d" % (S_ODD, 32 * ROWB))
    a("s_xor_b32 s62, s60, %d" % (32 * ROWB))
    a("s_add_u32 s%d, s%d, s62" % (S_T2, S_SOFF))
    a("s_add_u32 m0, s%d, %d" % (S_XB, 128 + 2 * XBLK))
    a("s_waitcnt lgkmcnt(0)")
    a("s_mov_b64 s[20:21], s[4:5]")
    x4(S_T2)
    a("s_addk_i32 m0, %d" % (-(3 * XBLK + 1024)))
    a("s_add_u32 s61, s%d, s60" % S_SOFF)
    x4(61)
    a("s_branch L_csetup")

    a.label("L_loader")
    a.c("loader j: sub-piece j of each 16-row unit of W (+ share of sub-piece 4), X rows of compute wave j")
    a("s_setprio %d" % opt.lprio)
    a("s_mov_b32 s26, %d" % WBYTES)
    a("s_mov_b32 s27, 0x20000")
    a("s_movk_i32 s61, %d" % ROWB)
    a("s_lshl_b32 s62, s%d, 2" % S_ODD)
    a("s_lshl_b32 s%d, s%d, 6" % (S_T2, S_J))
    for dst, first in ((V_WA, True), (V_W4, False)):
        if first:
            a("v_add_u32 v1, s%d, v%d" % (S_T2, V_LANE))
        else:
            a("v_add_u32 v1, 256, v%d" % V_LANE)
        a("v_mul_u32_u24 v3, 3277, v1")
        a("v_lshrrev_b32 v3, 16, v3")
        a("v_mul_u32_u24 v4, 20, v3")
        a("v_sub_u32 v4, v1, v4")
        a("v_add_u32 v4, s62, v4")
        a("v_subrev_u32 v2, 20, v4")
        a("v_min_u32 v4, v4, v2")
        a("v_and_b32 v5, 8, v3")
        a("v_add_u32 v3, v5, v3")
        a("v_lshlrev_b32 v4, 4, v4")
        a("v_mad_u32_u24 v%d, v3, s61, v4" % dst)
    a("s_lshl_b32 s62, s%d, 10" % S_J)
    a("s_add_u32 s%d, s62, %d" % (S_WL0, WRING))
    a("s_add_u32 s%d, s%d, %d" % (S_WL1, S_WL0, 3 * WSTAGE))
    a("s_mov_b32 s%d, s%d" % (S_WL, S_WL0))
    a("s_mov_b32 s%d, s%d" % (S_WG, S_COL))
    a("s_mul_i32 s%d, s%d, %d" % (S_EAL, S_J, WUN - 1024))
    a("s_addk_i32 s%d, 4096" % S_EAL)
    a("s_and_b32 s%d, s%d, 1" % (S_T2, S_J))
    a("s_mul_i32 s%d, s%d, %d" % (S_EBG, S_T2, 8 * ROWB))
    a("s_lshr_b32 s%d, s%d, 1" % (S_EAG, S_J))
    a("s_mul_i32 s%d, s%d, %d" % (S_EAG, S_EAG, TAPB))
    a("s_add_u32 s%d, s%d, s%d" % (S_EAG, S_EAG, S_EBG))
    a("s_add_u32 s%d, s%d, %d" % (S_EBG, S_EBG, 2 * TAPB))
    a("s_mulk_i32 s%d, %d" % (S_T2, WUN))
    a("s_addk_i32 s%d, %d" % (S_T2, 4 * WUN + 4096))
    a("s_sub_u32 s%d, s%d, s62" % (S_EBL, S_T2))
    a("s_mov_b32 s%d, -2" % S_S)
    a("s_cmp_lt_u32 s%d, 2" % S_J)
    a("s_cselect_b64 s[46:47], -1, 1")
    a("s_waitcnt lgkmcnt(0)")
    a("s_mov_b64 s[24:25], s[6:7]")
    a("s_mov_b64 s[20:21], s[4:5]")
    if opt.stamp:
        a("v_mov_b32 v%d, 0" % V_ST)
        a("v_mov_b32 v%d, s70" % (V_ST + 1))
        a("s_mov_b32 s94, 3")
    a.label("L_lw")
    for u in range(6):
        if u == 0:
            a("s_mov_b32 m0, s%d" % S_WL)
            a("s_mov_b32 s%d, s%d" % (S_T2, S_WG))
        else:
            a("s_addk_i32 m0, %d" % WUN)
            if u & 1:
                a("s_addk_i32 s%d, %d" % (S_T2, 8 * ROWB))
            else:
                a("s_add_u32 s%d, s%d, %d" % (S_T2, S_T2, TAPB - 8 * ROWB))
        a("buffer_load_dwordx4 v%d, s[24:27], s%d offen lds" % (V_WA, S_T2))
    for el, eg in ((S_EAL, S_EAG), (S_EBL, S_EBG)):
        if el == S_EBL:
            a("s_mov_b64 exec, s[46:47]")
        a("s_add_u32 m0, s%d, s%d" % (S_WL, el))
        a("s_add_u32 s%d, s%d, s%d" % (S_T2, S_WG, eg))
        a("buffer_load_dwordx4 v%d, s[24:27], s%d offen lds" % (V_W4, S_T2))
    a("s_mov_b64 exec, -1")
    a("s_setprio 0")
    a("s_addk_i32 s%d, %d" % (S_WL, WSTAGE))
    a("s_cmp_eq_u32 s%d, s%d" % (S_WL, S_WL1))
    a("s_cselect_b32 s%d, s%d, s%d" % (S_WL, S_WL0, S_WL))
    a("s_add_u32 s%d, s%d, %d" % (S_WG, S_WG, 32 * ROWB))
    a("s_add_i32 s%d, s%d, 1" % (S_S, S_S))
    a("s_cmp_lt_i32 s%d, 0" % S_S)
    a("s_cbranch_scc1 L_lw")
    a("s_bitcmp1_b32 0x15554, s%d" % S_S)
    a("s_cbranch_scc1 L_ltouch1")
    a("s_bitcmp1_b32 s%d, 0" % S_S)
    a("s_cbranch_scc1 L_lw12")
    a.label("L_lwait")
    a("s_waitcnt vmcnt(8)")
    a.label("L_lw12")
    a("s_waitcnt vmcnt(12)")
    lstamp()
    a("s_barrier")
    lstamp()
    a("s_cmp_eq_u32 s%d, 16" % S_S)
    a("s_cbranch_scc1 L_ltail")
    a("s_and_b32 s60, s%d, 1" % S_S)
    a("s_lshr_b32 s61, s%d, 1" % S_S)
    a("s_add_u32 s61, s61, 1")
    a("s_mul_i32 s62, s60, %d" % (2 * XBLK))
    a("s_add_u32 s62, s62, s%d" % S_XB)
    a("s_addk_i32 s62, 128")
    a("s_bitcmp1_b32 s61, 0")
    a("s_cselect_b32 s63, %d, 0" % XBUFB)
    a("s_add_u32 m0, s62, s63")
    a("s_xor_b32 s60, s60, s%d" % S_ODD)
    a("s_mul_i32 s60, s60, %d" % (32 * ROWB))
    a("s_lshl_b32 s61, s61, 7")
    a("s_add_u32 s60, s60, s61")
    a("s_add_u32 s60, s60, s%d" % S_SOFF)
    x4(60)
    a("s_branch L_lw")

    a.lines.append("@PAD 1344")
    a.label("L_ltouch1")
    if opt.touch:
        a.c("one instruction-cache touch per stage (each node branches straight back to L_lwait)")
        if opt.contig:
            a("s_mov_b64 exec, 0")
        for k in range(1, 8):
            a("s_cmp_eq_u32 s%d, %d" % (S_S, 2 + 2 * k))
            a("s_cbranch_scc1 N_%d" % ((12 - k) if opt.contig else (4 + k)))
        if opt.contig:
            a.label("L_tret")
            a("s_mov_b64 exec, -1")
    a("s_cmp_lg_u32 s%d, 2" % S_S)
    a("s_cbranch_scc1 L_lwait")
    a.c("BN parameter loads: logical idx = 64j + lane (<160); physical = (idx + 32*odd) mod 160")
    a("s_lshl_b32 s%d, s%d, 6" % (S_T2, S_J))
    a("v_add_u32 v60, s%d, v%d" % (S_T2, V_LANE))
    a("s_lshl_b32 s%d, s%d, 5" % (S_T2, S_ODD))
    a("v_add_u32 v61, s%d, v60" % S_T2)
    a("v_subrev_u32 v62, 160, v61")
    a("v_min_u32 v61, v61, v62")
    a("v_lshlrev_b32 v61, 1, v61")
    PS = [28, 32, 64, 96]
    for k in range(4):
        a("s_mov_b32 s%d, s%d" % (PS[k], 8 + 2 * k))
        a("s_and_b32 s%d, s%d, 0xffff" % (PS[k] + 1, 9 + 2 * k))
        a("s_movk_i32 s%d, 1152" % (PS[k] + 2))
        a("s_mov_b32 s%d, 0x20000" % (PS[k] + 3))
        a("buffer_load_ushort v%d, v61, s[%d:%d], s%d offen" % (64 + k, PS[k], PS[k] + 3, S_COL))
    a("s_branch L_lwait")

    a.label("L_ltail")
    a.c("BN parameters: v64=mean v65=var v66=g v67=b (bf16 bits); roundings follow the bf16 reference")
    for k in range(4):
        a("v_lshlrev_b32 v%d, 16, v%d" % (64 + k, 64 + k))
    a("v_add_f32 v65, 0x3727c5ac, v65")
    a("v_cvt_pk_bf16_f32 v65, v65, v65")
    a("v_lshlrev_b32 v65, 16, v65")
    a("v_sqrt_f32 v65, v65")
    a("v_lshrrev_b32 v61, 5, v60")
    a("v_cvt_pk_bf16_f32 v65, v65, v65")
    a("v_lshlrev_b32 v65, 16, v65")
    a("v_rcp_f32 v65, v65")
    a("v_lshlrev_b32 v61, 8, v61")
    a("v_cvt_pk_bf16_f32 v65, v65, v65")
    a("v_lshlrev_b32 v65, 16, v65")
    a("v_mul_f32 v65, v66, v65")
    a("v_cvt_pk_bf16_f32 v65, v65, v65")
    a("v_lshlrev_b32 v65, 16, v65")
    a("v_fma_f32 v67, -v64, v65, v67")
    a("v_mul_f32 v65, 0x%x, v65" % LOG2E)
    a("v_mul_f32 v67, 0x%x, v67" % LOG2E)
    a("v_and_b32 v62, 31, v60")
    a("v_lshl_add_u32 v61, v62, 2, v61")
    a("v_add_u32 v61, %d, v61" % PARAM)
    a("v_cmp_gt_u32 vcc, 160, v60")
    a("s_and_saveexec_b64 s[46:47], vcc")
    a("ds_write_b32 v61, v65")
    a("ds_write_b32 v61, v67 offset:128")
    a("s_mov_b64 exec, s[46:47]")
    a("s_waitcnt vmcnt(0) lgkmcnt(0)")
    lstamp()
    a("s_barrier")
    lstamp()
    if opt.l2c:
        a.c("refresh the tail code in L2 (one dword per 128-B line)")
        a("s_getpc_b64 s[60:61]")
        a.label("L_pc3")
        a("s_lshl_b32 s62, s%d, 13" % S_J)
        a("v_lshl_add_u32 v12, v%d, 7, s62" % V_LANE)
        a("v_min_u32 v12, L_last-L_epi, v12")
        a("s_add_u32 s60, s60, L_epi-L_pc3")
        a("s_addc_u32 s61, s61, 0")
        a("v_mov_b32 v13, s61")
        a("v_add_co_u32 v12, vcc, s60, v12")
        a("s_nop 1")
        a("v_addc_co_u32 v13, vcc, 0, v13, vcc")
        a("global_load_dword v14, v[12:13], off")
        a("s_waitcnt vmcnt(0)")
    if opt.stamp:
        a("s_mov_b32 s32, s18")
        a("s_and_b32 s33, s19, 0xffff")
        a("s_mov_b32 s34, 0x1000000")
        a("s_mov_b32 s35, 0x20000")
        a("s_lshl_b32 s36, s2, 3")
        a("s_add_u32 s36, s36, s%d" % S_J)
        a("s_add_u32 s36, s36, 4")
        a("s_lshl_b32 s36, s36, 9")
        a("s_add_u32 s36, s36, 0x100000")
        a("v_lshlrev_b32 v42, 3, v%d" % V_LANE)
        a("buffer_store_dwordx2 v[%d:%d], v42, s[32:35], s36 offen" % (V_ST, V_ST + 1))
    a.label("L_end")
    a("s_endpgm")

    a.lines.append("@PAD 4096")
    main_lines = a.lines
    a.lines = []
    a.label("L_csetup")
    if opt.t0 == 0:
        touch1(1, "N_3")
    a.c("zero rows: r = 8w + (l>>3), and row 32")
    a("s_lshl_b32 s%d, s%d, 3" % (S_T2, S_J))
    a("v_add_u32 v1, s%d, v%d" % (S_T2, V_T0))
    a("v_mul_u32_u24 v1, %d, v1" % XBLK)
    a("v_lshl_add_u32 v1, v%d, 4, v1" % V_T1)
    a("v_mov_b64 v[4:5], 0")
    a("v_mov_b64 v[6:7], 0")
    a("ds_write_b128 v1, v[4:7]")
    a("v_lshlrev_b32 v2, 4, v%d" % V_T1)
    a("v_add_u32 v2, %d, v2" % (32 * XBLK))
    a("ds_write_b128 v2, v[4:7]")
    a("s_mov_b32 s28, s16")
    a("s_and_b32 s29, s17, 0xffff")
    a("s_mov_b32 s30, s22")
    a("s_mov_b32 s31, 0x20000")
    a("s_mov_b32 s%d, 0x%x" % (S_L2E, LOG2E))
    a("s_mov_b32 s%d, s%d" % (S_L2E + 1, S_L2E))
    a("s_mov_b32 s%d, %d" % (S_XT, XBUFB))
    a("v_lshrrev_b32 v%d, 4, v%d" % (V_T3, V_LANE))
    a("v_and_b32 v%d, 15, v%d" % (V_T2, V_LANE))
    for tap in range(3):
        va = V_XA + tap
        a("v_add_u32 v%d, %d, v%d" % (V_T0, tap + 15, V_T2))
        a("v_and_b32 v%d, 6, v%d" % (V_T0, V_T0))
        a("v_xor_b32 v%d, v%d, v%d" % (V_T0, V_T0, V_T3))
        a("v_lshlrev_b32 v%d, 4, v%d" % (V_T0, V_T0))
        a("v_lshl_add_u32 v%d, v%d, 7, v%d" % (V_T0, V_T2, V_T0))
        if tap:
            a("s_addk_i32 s%d, 128" % S_XB)
        a("v_add_u32 v%d, s%d, v%d" % (va, S_XB, V_T0))
        a("v_xor_b32 v%d, 64, v%d" % (va + 3, va))
    if opt.t0 == 0:
        touch1(2, "N_2")
    a("v_mul_u32_u24 v%d, %d, v%d" % (V_OUT, ROWB, V_T2))
    a("v_lshl_add_u32 v%d, v%d, 4, v%d" % (V_OUT, V_T3, V_OUT))
    a("v_lshlrev_b32 v%d, 5, v%d" % (V_PAR, V_T3))
    a("v_add_u32 v%d, %d, v%d" % (V_PAR, PARAM, V_PAR))
    a("v_lshrrev_b32 v%d, 1, v%d" % (V_T0, V_T3))
    a("v_bfe_u32 v%d, v%d, 2, 2" % (V_T2, V_LANE))
    a("v_lshl_add_u32 v%d, v%d, 3, v%d" % (V_T0, V_T0, V_T2))
    a("v_mul_u32_u24 v%d, 320, v%d" % (V_T0, V_T0))
    a("v_and_b32 v%d, 3, v%d" % (V_T2, V_LANE))
    a("v_lshl_add_u32 v%d, v%d, 4, v%d" % (V_T0, V_T2, V_T0))
    a("v_and_b32 v%d, 1, v%d" % (V_T1, V_T3))
    a("v_mul_u32_u24 v%d, %d, v%d" % (V_T1, WUN, V_T1))
    a("v_add_u32 v%d, v%d, v%d" % (V_WLE, V_T0, V_T1))
    a("s_mov_b32 s%d, %d" % (S_WS, WRING))
    a("v_add_u32 v%d, s%d, v%d" % (V_WE, S_WS, V_WLE))
    a("s_add_u32 s%d, s%d, s%d" % (S_SOFF, S_SOFF, S_COL))
    a("s_mul_i32 s60, s%d, %d" % (S_ODD, 32 * ROWB))
    a("s_add_u32 s61, s%d, s60" % S_SOFF)
    a("s_xor_b32 s60, s60, %d" % (32 * ROWB))
    a("s_add_u32 s62, s%d, s60" % S_SOFF)
    a("s_lshl_b32 s60, s%d, 6" % S_ODD)
    a("s_add_u32 s%d, s61, s60" % S_OUT)
    a("s_add_u32 s%d, s%d, %d" % (S_OUT + 1, S_OUT, 16 * ROWB))
    a("s_add_u32 s%d, s62, s60" % (S_OUT + 2))
    a("s_add_u32 s%d, s%d, %d" % (S_OUT + 3, S_OUT + 2, 16 * ROWB))
    a("s_lshl_b32 s60, s%d, 8" % S_ODD)
    a("s_sub_u32 s%d, s61, s60" % (S_OUT + 4))
    a("s_addk_i32 s%d, 256" % (S_OUT + 4))
    a("s_add_u32 s%d, s%d, %d" % (S_OUT + 5, S_OUT + 4, 16 * ROWB))
    if not opt.mz:
        for r in range(0, 144, 2):
            if r == 24 and opt.t0 == 0:
                touch1(3, "N_1", False)
            a("v_mov_b64 v[%d:%d], 0" % (r, r + 1))
    a("s_mov_b32 s%d, %d" % (S_CNT, 9))
    a("s_branch L_cgo")
    if opt.mz:
        body_ = a.lines
        ins_idx = [n for n, l in enumerate(body_) if l.startswith("    ") and not l.strip().startswith(";")]
        first = [n for n in ins_idx if "ds_write_b128 v2" in body_[n]][0] + 1
        cand = [n for n in ins_idx if n >= first][:-1]
        step = len(cand) // 9
        pos = {cand[k * step]: k for k in range(9)}
        out_ = []
        for n, l in enumerate(body_):
            if n in pos:
                k = 8 - pos[n]
                out_.append("    v_mfma_f32_32x32x16_bf16 v[%d:%d], v[192:195], v[192:195], 0" % (16 * k, 16 * k + 15))
            out_.append(l)
        one = [n for n, l in enumerate(out_) if l == "L_csetup:"][0]
        out_[one + 1:one + 1] = ["    v_mov_b64 v[192:193], 0", "    v_mov_b64 v[194:195], 0"]
        a.lines = out_
    csetup_lines = a.lines
    a.lines = main_lines
    a.lines.append("@NODE1")
    a.label("L_cgo")
    a("s_waitcnt lgkmcnt(0)" if opt.p3 else "s_waitcnt vmcnt(0) lgkmcnt(0)")
    stamp(1)
    probe("b0", 12)
    a("s_barrier")
    stamp(2)
    stampc(5)
    if opt.stamp:
        a("s_waitcnt lgkmcnt(0)")

    UNITS = [(0, 2), (0, 3), (1, 3), (1, 2), (1, 1), (1, 0), (0, 0), (0, 1), (2, 1), (2, 0), (2, 2), (2, 3)]
    for tau in range(3, 8):
        UNITS += [(tau, i) for i in ((3, 2, 1, 0) if tau % 2 else (0, 1, 2, 3))]
    UNITS += [(8, 0), (8, 1), (9, 1), (9, 0)]

    def expand(units):
        r = []
        for u, (tau, i) in enumerate(units):
            r += [(tau, i, k) for k in ((0, 1, 2) if u % 2 == 0 else (2, 1, 0))]
        return r

    MF = expand(UNITS)
    assert len(MF) == 108
    BP, MARG, QUIET, TOLD = opt.bp, opt.marg, opt.quiet, opt.told
    XR = lambda i, k: XR0 + (i * 3 + k) * 4
    wslot = lambda s, tau, k: WR + ((s * 30 + tau * 3 + k) % 12) * 4
    gbar = lambda s: 108 * s - BP - 1

    def w_ins(reg, tau, k, h):
        return "ds_read_b64_tr_b16 v[%d:%d], v%d offset:%d" % (reg + 2 * h, reg + 2 * h + 1, V_WE, k * WKS + h * 1280 + (tau >> 1) * 64 + (tau & 1) * 8)

    def x_ins(s, i, k):
        return "ds_read_b128 %s, v%d offset:%d" % (vr(XR(i, k)), V_XA + (s % 2) * 3 + k, i * XBLK)

    wfirst, wlast, xfirst, xlast = {}, {}, {}, {}
    for idx, (tau, i, k) in enumerate(MF):
        wfirst.setdefault((tau, k), idx); wlast[(tau, k)] = idx
        xfirst.setdefault((i, k), idx); xlast[(i, k)] = idx
    NS = 8
    ops = []
    for s_ in range(1, NS):
        for tau in range(10):
            for k in range(3):
                n = s_ * 30 + tau * 3 + k - 12
                ps, pt, pk_ = n // 30, (n % 30) // 3, n % 3
                e = max(gbar(s_) + 1, 108 * ps + wlast[(pt, pk_)])
                d = min(108 * s_ + wfirst[(tau, k)] - MARG, gbar(s_ + 1) - QUIET)
                for h in range(2):
                    ops.append([e, d, w_ins(wslot(s_, tau, k), tau, k, h), ("W", s_, tau, k)])
        for i in range(4):
            for k in range(3):
                e = max(gbar(s_) + 1, 108 * (s_ - 1) + xlast[(i, k)])
                d = 108 * s_ + xfirst[(i, k)] - MARG
                ops.append([e, d, x_ins(s_, i, k), ("X", s_, i, k)])
    gap = {}
    bars = {gbar(s_) for s_ in range(1, NS + 1)}
    pend = sorted(ops, key=lambda o: (o[1], o[0]))
    late = 0
    lastw, lastx = {}, {}
    for p in range(gbar(1), 108 * NS):
        if p in bars:
            continue
        for o in pend:
            if o[0] <= p:
                gap.setdefault(p, []).append(("l", o[2], o[3]))
                late = max(late, p - o[1])
                (lastw if o[3][0] == "W" else lastx)[o[3][1]] = p
                pend.remove(o)
                break
    assert not pend
    if late > 0:
        print("; worst deadline miss: %d gaps" % late, file=sys.stderr)

    def place(seq, lo, hi):
        free = [p for p in range(lo, hi + 1) if p not in bars and not gap.get(p)]
        slots = [p for p in free for _ in range(2)]
        if len(slots) < len(seq):
            slots = sorted(slots + [p for p in range(lo, hi + 1) if p not in bars and gap.get(p)])
        assert len(slots) >= len(seq), (lo, hi)
        for ins, p in zip(seq, slots):
            gap.setdefault(p, []).append(("i", ins))

    for s_ in range(1, NS - 1):
        assert lastw[s_] < gbar(s_ + 1) - 3
        seq = ["s_addk_i32 s%d, %d" % (S_WS, WSTAGE),
               "s_cmp_eq_u32 s%d, %d" % (S_WS, WRING + 3 * WSTAGE),
               "s_cselect_b32 s%d, %d, s%d" % (S_WS, WRING, S_WS),
               "v_add_u32 v%d, s%d, v%d" % (V_WE, S_WS, V_WLE)]
        if s_ % 2 == 0:
            seq += ["s_sub_u32 s%d, s%d, 1" % (S_CNT, S_CNT), "s_cmp_eq_u32 s%d, 0" % S_CNT]
        place(seq, lastw[s_] + 1, gbar(s_ + 1) - 1)
        seq = ["v_add_u32 v%d, s%d, v%d" % (V_XA + (s_ % 2) * 3 + k, S_XT, V_XA + (s_ % 2) * 3 + k) for k in range(3)]
        if s_ % 2 == 1:
            seq.append("s_sub_u32 s%d, 0, s%d" % (S_XT, S_XT))
        place(seq, max(lastx[s_] + 1, 108 * s_), lastw[s_] - 1)

    class Q2:
        def __init__(self):
            self.q = []
        def issue(self, tag, t):
            self.q.append((tag, t))
        def need(self, tags, now, told):
            idx = [n for n, (tg, _) in enumerate(self.q) if tg in tags]
            if not idx:
                return None
            n = len(self.q) - 1 - idx[-1]
            young = sum(1 for _, t in self.q if now - t < told)
            n = min(n, young, 15)
            self.q = self.q[len(self.q) - n:] if n else []
            return n

    q = Q2()
    text = {}
    for p in range(gbar(1) + 1, 108 * (NS - 1)):
        out = []
        s_, idx = p // 108, p % 108
        tau, i, k = MF[idx]
        n = q.need({("W", s_, tau, k), ("X", s_, i, k)}, p, TOLD)
        if n is not None:
            out.append("    s_waitcnt lgkmcnt(%d)" % n)
        ac = vr(ACC(tau, i))
        out.append("    v_mfma_f32_16x16x32_bf16 %s, %s, %s, %s" % (ac, vr(wslot(s_, tau, k)), vr(XR(i, k)), ac))
        if p in bars:
            if q.q:
                out.append("    s_waitcnt lgkmcnt(0)")
                q.q = []
            out.append("    s_barrier")
            if (s_ % 2) == 0:
                out.append("    s_cbranch_scc1 L_epi")
        for it_ in gap.get(p, []):
            out.append("    " + it_[1])
            if it_[0] == "l":
                q.issue(it_[2], p)
        text[p] = out
    b1 = [l for p in range(216, 432) for l in text[p]]
    b2 = [l for p in range(432, 648) for l in text[p]]
    assert b1 == b2
    seen = set()
    for p in range(gbar(2) + 1, 216):
        for it_ in gap.get(p, []):
            assert it_[0] == "l" and it_[2][1] == 2, it_
            if opt.p3 and it_[2][0] == "X":
                nv = {2: 6, 3: 4, 0: 2, 1: 0}[it_[2][2]]
                if not seen or nv < min(seen):
                    a("s_waitcnt vmcnt(%d)" % nv)
                seen.add(nv)
            a(it_[1])
    if opt.p3:
        assert 0 in seen
    if opt.rot:
        R_ = opt.rot
        assert len(text[216 + R_ - 1]) == 1 and len(text[216 + R_]) == 1, (text[216 + R_ - 1], text[216 + R_])
        a("s_branch L_entry")
        for _ in range(opt.lpad):
            a("s_nop 0")
        a.label("L_loop")
        a.lines += [l for p in range(216 + R_, 432) for l in text[p]]
        a.label("L_entry")
        a.lines += [l for p in range(216, 216 + R_) for l in text[p]]
    else:
        a.label("L_loop")
        a.lines += b1
    a("s_branch L_loop")
    a.lines += csetup_lines
    a.lines.append("@PADEPI")

    a.label("L_epi")
    probe("epi", 30)
    a.c("rest of stage 16, then stage 17 pair by pair with the epilogue of finished tiles interleaved")
    E = 242
    SL, SN = 2, 3
    PORD = [(0, 2), (0, 3), (0, 1), (0, 0)] + [(p, i) for p in (1, 2, 3) for i in ((0, 1, 2, 3) if p % 2 else (3, 2, 1, 0))] + [(4, 1), (4, 0)]
    un = []
    for n, (p, i) in enumerate(PORD):
        t2 = [(2 * p, i), (2 * p + 1, i)]
        un += t2 if n % 2 == 0 else t2[::-1]
    M17 = expand(un)
    LEAD = opt.lead
    skel = [("m", SL) + MF[idx] for idx in range(108 - BP, 108)]
    skel += [("m", SN) + m for m in M17[:6 * LEAD]]
    carry = ([], [])
    for n, (p, i) in enumerate(PORD):
        ms = [("m", SN) + m for m in M17[6 * (n + LEAD):6 * (n + LEAD + 1)]]
        A_, B_ = ACC(2 * p, i), ACC(2 * p + 1, i)
        v = []
        for acc, tau in ((A_, 2 * p), (B_, 2 * p + 1)):
            for h in range(2):
                v.append(("fma", acc + 2 * h, tau, h))
        ex = [("t", "v_exp_f32_e64 v%d, -v%d" % (E + 4 * k + r, acc + r)) for k, acc in enumerate((A_, B_)) for r in range(4)]
        den = [("v", "v_pk_fma_f32 v[%d:%d], v[%d:%d], s[%d:%d], s[%d:%d]" % (
            E + 2 * k, E + 2 * k + 1, E + 2 * k, E + 2 * k + 1, S_L2E, S_L2E + 1, S_L2E, S_L2E + 1)) for k in range(4)]
        rc = [("t", "v_rcp_f32 v%d, v%d" % (E + k, E + k)) for k in range(8)]
        mul = [("v", "v_pk_mul_f32 v[%d:%d], v[%d:%d], v[%d:%d]" % (
            E + 4 * k + 2 * h, E + 4 * k + 2 * h + 1, acc + 2 * h, acc + 2 * h + 1, E + 4 * k + 2 * h, E + 4 * k + 2 * h + 1))
            for k, acc in enumerate((A_, B_)) for h in range(2)]
        so, imm = (S_OUT + i, 64 * p) if p < 4 else (S_OUT + 4 + i, 0)
        fin = [("v", "v_cvt_pk_bf16_f32 v%d, v%d, v%d" % (A_ + 0, E + 0, E + 1)),
               ("v", "v_cvt_pk_bf16_f32 v%d, v%d, v%d" % (A_ + 2, E + 4, E + 5)),
               ("v", "v_cvt_pk_bf16_f32 v%d, v%d, v%d" % (A_ + 1, E + 2, E + 3)),
               ("v", "v_cvt_pk_bf16_f32 v%d, v%d, v%d" % (A_ + 3, E + 6, E + 7)),
               ("v", "s_nop 0"),
               ("v", "v_permlane16_swap_b32 v%d, v%d" % (A_ + 0, A_ + 2)),
               ("v", "v_permlane16_swap_b32 v%d, v%d" % (A_ + 1, A_ + 3))]
        if opt.stamp and n in (0, 2, 6, 10, 14, 17):
            k_ = (0, 2, 6, 10, 14, 17).index(n)
            fin.append(("stamp", "s_memtime s[%d:%d]" % (86 + 2 * k_, 87 + 2 * k_)))
        fin.append(("v", "buffer_store_dwordx4 %s, v%d, s[28:31], s%d offen offset:%d %s" % (vr(A_), V_OUT, so, imm, opt.stflag if n < opt.nwt else "")))

        def weave(tr, mm):
            r = []
            pos = [0, 3, 6][:len(mm)] if opt.weave == 0 else [0, 2, 4][:len(mm)]
            for j, t_ in enumerate(tr):
                if j in pos:
                    r.append(mm[pos.index(j)])
                r.append(t_)
            return r
        if opt.swp:
            body_ = weave(ex, ms[:3])
            pp, ps = carry
            if body_[0][0] == "m":
                body_ = [body_[0] + ("nold",)] + ps + body_[1:] if ps else body_
            else:
                body_ = ps + body_
            skel += v + pp + body_ + den + weave(rc, ms[3:]) + mul + [("free", B_)] + fin[:4]
            carry = ([], fin[7:])
            if n == len(PORD) - 1:
                skel += fin[7:]
        else:
            skel += v + weave(ex, ms[:3]) + den + weave(rc, ms[3:]) + mul + [("free", B_)] + fin
        if n + LEAD == 17:
            skel.append(("mend",))
    res_first, res_last = {}, {}
    for j, it_ in enumerate(skel):
        tags = []
        if it_[0] == "m":
            tags = [("W", it_[1], it_[2], it_[4]), ("X", it_[1], it_[3], it_[4])]
        elif it_[0] == "fma":
            tags = [("S", it_[2]), ("T", it_[2])]
        for tg in tags:
            res_first.setdefault(tg, j); res_last[tg] = j
    reg = {}
    busy = set()
    for tg in res_first:
        if tg[0] == "W" and tg[1] == SL:
            reg[tg] = wslot(SL, tg[2], tg[3]); busy.add(reg[tg])
    pool = [r for r in range(WR, WR + 48, 4) if r not in busy] + [252]
    todo = sorted([tg for tg in res_first if not (tg[0] in "WX" and tg[1] == SL)], key=lambda tg: res_first[tg])
    subq = []
    q = Q2()
    now = 0
    count = 0
    acc_w = {}

    def em(ins, cyc, ws=1):
        nonlocal now, count
        a(ins); now += cyc; count += ws

    def try_load(j):
        if not subq:
            for tg in todo[:8]:
                if tg[0] == "X":
                    if res_last.get(("X", SL, tg[2], tg[3]), -1) <= j:
                        subq.append((x_ins(SN, tg[2], tg[3]), tg)); todo.remove(tg); break
                else:
                    if pool:
                        r = pool.pop(0); reg[tg] = r
                        if tg[0] == "W":
                            subq.extend((w_ins(r, tg[2], tg[3], h), tg) for h in range(2))
                        else:
                            subq.append(("ds_read_b128 %s, v%d offset:%d" % (vr(r), V_PAR, (tg[1] >> 1) * 256 + (tg[1] & 1) * 16 + (128 if tg[0] == "T" else 0)), tg))
                        todo.remove(tg)
                    elif any(t2[0] == "X" for t2 in todo[:8]):
                        continue
                    break
        if subq:
            ins, tg = subq.pop(0)
            em(ins, 4)
            q.issue(tg, now)
            return True
        return False

    def need(tags, j):
        for tg in tags:
            while tg in todo or any(t2 == tg for _, t2 in subq):
                print("; tail: forced load of", tg, file=sys.stderr)
                assert try_load(j - 1), tg
            for t2, t_ in q.q:
                if t2 == tg and now - t_ < 120:
                    print("; tail: short latency", tg, now - t_, file=sys.stderr)
        n = q.need(set(tags), now, 150)
        if n is not None:
            em("s_waitcnt lgkmcnt(%d)" % n, 4)

    for j, it_ in enumerate(skel):
        kind = it_[0]
        if kind == "m":
            _, s_, tau, i, k = it_[:5]
            need([("W", s_, tau, k), ("X", s_, i, k)], j)
            ac = ACC(tau, i)
            nxt = skel[j + 1][0]
            em("v_mfma_f32_16x16x32_bf16 %s, %s, %s, %s" % (vr(ac), vr(reg[("W", s_, tau, k)]), vr(XR(i, k)), vr(ac)), 12 if nxt == "m" else 8)
            acc_w[ac] = count
            if res_last[("W", s_, tau, k)] == j:
                pool.append(reg[("W", s_, tau, k)])
            if len(it_) > 5:
                pass
            elif not try_load(j) and nxt == "m":
                now += 4
            elif nxt != "m" and opt.ld2 and subq:
                try_load(j)
        elif kind == "fma":
            _, r, tau, h = it_
            need([("S", tau), ("T", tau)], j)
            d = count - acc_w.get(r & ~3, -100)
            if d < 9:
                em("s_nop %d" % (8 - d), 4 * (9 - d), 9 - d)
            S_, T_ = reg[("S", tau)] + 2 * h, reg[("T", tau)] + 2 * h
            em("v_pk_fma_f32 v[%d:%d], v[%d:%d], v[%d:%d], v[%d:%d]" % (r, r + 1, r, r + 1, S_, S_ + 1, T_, T_ + 1), 4)
            if res_last[("S", tau)] == j:
                pool.extend([reg[("S", tau)], reg[("T", tau)]])
        elif kind == "t":
            assert not any(tg[0] == "X" for tg in todo) and not any(tg[0] == "X" for _, tg in subq)
            em(it_[1], 8)
        elif kind == "free":
            pool.append(it_[1])
        elif kind == "mend":
            if opt.stamp:
                a("s_waitcnt lgkmcnt(0)")
                q.q = []
            stampc(6)
            stamp(3)
        elif kind == "stamp":
            a("s_waitcnt lgkmcnt(0)")
            a(it_[1])
            a("s_waitcnt lgkmcnt(0)")
            q.q = []
        else:
            em(it_[1], 4)
    assert not todo and not subq
    probe("end", 40)
    if opt.stamp:
        a("s_waitcnt vmcnt(0)")
        stamp(4)
        a("s_waitcnt lgkmcnt(0)")
        a("s_mov_b32 s32, s18")
        a("s_and_b32 s33, s19, 0xffff")
        a("s_mov_b32 s34, 0x100000")
        a("s_mov_b32 s35, 0x20000")
        a("s_lshl_b32 s36, s2, 3")
        a("s_add_u32 s36, s36, s%d" % S_J)
        a("s_lshl_b32 s36, s36, 6")
        a("s_getreg_b32 s84, hwreg(HW_REG_HW_ID)")
        a("s_getreg_b32 s85, hwreg(HW_REG_XCC_ID)")
        for k in range(16):
            a("v_mov_b32 v%d, s%d" % (k, 70 + k))
        a("v_mov_b32 v16, 0")
        a("s_mov_b64 exec, 1")
        for k in range(4):
            a("buffer_store_dwordx4 v[%d:%d], v16, s[32:35], s36 offen offset:%d" % (4 * k, 4 * k + 3, 16 * k))
        a("s_memtime s[98:99]")
        a("s_waitcnt lgkmcnt(0)")
        a("v_mov_b32 v20, s82")
        for k in range(7):
            a("v_mov_b32 v%d, s%d" % (21 + k, 86 + 2 * k))
        a("s_add_u32 s36, s36, 0x80000")
        for k in range(2):
            a("buffer_store_dwordx4 v[%d:%d], v16, s[32:35], s36 offen offset:%d" % (20 + 4 * k, 23 + 4 * k, 16 * k))
    a.label("L_last")
    a("s_endpgm")

    if opt.touch:
        insert_nodes(a, dict([(k, "R_N_%d" % k if opt.t0 == 0 else "L_t0ret") for k in range(1, 5)] + [(k, "L_tret" if opt.contig else "L_lwait") for k in range(5, 12)]))
    else:
        resolve_pads(a)
    out = HEADER + DOC
    out += "; @launch grid=(256,1,1) block=(512,1,1) lds=%d\n" % LDS_BYTES
    out += '.amdgcn_target "amdgcn-amd-amdhsa--gfx950"\n.text\n.globl %s\n.p2align 12\n.p2align 8\n.type %s,@function\n' % (KNAME, KNAME)
    out += a.text()
    out += """.section .rodata,"a"
.p2align 6
.amdhsa_kernel %s
  .amdhsa_next_free_vgpr 256
  .amdhsa_next_free_sgpr 102
  .amdhsa_accum_offset 256
  .amdhsa_group_segment_fixed_size 0
  .amdhsa_kernarg_size 72
  .amdhsa_user_sgpr_count 2
  .amdhsa_user_sgpr_kernarg_segment_ptr 1
  .amdhsa_system_sgpr_workgroup_id_x 1
  .amdhsa_float_denorm_mode_32 3
.end_amdhsa_kernel
""" % KNAME
    return out


if __name__ == "__main__":
    ap = argparse.ArgumentParser()
    ap.add_argument("-o", default="standalone__batchnorm__sampling.s")
    ap.add_argument("--prio", type=int, default=3)
    ap.add_argument("--stamp", action="store_true")
    ap.add_argument("--stflag", default="sc1")
    ap.add_argument("--bp", type=int, default=20)
    ap.add_argument("--marg", type=int, default=9)
    ap.add_argument("--quiet", type=int, default=7)
    ap.add_argument("--told", type=int, default=10)
    ap.add_argument("--lead", type=int, default=2)
    ap.add_argument("--weave", type=int, default=1)
    ap.add_argument("--probe", default="")
    ap.add_argument("--mz", type=int, default=0)
    ap.add_argument("--swp", type=int, default=1)
    ap.add_argument("--lalign", type=int, default=16)
    ap.add_argument("--rot", type=int, default=0)
    ap.add_argument("--lpad", type=int, default=0)
    ap.add_argument("--lprio", type=int, default=3)
    ap.add_argument("--p3", type=int, default=1)
    ap.add_argument("--ld2", type=int, default=0)
    ap.add_argument("--contig", type=int, default=1)
    ap.add_argument("--swap", type=int, default=0)
    ap.add_argument("--t0", type=int, default=1)
    ap.add_argument("--l2c", type=int, default=0)
    ap.add_argument("--xg", type=lambda x: [int(c) for c in x], default=[0, 2, 3, 4])
    ap.add_argument("--touch", type=int, default=1)
    ap.add_argument("--lnodes", default="0,16,33,50")
    ap.add_argument("--enodes", default="1,5,9,13,16")
    ap.add_argument("--eorder", type=int, default=0)
    ap.add_argument("--nwt", type=int, default=18)
    ap.add_argument("--early", type=int, default=0)
    ap.add_argument("--estart", type=int, default=60)
    ap.add_argument("--align", type=int, default=0)
    opt = ap.parse_args()
    open(opt.o, "w").write(gen(opt))
```
